```python
import torch

def _softmax(x, axis=-1):
    return torch.softmax(x, dim=axis)
def _gelu(x):
    return torch.nn.functional.gelu(x, approximate="tanh")
def _silu(x):
    return torch.nn.functional.silu(x)
def _sigmoid(x):
    return torch.sigmoid(x)
def _layernorm(x, axis=-1, eps=1e-5):
    m = x.mean(dim=axis, keepdim=True)
    v = x.var(dim=axis, keepdim=True, unbiased=False)
    return (x - m) / torch.sqrt(v + eps)
def _scatter_add(tgt, idx, src, axis=0):
    return tgt.clone().index_add_(axis, idx, src)
def _segment_sum(src, seg, n):
    out = torch.zeros((n,) + src.shape[1:], dtype=src.dtype)
    return out.index_add_(0, seg, src)
def _pad(x, pw):
    flat = tuple(v for pair in reversed(pw) for v in pair)
    return torch.nn.functional.pad(x, flat)

kernel_name = 'gated_mix__mha_block__linear_attn_block__prompt'

def setup_inputs():

    _w = (lambda a: (lambda t: t.to(torch.bfloat16) if t.is_floating_point() else t)(torch.as_tensor(a)))
    def _A_setup():
        B, S, D, H = 1, 2048, 576, 32
        return {
            "x": _w((lambda *s: torch.randn(*s, dtype=torch.bfloat16) * 0.05)(B, S, D)),
            "wqkv": _w((lambda *s: torch.randn(*s, dtype=torch.bfloat16) * 0.8)(D, 3 * D)),
            "wo": _w((lambda *s: torch.randn(*s, dtype=torch.bfloat16) * 0.05)(D, D)),
        }
    _A_in = _A_setup()

    def _B_setup():
        B, S, D = 1, 2048, 576
        return {
            "x": _w((lambda *s: torch.randn(*s, dtype=torch.bfloat16) * 0.05)(B, S, D)),
            "wqkv": _w((lambda *s: torch.randn(*s, dtype=torch.bfloat16) * 0.8)(D, 3 * D)),
            "wo": _w((lambda *s: torch.randn(*s, dtype=torch.bfloat16) * 0.1)(D, D)),
        }
    _B_in = _B_setup()

    return {
        "A_x": _A_in["x"],
        "A_wqkv": _A_in["wqkv"],
        "A_wo": _A_in["wo"],
        "B_x": _B_in["x"],
        "B_wqkv": _B_in["wqkv"],
        "B_wo": _B_in["wo"],
        "gate_w": _w((lambda *s: torch.randn(*s, dtype=torch.bfloat16) * 0.05)(576) * 16.0),
    }

def reference(A_x, A_wqkv, A_wo, B_x, B_wqkv, B_wo, gate_w):
    def _A_ref(x, wqkv, wo):
        B, S, D = x.shape
        H = 32
        Dh = D // H
        qkv = (lambda x, *d: x.permute(*d))((x @ wqkv).reshape(B, S, 3, H, Dh), 2, 0, 3, 1, 4)
        q, k, v = qkv[0], qkv[1], qkv[2]
        scores = torch.einsum("bhqd,bhkd->bhqk", q, k) * (Dh ** -0.5)
        p = _softmax(scores, axis=-1)
        o = torch.einsum("bhqk,bhkd->bhqd", p, v)
        return (lambda x, *d: x.permute(*d))(o, 0, 2, 1, 3).reshape(B, S, D) @ wo

    def _B_ref(x, wqkv, wo):
        B, S, D = x.shape
        H = 32; Dh = D // H
        qkv = (lambda x, *d: x.permute(*d))((x @ wqkv).reshape(B, S, 3, H, Dh), 2, 0, 3, 1, 4)
        q, k, v = qkv[0], qkv[1], qkv[2]
        phi = lambda t: torch.where(t > 0, t + 1, torch.exp(t)) + 1e-6
        pq, pk = phi(q), phi(k)
        kv = torch.einsum("bhsd,bhse->bhde", pk, v)
        z = torch.einsum("bhsd->bhd", pk)
        num = torch.einsum("bhqd,bhde->bhqe", pq, kv)
        den = torch.einsum("bhqd,bhd->bhq", pq, z)[..., None] + 1e-6
        o = num / den
        return (lambda x, *d: x.permute(*d))(o, 0, 2, 1, 3).reshape(B, S, D) @ wo

    x = A_x
    g = _sigmoid((x * gate_w).sum(-1, keepdims=True))
    a = _A_ref(x, A_wqkv, A_wo)
    b = _B_ref(x, B_wqkv, B_wo)
    return g * a + (1 - g) * b
```

```python
import re

_REG = re.compile(r'^(v|a|s)(\d+)$')
_RNG = re.compile(r'^(v|a|s)\[(\d+):(\d+)\]$')


def regs_of(tok):
    tok = tok.strip()
    if tok.startswith('-'):
        tok = tok[1:]
    if tok.startswith('|') and tok.endswith('|'):
        tok = tok[1:-1]
    if tok.startswith('abs(') and tok.endswith(')'):
        tok = tok[4:-1]
    m = _REG.match(tok)
    if m:
        return [(m.group(1), int(m.group(2)))]
    m = _RNG.match(tok)
    if m:
        return [(m.group(1), i) for i in range(int(m.group(2)), int(m.group(3)) + 1)]
    if tok == 'vcc':
        return [('s', 106), ('s', 107)]
    if tok == 'exec':
        return [('s', 126), ('s', 127)]
    if tok == 'm0':
        return [('s', 124)]
    return []


def split_ops(s):
    out, depth, cur = [], 0, ''
    for ch in s:
        if ch in '[(':
            depth += 1
        if ch in '])':
            depth -= 1
        if ch == ',' and depth == 0:
            out.append(cur.strip())
            cur = ''
        else:
            cur += ch
    if cur.strip():
        out.append(cur.strip())
    return out


TRANS = ('v_exp_f32', 'v_log_f32', 'v_rcp_f32', 'v_rsq_f32', 'v_sqrt_f32', 'v_sin_f32', 'v_cos_f32')


def mfma_passes(mn):
    if '32x32x4_2b' in mn:
        return 16
    if '32x32' in mn:
        return 8
    if '16x16' in mn:
        return 4
    raise ValueError(mn)


RAW_VALU = {2: 5, 4: 8, 8: 12, 16: 20}
RAW_C = {2: 4, 4: 6, 8: 10, 16: 18}
WAR_C = {2: 1, 4: 3, 8: 7, 16: 15}


class Asm:
    def __init__(self):
        self.lines = []
        self.reset_state()
        self.n_nops = 0

    def reset_state(self):
        self.t = 0
        self.w = {}
        self.cread = {}
        self.storedata = {}
        self.vm = []
        self.lg = []
        self.smem = []

    def raw(self, s):
        self.lines.append(s)

    def comment(self, s):
        self.lines.append('  ; ' + s)

    def label(self, name):
        self.lines.append(name + ':')

    def _emit(self, s):
        self.lines.append('  ' + s)
        self.t += 1

    def nop(self, n):
        while n > 0:
            k = min(n, 16)
            self.lines.append(f'  s_nop {k-1}')
            self.t += k
            n -= k
            self.n_nops += 1

    def fence(self):
        self.waitcnt(vm=0, lg=0)
        self.nop(20)
        self.w.clear(); self.cread.clear(); self.storedata.clear()

    def hazard_fence(self):
        self.nop(20)
        self.w.clear(); self.cread.clear(); self.storedata.clear()

    def waitcnt(self, vm=None, lg=None):
        parts = []
        if vm is not None:
            assert 0 <= vm <= 63
            parts.append(f'vmcnt({vm})')
            while len(self.vm) > vm:
                self.vm.pop(0)
        if lg is not None:
            assert 0 <= lg <= 15
            parts.append(f'lgkmcnt({lg})')
            if self.smem:
                assert lg == 0, 'smem outstanding: only lgkmcnt(0)'
                self.smem = []
            while len(self.lg) > lg:
                self.lg.pop(0)
        self._emit('s_waitcnt ' + ' '.join(parts))

    def wait_vm_tag(self, tag):
        idx = max((i for i, e in enumerate(self.vm) if e['tag'] == tag), default=None)
        if idx is None:
            return
        self.waitcnt(vm=len(self.vm) - idx - 1)

    def __call__(self, text, tag=None):
        text = text.strip()
        mn, _, rest = text.partition(' ')
        rest = rest.strip()
        ops = split_ops(rest)
        mods = ''
        if ops:
            last = ops[-1].split()
            if len(last) > 1:
                ops[-1] = last[0]
                mods = ' '.join(last[1:])
        R = [regs_of(o) for o in ops]
        reads, writes = [], []
        kind = None
        base = mn.replace('_e32', '').replace('_e64', '')
        is_mfma = base.startswith('v_mfma') or base.startswith('v_smfmac')
        if is_mfma:
            kind = 'mfma'
        elif base.startswith('v_'):
            kind = 'valu'
        elif base.startswith('ds_'):
            kind = 'ds'
        elif base.startswith('buffer_') or base.startswith('global_'):
            kind = 'vmem'
        elif base.startswith('s_load') or base.startswith('s_memtime') or base.startswith('s_memrealtime'):
            kind = 'smem'
        elif base.startswith('s_'):
            kind = 'salu'
        else:
            raise ValueError(text)

        need = 0

        def req(t_prod, states):
            nonlocal need
            need = max(need, t_prod + 1 + states)

        if kind == 'mfma':
            P = mfma_passes(base)
            D, A, B = R[0], R[1], R[2]
            if base.startswith('v_smfmac'):
                C = D
                AB = A + B + R[3]
            else:
                C = R[3]
                AB = A + B
            for r in AB:
                if r in self.w:
                    tp, k, ex = self.w[r]
                    if k in ('valu', 'trans'):
                        req(tp, 2)
                    elif k == 'mfma':
                        req(tp, RAW_VALU[ex[0]])
            for r in C:
                if r in self.w:
                    tp, k, ex = self.w[r]
                    if k in ('valu', 'trans'):
                        req(tp, 2)
                    elif k == 'mfma':
                        if ex[1] == tuple(C) and ex[0] == P:
                            req(tp, 2 if P == 2 else 0)
                        else:
                            req(tp, RAW_C[ex[0]])
            for r in D:
                if r in self.w and r not in C:
                    tp, k, ex = self.w[r]
                    if k == 'mfma' and ex[0] > P:
                        req(tp, RAW_C[ex[0]])
            reads = AB + C
            writes = D
        elif kind == 'valu':
            if base.startswith('v_cmp'):
                writes = R[0]
                reads = sum(R[1:], [])
            elif base.startswith('v_permlane') and 'swap' in base:
                writes = R[0] + R[1]
                reads = R[0] + R[1]
            elif base in ('v_fmac_f32', 'v_dot2c_f32_bf16', 'v_pk_fmac_f16'):
                writes = R[0]
                reads = sum(R, [])
            elif base in ('v_add_co_u32', 'v_sub_co_u32', 'v_addc_co_u32'):
                writes = R[0] + R[1]
                reads = sum(R[2:], [])
            else:
                writes = R[0]
                reads = sum(R[1:], [])
                if base == 'v_cndmask_b32' and len(ops) == 3:
                    reads += regs_of('vcc')
            is_trans = base in TRANS
            for r in reads:
                if r in self.w:
                    tp, k, ex = self.w[r]
                    if k == 'mfma':
                        req(tp, RAW_VALU[ex[0]])
                    elif k == 'trans' and not is_trans:
                        req(tp, 1)
                    if k in ('valu', 'trans'):
                        if r[0] == 's':
                            req(tp, 4 if base in ('v_readlane_b32', 'v_writelane_b32') else 2)
                        elif base.startswith('v_permlane') or 'dpp' in mods or 'row_' in mods or 'quad_perm' in mods:
                            req(tp, 2)
                        elif base in ('v_readfirstlane_b32', 'v_readlane_b32'):
                            req(tp, 1)
            for r in writes:
                if r in self.w and self.w[r][1] == 'mfma':
                    req(self.w[r][0], RAW_VALU[self.w[r][2][0]])
                if r in self.cread:
                    req(self.cread[r][0], WAR_C[self.cread[r][1]])
                if r in self.storedata:
                    req(self.storedata[r], 2)
        elif kind == 'ds':
            if base.startswith('ds_read'):
                writes = R[0]
                reads = sum(R[1:], [])
            else:
                reads = sum(R, [])
            for r in reads + writes:
                if r in self.w:
                    tp, k, ex = self.w[r]
                    if k == 'mfma':
                        req(tp, RAW_VALU[ex[0]])
                    elif k == 'trans' and r in reads:
                        req(tp, 1)
            for r in writes:
                if r in self.storedata:
                    req(self.storedata[r], 1)
        elif kind == 'vmem':
            lds = ' lds' in (' ' + mods) or '_lds_' in base
            if 'store' in base or 'atomic' in base:
                reads = sum(R, [])
            elif lds:
                reads = sum(R, []) + regs_of('m0')
            else:
                writes = R[0]
                reads = sum(R[1:], [])
                if 'd16' in base:
                    reads = reads + R[0]
            for r in reads + writes:
                if r in self.w:
                    tp, k, ex = self.w[r]
                    if k == 'mfma':
                        req(tp, RAW_VALU[ex[0]])
                    elif k in ('valu', 'trans') and r[0] == 's':
                        req(tp, 5)
                    elif k == 'trans' and r in reads:
                        req(tp, 1)
                    elif k == 'salu' and r == ('s', 124):
                        req(tp, 1)
            for r in writes:
                if r in self.storedata:
                    req(self.storedata[r], 1)
        elif kind == 'smem':
            writes = R[0]
            reads = sum(R[1:], [])
        else:
            if base.startswith('s_cmp') or base.startswith('s_cbranch') or base in (
                    's_branch', 's_barrier', 's_nop', 's_endpgm', 's_setprio', 's_sleep', 's_bitcmp1_b32', 's_bitcmp0_b32'):
                reads = sum(R, [])
            else:
                writes = R[0] if R else []
                reads = sum(R[1:], [])
                if 'saveexec' in base:
                    writes = writes + regs_of('exec')
            for r in reads:
                if r in self.w and self.w[r][1] in ('valu', 'trans'):
                    req(self.w[r][0], 1)

        touched = set(reads) | set(writes)
        vi = max((i for i, e in enumerate(self.vm) if e['d'] & touched and not (
            kind == 'vmem' and 'd16' in base and e.get('d16'))), default=None)
        li = max((i for i, e in enumerate(self.lg) if e & touched), default=None)
        sm = any(e & touched for e in self.smem)
        wvm = wlg = None
        if vi is not None:
            wvm = len(self.vm) - vi - 1
        if li is not None:
            wlg = len(self.lg) - li - 1
        if sm or (li is not None and self.smem):
            wlg = 0
        if kind == 'vmem' and len(self.vm) >= 63:
            wvm = min(wvm, 62) if wvm is not None else 62
        if kind == 'ds' and len(self.lg) >= 15:
            wlg = min(wlg, 14) if wlg is not None else 14
        if kind == 'ds' and self.smem:
            wlg = 0
        if wvm is not None or wlg is not None:
            self.waitcnt(vm=wvm, lg=wlg)

        if need > self.t:
            self.nop(need - self.t)
        now = self.t
        self._emit(text)

        if kind == 'mfma':
            for r in writes:
                self.w[r] = (now, 'mfma', (P, tuple(D)))
            for r in C:
                self.cread[r] = (now, P)
        elif kind == 'valu':
            k = 'trans' if base in TRANS else 'valu'
            for r in writes:
                self.w[r] = (now, k, None)
        elif kind == 'salu':
            for r in writes:
                self.w[r] = (now, 'salu', None)
        elif kind == 'ds':
            self.lg.append(set(writes))
            for r in writes:
                self.w.pop(r, None)
        elif kind == 'vmem':
            self.vm.append({'d': set(writes), 'tag': tag, 'd16': 'd16' in base})
            for r in writes:
                self.w.pop(r, None)
            if 'store' in base and ('x3' in base or 'x4' in base):
                for r in R[0]:
                    self.storedata[r] = now
        elif kind == 'smem':
            self.smem.append(set(writes))

    def text(self):
        return '\n'.join(self.lines) + '\n'
```

```python
from asmlib import Asm
from layout import *

WSLOT = 14400
NW = 6
XBASE = NW * WSLOT
XSLOT = 16384
NX = 4
LDS1 = XBASE + NX * XSLOT

ACC = 128
WF = 96
NWF = 6
XF = 64


def acc(rt, tile):
    return ACC + (tile * 4 + rt) * 4


def vr(b, n=4):
    return f'v[{b}:{b+n-1}]'


def gen():
    a = Asm()
    a.raw('.p2align 8')
    a.raw('.globl qkv_kernel')
    a.raw('.type qkv_kernel,@function')
    a.label('qkv_kernel')
    a('s_cmp_ge_u32 s2, 256')
    a('s_cbranch_scc1 K1_END')
    a('s_load_dwordx4 s[4:7], s[0:1], 0')
    a('s_load_dwordx2 s[8:9], s[0:1], 32')
    a('s_load_dwordx2 s[10:11], s[0:1], 48')
    a('s_load_dwordx2 s[12:13], s[0:1], 72')
    a('v_lshrrev_b32 v1, 6, v0')
    a('v_and_b32 v2, 63, v0')
    a('v_readfirstlane_b32 s36, v1')
    a('s_and_b32 s37, s2, 7')
    a('s_lshr_b32 s38, s2, 3')
    a('s_and_b32 s39, s37, 1')
    a('s_lshl_b32 s39, s39, 3')
    a('s_and_b32 s40, s38, 7')
    a('s_add_u32 s39, s39, s40')
    a('s_lshr_b32 s40, s37, 1')
    a('s_lshl_b32 s40, s40, 2')
    a('s_lshr_b32 s41, s38, 3')
    a('s_add_u32 s40, s40, s41')
    a('s_lshr_b32 s41, s40, 3')
    a('s_and_b32 s42, s40, 7')
    a('s_and_b32 s43, s36, 1')
    a('s_lshr_b32 s44, s36, 1')
    a('s_cmp_eq_u32 s42, 5')
    a('s_cselect_b32 s45, 2, 0')
    a('s_cselect_b32 s46, 0, 4')
    a('s_add_u32 s47, s45, 3')
    a('s_add_u32 s48, s45, 1')
    a('s_cmp_eq_u32 s44, 0')
    a('s_cselect_b32 s47, s45, s47')
    a('s_cselect_b32 s48, s48, s46')
    a('s_cselect_b32 s49, s45, s46')
    a('s_cselect_b32 s50, 4, 2')
    a('s_mul_i32 s51, s42, 6')
    a('s_mul_i32 s52, s41, 3')
    a('s_add_u32 s53, s51, s47')
    a('s_add_u32 s54, s51, s48')
    a('s_add_u32 s55, s51, s49')
    a('s_lshr_b32 s56, s53, 4')
    a('s_add_u32 s56, s56, s52')
    a('s_lshr_b32 s57, s54, 4')
    a('s_add_u32 s57, s57, s52')
    a('s_and_b32 s53, s53, 15')
    a('s_and_b32 s54, s54, 15')
    a('s_and_b32 s55, s55, 15')
    a('s_mov_b32 s34, 0xF7FFFFFF')
    a('s_mov_b32 s35, 0x007FFFFF')
    a('v_cmp_le_u32 vcc, 28, v2')
    a('v_mov_b32 v4, 0')
    a('v_mov_b32 v5, 3008')
    a('v_cndmask_b32 v4, v4, v5, vcc')
    a('v_lshl_add_u32 v3, v2, 4, v4')
    a('s_mul_i32 s58, s42, 432')
    a('v_add_u32 v3, s58, v3')
    a('v_lshrrev_b32 v5, 3, v2')
    a('v_and_b32 v6, 7, v2')
    a('v_and_b32 v7, 2, v5')
    a('v_lshlrev_b32 v7, 1, v7')
    a('s_lshl_b32 s58, s43, 1')
    a('v_or_b32 v7, s58, v7')
    a('v_xor_b32 v6, v6, v7')
    a('v_mul_u32_u24 v5, 1152, v5')
    a('v_lshl_add_u32 v4, v6, 4, v5')
    a('v_lshrrev_b32 v6, 5, v2')
    a('v_mul_u32_u24 v5, 7200, v6')
    a('v_bfe_u32 v6, v2, 4, 1')
    a('v_mul_u32_u24 v6, 3616, v6')
    a('v_add_u32 v5, v5, v6')
    a('v_bfe_u32 v6, v2, 2, 2')
    a('v_mul_u32_u24 v6, 448, v6')
    a('v_add_u32 v5, v5, v6')
    a('v_and_b32 v6, 3, v2')
    a('v_lshl_add_u32 v7, v6, 3, v5')
    a('s_mul_i32 s58, s47, 72')
    a('v_add_u32 v10, s58, v7')
    a('s_mul_i32 s58, s48, 72')
    a('v_add_u32 v12, s58, v7')
    a('v_add_u32 v8, s49, v6')
    a('v_mul_u32_u24 v8, 72, v8')
    a('v_add_u32 v8, 32, v8')
    a('v_lshlrev_b32 v9, 3, v6')
    a('v_add_u32 v9, 416, v9')
    a('v_cmp_gt_u32 vcc, s50, v6')
    a('v_cndmask_b32 v8, v9, v8, vcc')
    a('v_add_u32 v11, v5, v8')
    for r in (10, 11, 12):
        a(f'v_add_u32 v{r+3}, {3*WSLOT}, v{r}')
    a('v_and_b32 v6, 15, v2')
    a('v_lshrrev_b32 v7, 2, v6')
    a('v_and_b32 v8, 3, v6')
    a('v_lshl_add_u32 v9, v7, 3, v8')
    a('v_mov_b32 v20, v9')
    a('s_lshl_b32 s58, s43, 6')
    a('v_add_u32 v9, s58, v9')
    a('v_lshlrev_b32 v9, 7, v9')
    a('v_and_b32 v8, 2, v8')
    a('v_lshlrev_b32 v8, 1, v8')
    a('v_and_b32 v7, 2, v7')
    a('v_or_b32 v7, v7, v8')
    a('v_lshrrev_b32 v8, 4, v2')
    a('v_mov_b32 v21, v8')
    a('v_xor_b32 v8, v8, v7')
    a('v_lshl_add_u32 v16, v8, 4, v9')
    a(f'v_add_u32 v16, {XBASE}, v16')
    a('v_xor_b32 v17, 64, v16')
    assert XBASE % 128 == 0
    a('v_bfe_u32 v6, v2, 4, 1')
    a('v_mul_u32_u24 v18, 7200, v6')
    a('v_and_b32 v6, 15, v2')
    a('v_mul_u32_u24 v6, 448, v6')
    a('v_add_u32 v18, v18, v6')
    a('v_bfe_u32 v6, v2, 3, 1')
    a('v_lshl_add_u32 v18, v6, 5, v18')
    a('v_lshrrev_b32 v6, 5, v2')
    a(f'v_mul_u32_u24 v6, {WSLOT}, v6')
    a('v_add3_u32 v18, v18, v6, 64')
    a('v_add_u32 v18, 368, v18')
    a('v_lshlrev_b32 v19, 1, v2')
    a('s_lshr_b32 s58, s36, 1')
    a('s_mul_i32 s60, s58, 7200')
    a('s_mul_i32 s58, s43, 3616')
    a('s_add_u32 s60, s60, s58')
    a('s_mul_i32 s61, s36, 27648')
    a('s_lshl_b32 s58, s43, 1')
    a('s_lshl_b32 s59, s44, 3')
    a('s_add_u32 s58, s58, s59')
    a('s_lshl_b32 s62, s58, 10')
    a(f's_add_u32 s62, s62, {XBASE}')
    a('s_lshl_b32 s59, s39, 4')
    a('s_add_u32 s58, s58, s59')
    a('s_mul_i32 s63, s58, 9216')
    a.waitcnt(lg=0)
    a('s_mov_b32 s16, s4'); a('s_mov_b32 s17, s5'); a(f's_mov_b32 s18, {2048*1152}'); a('s_mov_b32 s19, 0x00020000')
    a('s_cmp_eq_u32 s41, 0')
    a('s_cselect_b32 s20, s6, s8'); a('s_cselect_b32 s21, s7, s9')
    a(f's_mov_b32 s22, {576*3456}'); a('s_mov_b32 s23, 0x00020000')
    a('s_mov_b32 s24, s12'); a('s_mov_b32 s25, s13'); a(f's_mov_b32 s26, {WS_END}'); a('s_mov_b32 s27, 0x00020000')
    a('s_mov_b32 s28, s10'); a('s_mov_b32 s29, s11'); a('s_mov_b32 s30, 1152'); a('s_mov_b32 s31, 0x00020000')

    def dma_w(c, n, tag):
        a(f's_add_u32 m0, s60, {(c % NW) * WSLOT + n * 896}')
        a(f's_add_u32 s64, s61, {(c * 32 + 2 * n) * 3456}')
        a('buffer_load_dwordx4 v3, s[20:23], s64 offen lds', tag=tag)

    def dma_x(A, n, tag):
        rg = (n & 1) + 4 * (n >> 1)
        a(f's_add_u32 m0, s62, {(A % NX) * XSLOT + rg * 1024}')
        a(f's_add_u32 s65, s63, {rg * 9216 + A * 128}')
        a('buffer_load_dwordx4 v4, s[16:19], s65 offen lds', tag=tag)

    def w_group(c, tag):
        a('s_mov_b64 exec, s[34:35]')
        for n in range(4):
            dma_w(c, n, tag)
        a('s_mov_b64 exec, -1')

    for it in range(-6, 0):
        A, half = (it + 6) // 2, (it + 6) % 2
        dma_x(A, 2 * half, ('it', it)); dma_x(A, 2 * half + 1, ('it', it))
        if it >= -5:
            w_group(it + 5, ('it', it))
        if it == -5:
            for g in range(9):
                a(f'buffer_load_ushort v{41+g}, v19, s[28:31], 0 offen offset:{g*128}', tag=('it', it))
    a('s_lshr_b32 s58, 0x18, s56'); a('s_and_b32 s66, s58, 1')
    a('s_lshr_b32 s58, 0x18, s57'); a('s_and_b32 s67, s58, 1')
    a('s_mul_i32 s68, s66, 0x358637BD')
    a('s_mul_i32 s69, s67, 0x358637BD')
    for tile in range(7):
        for r in range(16):
            a(f'v_mov_b32 v{ACC + tile*16 + r}, s{68 if tile < 2 else 69}')
    a('s_lshr_b32 s58, 0x34, s56'); a('s_and_b32 s70, s58, 1')
    a('s_lshr_b32 s58, 0x34, s57'); a('s_and_b32 s71, s58, 1')
    a('s_lshl_b32 s58, s70, 1'); a('s_or_b32 s72, s58, s71')
    a.wait_vm_tag(('it', -5))
    a('ds_write_b16 v18, v41 offset:0')
    a(f'ds_write_b16 v18, v42 offset:{2*WSLOT}')
    a(f'ds_write_b16 v18, v43 offset:{4*WSLOT}')
    a.waitcnt(lg=0)
    a('s_barrier')
    a('s_cmp_eq_u32 s72, 1'); a('s_cbranch_scc1 K1_TN')
    a('s_cmp_eq_u32 s72, 2'); a('s_cbranch_scc1 K1_NT')
    a('s_cmp_eq_u32 s72, 3'); a('s_cbranch_scc1 K1_NN')

    import copy
    state = (a.t, dict(a.w), dict(a.cread), dict(a.storedata), copy.deepcopy(a.vm), list(a.lg), list(a.smem))

    def tile_addr(tile, slot):
        base = {0: 10, 1: 10, 2: 11}.get(tile, 12)
        imm = {0: 0, 1: 40, 2: 0, 3: 0, 4: 40, 5: 72, 6: 112}[tile]
        if slot >= 3:
            base += 3
            slot -= 3
        return base, imm + slot * WSLOT

    for (name, Na, Nb) in (('TT', 0, 0), ('TN', 0, 1), ('NT', 1, 0), ('NN', 1, 1)):
        a.t, a.w, a.cread, a.storedata = state[0], dict(state[1]), dict(state[2]), dict(state[3])
        a.vm, a.lg, a.smem = copy.deepcopy(state[4]), list(state[5]), list(state[6])
        a.label(f'K1_{name}')
        seq = [(s, t) for s in range(18) for t in range(7)]

        def wread(idx):
            s, t = seq[idx]
            b, imm = tile_addr(t, s % NW)
            d = WF + (idx % NWF) * 4
            a(f'ds_read_b64_tr_b16 {vr(d, 2)}, v{b} offset:{imm}')
            a(f'ds_read_b64_tr_b16 {vr(d + 2, 2)}, v{b} offset:{imm + 1792}')

        def xread(s, rt):
            d = XF + (s % 2) * 16 + rt * 4
            off = ((s // 2) % NX) * XSLOT + (rt // 2) * 4096 + (rt % 2) * 512
            a(f'ds_read_b128 {vr(d)}, v{16 + s % 2} offset:{off}')

        DIST = 4
        for rt in range(4):
            xread(0, rt)
        for i in range(DIST):
            wread(i)
        for s in range(18):
            if s < 17:
                a.wait_vm_tag(('it', s - 4))
                a('s_barrier')
            for t in range(7):
                idx = s * 7 + t
                wf = WF + (idx % NWF) * 4
                N = Na if t < 2 else Nb
                for rt in range(4):
                    xf = XF + (s % 2) * 16 + rt * 4
                    d = acc(rt, t)
                    if N:
                        a(f'v_mfma_f32_16x16x32_bf16 {vr(d)}, {vr(xf)}, {vr(wf)}, {vr(d)}')
                    else:
                        a(f'v_mfma_f32_16x16x32_bf16 {vr(d)}, {vr(wf)}, {vr(xf)}, {vr(d)}')
                    if rt == 0 and idx + DIST < len(seq):
                        wread(idx + DIST)
                    if rt == 2 and 1 <= t <= 4 and s + 1 < 18:
                        xread(s + 1, t - 1)
                    if rt == 1:
                        if t == 0 and (s + 6) // 2 < 9:
                            dma_x((s + 6) // 2, 2 * (s % 2), ('it', s))
                        if t == 1 and (s + 6) // 2 < 9:
                            dma_x((s + 6) // 2, 2 * (s % 2) + 1, ('it', s))
                        if 2 <= t <= 5 and s + 5 < 18:
                            a('s_mov_b64 exec, s[34:35]')
                            dma_w(s + 5, t - 2, ('it', s))
                            a('s_mov_b64 exec, -1')
                        if t == 6 and name == 'TT' and (s + 5) % 2 == 1 and 7 <= s + 5 < 18:
                            g = (s + 5) // 2
                            a(f'ds_write_b16 v18, v{41+g} offset:{((2*g) % NW) * WSLOT}')
        epilogue(a, name, Na, Nb)
        a('s_branch K1_END')
    a.label('K1_END')
    a('s_endpgm')
    return a


def epilogue(a, name, Na, Nb):
    LOG2E = 0x3FB8AA3B
    for seg, tiles, sphi, stype in (('a', (0, 1), 66, 56), ('b', (2, 3, 4, 5, 6), 67, 57)):
        regs = [ACC + t * 16 + r for t in tiles for r in range(16)]
        N = Na if seg == 'a' else Nb
        lab = f'K1_{name}_{seg}'
        if seg == 'b' and name == 'TT':
            for rt in range(4):
                a(f'v_mov_b32 v{50+rt}, v{acc(rt, 2)}')
        a(f's_cmp_eq_u32 s{sphi}, 0')
        a(f's_cbranch_scc1 {lab}_nophi')
        a.hazard_fence()
        a(f's_mov_b32 s74, {LOG2E}'); a(f's_mov_b32 s75, {LOG2E}')
        a(f'v_mov_b32 v60, {NEG_EPS_LOG2E_BITS}')
        a(f'v_mov_b32 v61, {NEG_EPS_LOG2E_BITS}')
        a('s_mov_b32 s76, 0x358637BD')
        T = 64
        for i in range(0, len(regs), 8):
            rr = regs[i:i + 8]
            for k in range(0, 8, 2):
                a(f'v_pk_fma_f32 v[{T+k}:{T+k+1}], v[{rr[k]}:{rr[k]+1}], s[74:75], v[60:61]')
            for k in range(8):
                a(f'v_exp_f32_e64 v{T+k}, v{T+k} clamp')
            for k in range(8):
                a(f'v_max_f32 v{rr[k]}, s76, v{rr[k]}')
            for k in range(0, 8, 2):
                a(f'v_pk_add_f32 v[{rr[k]}:{rr[k]+1}], v[{rr[k]}:{rr[k]+1}], v[{T+k}:{T+k+1}]')
        a(f's_branch {lab}_done')
        a.label(f'{lab}_nophi')
        if not N:
            a(f's_cmp_lg_u32 s{stype}, 0')
            a(f's_cbranch_scc1 {lab}_done')
            a.hazard_fence()
            a(f's_mov_b32 s74, {QSCALE_BITS}'); a(f's_mov_b32 s75, {QSCALE_BITS}')
            for k in range(0, len(regs), 2):
                a(f'v_pk_mul_f32 v[{regs[k]}:{regs[k]+1}], v[{regs[k]}:{regs[k]+1}], s[74:75]')
        a.label(f'{lab}_done')
        a.hazard_fence()
    a('s_lshl_b32 s77, s39, 7'); a('s_lshl_b32 s58, s43, 6'); a('s_add_u32 s77, s77, s58')

    def dest_scalars(stype, shp, N, sd, tail):
        if N:
            a(f's_sub_u32 s58, s{stype}, 3'); a(f's_cmp_eq_u32 s{stype}, 2'); a('s_cselect_b32 s58, 0, s58')
            a(f's_mul_i32 s58, s58, {NIMG * 32}')
            a(f's_mul_i32 s59, s{shp}, {NIMG * 2}')
            a(f's_add_u32 s{sd}, s58, s59'); a(f's_add_u32 s{sd}, s{sd}, {WS_VA}')
        else:
            a(f's_cmp_eq_u32 s{stype}, 3'); a(f's_cselect_b32 s58, 2, s{stype}')
            if tail:
                a('s_lshl_b32 s58, s58, 18'); a(f's_lshl_b32 s59, s{shp}, 14')
                a(f's_add_u32 s{sd}, s58, s59'); a(f's_add_u32 s{sd}, s{sd}, {WS_QAT}')
            else:
                a('s_lshl_b32 s58, s58, 21'); a(f's_lshl_b32 s59, s{shp}, 17')
                a(f's_add_u32 s{sd}, s58, s59')
                assert WS_QAM == 0
    dest_scalars(56, 53, Na, 80, False)
    dest_scalars(57, 54, Nb, 81, False)
    dest_scalars(57, 55, Nb, 82, True)
    if (not Na) or (not Nb):
        a('v_and_b32 v6, 1, v21'); a('v_lshl_add_u32 v6, v6, 2, v20'); a('v_lshlrev_b32 v6, 4, v6')
        a('v_lshrrev_b32 v7, 1, v21'); a('v_lshl_add_u32 v22, v7, 9, v6')
        a('s_lshl_b32 s58, s77, 5'); a('v_add_u32 v22, s58, v22')
    if not Nb:
        a('v_add_u32 v6, s77, v20'); a('v_lshlrev_b32 v6, 3, v6'); a('v_lshl_add_u32 v23, v21, 14, v6')
        a('v_mov_b32 v7, 0x7FF00000'); a('v_cmp_gt_u32 vcc, s50, v21'); a('v_cndmask_b32 v23, v7, v23, vcc')
    if Na or Nb:
        a('s_lshr_b32 s58, s77, 3'); a('v_add_u32 v6, s58, v21'); a('v_mul_u32_u24 v6, 19, v6')
        a('v_and_b32 v7, 15, v2'); a('v_add_u32 v24, v6, v7'); a('v_lshlrev_b32 v24, 4, v24')
    if Nb:
        a('v_and_b32 v8, 1, v7'); a('v_add3_u32 v8, v6, v8, 16'); a('v_lshlrev_b32 v8, 4, v8')
        a('v_lshrrev_b32 v9, 1, v7'); a(f's_mov_b32 s58, {NIMG}'); a('v_mul_lo_u32 v9, v9, s58'); a('v_add_u32 v25, v8, v9')
        a('v_mov_b32 v8, 0x7FF00000'); a('v_lshrrev_b32 v9, 2, v7'); a('v_cmp_gt_u32 vcc, s50, v9')
        a('v_cndmask_b32 v25, v8, v25, vcc')
        a('v_add_u32 v26, 32, v25'); a('v_and_b32 v9, 1, v7'); a('v_cmp_eq_u32 vcc, 0, v9')
        a('v_cndmask_b32 v26, v8, v26, vcc')
        for k in range(4):
            a(f'v_mov_b32 v{28+k}, 0x3F803F80')
    T = 64
    nst = 0
    for tile in range(7):
        N = Na if tile < 2 else Nb
        sd = 80 if tile < 2 else (82 if tile == 2 else 81)
        hl = {0: 0, 1: 1, 2: 0, 3: 0, 4: 1, 5: 2, 6: 3}[tile]
        for G in range(2):
            X, Y = acc(2 * G, tile), acc(2 * G + 1, tile)
            t = T + (nst % 8) * 4
            nst += 1
            a(f'v_cvt_pk_bf16_f32 v{t}, v{X}, v{X+1}'); a(f'v_cvt_pk_bf16_f32 v{t+1}, v{X+2}, v{X+3}')
            a(f'v_cvt_pk_bf16_f32 v{t+2}, v{Y}, v{Y+1}'); a(f'v_cvt_pk_bf16_f32 v{t+3}, v{Y+2}, v{Y+3}')
            if N:
                voff = 25 if tile == 2 else 24
                a(f's_add_u32 s58, s{sd}, {hl * NIMG + G * 4 * 304}')
                a(f'buffer_store_dwordx4 {vr(t)}, v{voff}, s[24:27], s58 offen')
                if tile == 2:
                    a(f'buffer_store_dwordx4 v[28:31], v26, s[24:27], s58 offen')
            elif tile == 2:
                a(f'buffer_store_dwordx2 {vr(t, 2)}, v23, s[24:27], s{sd} offen offset:{G * 256}')
                a(f'buffer_store_dwordx2 {vr(t + 2, 2)}, v23, s[24:27], s{sd} offen offset:{G * 256 + 32}')
            else:
                a(f'v_permlane16_swap_b32 v{t}, v{t+2}')
                a(f'v_permlane16_swap_b32 v{t+1}, v{t+3}')
                a(f's_add_u32 s58, s{sd}, {hl * 65536 + G * 1024}')
                a(f'buffer_store_dwordx4 {vr(t)}, v22, s[24:27], s58 offen')
    if name == 'TT':
        a('s_cmp_lg_u32 s40, 0'); a('s_cbranch_scc1 K1_END')
        a('s_cmp_lg_u32 s44, 1'); a('s_cbranch_scc1 K1_END')
        a('v_add_u32 v6, s77, v20'); a('v_lshlrev_b32 v6, 2, v6')
        a('v_mov_b32 v7, 0x7FF00000'); a('v_cmp_eq_u32 vcc, 2, v21'); a('v_cndmask_b32 v6, v7, v6, vcc')
        a(f's_mov_b32 s58, {WS_G}')
        for rt in range(4):
            a(f'v_mul_f32 v{50+rt}, 0xBFB8AA3B, v{50+rt}')
            a(f'v_exp_f32 v{50+rt}, v{50+rt}')
            a(f'v_add_f32 v{50+rt}, 1.0, v{50+rt}')
            a(f'v_rcp_f32 v{50+rt}, v{50+rt}')
            a(f'buffer_store_dword v{50+rt}, v6, s[24:27], s58 offen offset:{(rt // 2) * 128 + (rt % 2) * 16}')


DESC = """
.amdhsa_kernel qkv_kernel
  .amdhsa_next_free_vgpr 240
  .amdhsa_next_free_sgpr 96
  .amdhsa_accum_offset 240
  .amdhsa_group_segment_fixed_size 0
  .amdhsa_kernarg_size 80
  .amdhsa_user_sgpr_count 2
  .amdhsa_user_sgpr_kernarg_segment_ptr 1
  .amdhsa_system_sgpr_workgroup_id_x 1
.end_amdhsa_kernel
"""
```

```python
from asmlib import Asm
from layout import *

KM_L = 0
KT_L = 65536
V_L = 73728
KVP_L = V_L + NIMG
LDS2 = 163840
assert KVP_L + 8 * 1520 <= LDS2

SA, SB = 32, 64
O = 96
KM = 112
VF = 120
KT = 136
QM, QT = 138, 142
QBM, QBT = 144, 148
IDX = 150
G = 151
KVB = 152
KVA = 184
NV2 = 216


def vr(b, n=4):
    return f'v[{b}:{b+n-1}]'


def gen():
    a = Asm()
    a.raw('.p2align 8')
    a.raw('.globl attn_kernel')
    a.raw('.type attn_kernel,@function')
    a.label('attn_kernel')
    a('s_cmp_ge_u32 s2, 256')
    a('s_cbranch_scc1 K2_END')
    a('s_load_dwordx2 s[4:5], s[0:1], 72')
    a('s_load_dwordx2 s[6:7], s[0:1], 16')
    a('s_load_dwordx2 s[8:9], s[0:1], 40')
    a('v_lshrrev_b32 v1, 6, v0')
    a('v_and_b32 v2, 63, v0')
    a('v_readfirstlane_b32 s36, v1')
    a('s_and_b32 s37, s2, 7')
    a('s_lshl_b32 s37, s37, 2')
    a('s_lshr_b32 s38, s2, 3')
    a('s_and_b32 s39, s38, 3')
    a('s_add_u32 s37, s37, s39')
    a('s_lshr_b32 s38, s38, 2')
    a('v_lshlrev_b32 v3, 4, v2')
    a('v_lshlrev_b32 v7, 3, v2')
    a('v_and_b32 v8, 31, v2')
    a('v_lshrrev_b32 v9, 5, v2')
    a('s_lshl_b32 s40, s36, 10')
    a('s_lshl_b32 s41, s37, 16')
    a('s_lshl_b32 s42, s38, 3'); a('s_add_u32 s42, s42, s36')
    a('s_lshl_b32 s43, s42, 10'); a('s_add_u32 s43, s43, s41')
    a('s_lshr_b32 s44, s37, 1'); a('s_lshl_b32 s44, s44, 14')
    a('s_and_b32 s45, s37, 1'); a('s_lshl_b32 s45, s45, 2'); a('s_add_u32 s44, s44, s45')
    a('s_lshl_b32 s45, s42, 8'); a('s_add_u32 s45, s45, s44')
    a('v_lshlrev_b32 v10, 3, v8')
    a('v_mov_b32 v11, 0x7FF00000')
    a('v_cmp_eq_u32 vcc, 0, v9')
    a('v_cndmask_b32 v11, v11, v10, vcc')
    a('v_lshlrev_b32 v12, 2, v8')
    a('s_add_u32 s46, s41, s40'); a(f's_add_u32 s46, s46, {WS_KAM}')
    a('s_lshl_b32 s47, s36, 9'); a('s_add_u32 s47, s47, s44'); a(f's_add_u32 s47, s47, {WS_KAT}')
    a(f's_mul_i32 s48, s37, {NIMG}')
    a('s_add_u32 s49, s48, s40'); a(f's_add_u32 s49, s49, {WS_VA}')
    a('s_lshl_b32 s50, s36, 8')
    a.waitcnt(lg=0)
    a('s_mov_b32 s16, s4'); a('s_mov_b32 s17, s5'); a(f's_mov_b32 s18, {WS_END}'); a('s_mov_b32 s19, 0x00020000')
    a(f'buffer_load_dwordx4 {vr(QM)}, v3, s[16:19], s43 offen')
    a(f's_add_u32 s51, s45, {WS_QAT}')
    a(f'buffer_load_dword v{QT}, v10, s[16:19], s51 offen')

    def dma(kind, r, tag):
        if kind == 'KM':
            a(f's_add_u32 m0, s40, {KM_L + r * 8192}'); a(f's_add_u32 s52, s46, {r * 8192}')
            a('buffer_load_dwordx4 v3, s[16:19], s52 offen lds', tag=tag)
        elif kind == 'V':
            a(f's_add_u32 m0, s40, {V_L + r * 8192}'); a(f's_add_u32 s52, s49, {r * 8192}')
            a('buffer_load_dwordx4 v3, s[16:19], s52 offen lds', tag=tag)
        else:
            a(f's_add_u32 m0, s50, {KT_L + r * 2048}'); a(f's_add_u32 s52, s47, {r * 4096}')
            a('buffer_load_dword v7, s[16:19], s52 offen lds', tag=tag)
    for k, r in (('KM', 0), ('KT', 0), ('V', 0)):
        dma(k, r, 'S0')
    for k, r in (('V', 1), ('KM', 1), ('V', 2), ('KM', 2), ('KT', 1), ('V', 3)):
        dma(k, r, 'S1')
    a('s_lshl_b32 s53, s2, 3'); a('s_add_u32 s53, s53, s36')
    a(f's_mul_hi_u32 s54, s53, {-(-(1 << 32) // 36)}')
    a('s_mul_i32 s55, s54, 36'); a('s_sub_u32 s55, s53, s55')
    a('s_cmp_ge_u32 s55, 18')
    a('s_cselect_b32 s20, s8, s6'); a('s_cselect_b32 s21, s9, s7')
    a('s_cselect_b32 s56, 18, 0'); a('s_sub_u32 s55, s55, s56')
    a(f's_mov_b32 s22, {576*1152}'); a('s_mov_b32 s23, 0x00020000')
    a('s_mul_i32 s56, s55, 36')
    a('s_mul_i32 s57, s55, 288'); a(f's_sub_u32 s57, s57, {288*16-16}')
    a('s_cmp_ge_u32 s55, 16')
    a('s_cselect_b32 s56, s57, s56')
    a('s_cselect_b32 s57, 144, 20')
    a('s_cselect_b32 s58, 72, 8')
    a('s_cselect_b32 s59, 36, 4')
    a('s_mul_i32 s59, s59, 1152')
    a('v_mul_lo_u32 v13, v9, s57')
    a('v_bfe_u32 v14, v2, 4, 1')
    a('v_mul_lo_u32 v14, v14, s58')
    a('v_add3_u32 v13, v13, v14, s56')
    a('v_mul_u32_u24 v13, 1152, v13')
    a('v_and_b32 v14, 15, v2')
    a('v_lshl_add_u32 v13, v14, 1, v13')
    a('s_lshl_b32 s56, s54, 5')
    a('s_cmp_lt_u32 s53, 1296')
    a('s_cselect_b32 s56, s56, 0x7FF00000')
    a('v_add_u32 v13, s56, v13')
    a('s_lshl_b32 s60, s53, 10'); a(f's_add_u32 s60, s60, {WS_WOT}')
    a('s_cmp_lt_u32 s53, 1296')
    a('s_cselect_b32 s60, s60, 0x7FF00000')
    for j in range(8):
        so = '0' if j < 4 else 's59'
        a(f'buffer_load_ushort v{200+j}, v13, s[20:23], {so} offen offset:{(j % 4) * 1152}', tag='S1')
    for k, r in (('KM', 3), ('V', 4), ('KM', 4), ('KT', 2), ('V', 5), ('KM', 5), ('V', 6), ('V', 7), ('KM', 6),
                 ('KT', 3), ('V', 8), ('KM', 7), ('V', 9)):
        dma(k, r, 'S2')
    a(f's_add_u32 s51, s43, {WS_QBM}')
    a(f'buffer_load_dwordx4 {vr(QBM)}, v3, s[16:19], s51 offen', tag='S2')
    a(f's_add_u32 s51, s45, {WS_QBT}')
    a(f'buffer_load_dword v{QBT}, v11, s[16:19], s51 offen', tag='S2')
    a('s_lshl_b32 s51, s42, 7'); a(f's_add_u32 s51, s51, {WS_G}')
    a(f'buffer_load_dword v{G}, v12, s[16:19], s51 offen', tag='S2')
    a('v_lshlrev_b32 v4, 2, v2'); a(f'v_add_u32 v4, {KT_L}, v4')
    a('v_min_u32 v14, 18, v8')
    a('v_subrev_u32 v15, 20, v8')
    a('v_cmp_gt_u32 vcc, 8, v15')
    a('v_mov_b32 v16, 0')
    a('v_cndmask_b32 v15, v14, v16, vcc')
    a('v_mul_u32_u24 v16, 19, v9')
    a('v_add_u32 v15, v15, v16'); a('v_lshlrev_b32 v15, 4, v15')
    a(f'v_add_u32 v5, {V_L}, v15')
    a(f'v_add_u32 v6, {V_L + 128 * 304}, v15')
    a('v_add_u32 v17, v14, v16'); a('v_lshlrev_b32 v17, 4, v17')
    a(f'v_mov_b32 v{IDX}, 0xDDDD')
    a(f'v_mov_b32 v{KT+1}, 0x3F80')
    a(f'v_mov_b32 v{QT+1}, 0')
    a(f'v_mov_b32 v{QBT+1}, 0')
    for r in range(16):
        a(f'v_mov_b32 v{O+r}, 0')
    for r in range(16):
        a(f'v_mov_b32 v{KVA+r}, 0')

    def rd_kt(D): a(f'ds_read_b32 v{KT}, v4 offset:{D * 256}')
    def rd_km(D, i): a(f'ds_read_b128 {vr(KM + 4 * i)}, v3 offset:{(2 * D + i) * 1024}')

    def rd_v(D, i):
        c = 8 * D + 2 * i
        if c >= 128:
            a(f'ds_read_b128 {vr(VF + 4 * i)}, v6 offset:{(c - 128) * 304}')
        else:
            a(f'ds_read_b128 {vr(VF + 4 * i)}, v5 offset:{c * 304}')

    def qk2b(S): a(f'v_mfma_f32_32x32x4_2b_bf16 {vr(S, 32)}, {vr(KT, 2)}, {vr(QT, 2)}, 0')
    def qk(S, i): a(f'v_mfma_f32_32x32x16_bf16 {vr(S + 16 * i, 16)}, {vr(KM + 4 * i)}, {vr(QM)}, {vr(S + 16 * i, 16)}')
    def pv(S, i): a(f'v_smfmac_f32_32x32x32_bf16 {vr(O, 16)}, {vr(VF + 4 * i)}, {vr(S + 8 * i, 8)}, v{IDX}')

    def rowmax(S, dst, tmp):
        a(f'v_max3_f32 v{dst}, v{S}, v{S+1}, v{S+2}')
        a(f'v_max3_f32 v{tmp}, v{S+3}, v{S+4}, v{S+5}')
        for k in range(6, 30, 4):
            a(f'v_max3_f32 v{dst}, v{S+k}, v{S+k+1}, v{dst}')
            a(f'v_max3_f32 v{tmp}, v{S+k+2}, v{S+k+3}, v{tmp}')
        a(f'v_max3_f32 v{dst}, v{S+30}, v{S+31}, v{dst}')
        a(f'v_max_f32 v{dst}, v{dst}, v{tmp}')
        a(f'v_mov_b32 v{tmp}, v{dst}')
        a(f'v_permlane32_swap_b32 v{dst}, v{tmp}')
        a(f'v_max_f32 v{dst}, v{dst}, v{tmp}')

    a.wait_vm_tag('S0')
    a('s_barrier')
    rd_kt(0); rd_km(0, 0); rd_km(0, 1)
    for i in range(4):
        rd_v(0, i)
    qk2b(SB); qk(SB, 0); qk(SB, 1)
    rowmax(SB, 18, 19)
    a('v_xor_b32 v18, 0x80000000, v18')
    a(f'v_lshrrev_b32 v{QT+1}, 16, v18')
    qk2b(SA); rd_kt(1)
    qk(SA, 0); rd_km(1, 0)
    qk(SA, 1); rd_km(1, 1)

    def kv_loads(b):
        a(f's_mul_i32 s61, s36, 9728'); a('s_add_u32 s61, s61, s48')
        a(f's_add_u32 s62, s61, {WS_KB + b * 2432}'); a(f's_add_u32 s63, s61, {WS_VB + b * 2432}')
        for st in range(4):
            a(f'buffer_load_dwordx4 {vr(KVB + 8 * st)}, v17, s[16:19], s62 offen offset:{st * 608}')
            a(f'buffer_load_dwordx4 {vr(KVB + 8 * st + 4)}, v17, s[16:19], s63 offen offset:{st * 608}')

    def kv_mfma(st):
        a(f'v_mfma_f32_32x32x16_bf16 {vr(KVA, 16)}, {vr(KVB + 8 * st)}, {vr(KVB + 8 * st + 4)}, {vr(KVA, 16)}')

    for D in range(32):
        Sc, Sn = (SA, SB) if D % 2 == 0 else (SB, SA)
        more = D + 1 < 32
        if D == 2:
            a.wait_vm_tag('S1')
            a('s_barrier')
            for j in range(4):
                a(f'v_lshl_or_b32 v{200+j}, v{201+2*j}, 16, v{200+2*j}')
            a(f'buffer_store_dwordx4 v[200:203], v3, s[16:19], s60 offen')
        if D == 10:
            a.wait_vm_tag('S2')
            a('s_barrier')
        if D in (11, 13, 15, 17):
            kv_loads((D - 11) // 2)
        if D == 20:
            a('v_mul_u32_u24 v18, 80, v8'); a('v_lshl_add_u32 v18, v9, 4, v18')
            a('s_mul_i32 s61, s36, 1520'); a(f's_add_u32 s61, s61, {KVP_L}'); a('v_add_u32 v18, s61, v18')
            a('s_mov_b32 exec_lo, 0x7FFFF'); a('s_mov_b32 exec_hi, 0x7FFFF')
            a(f'ds_write_b128 v18, {vr(KVA)}')
            a(f'ds_write_b128 v18, {vr(KVA + 4)} offset:32')
            a('s_mov_b32 exec_hi, 0')
            a(f'ds_write_b64 v18, {vr(KVA + 8, 2)} offset:64')
            a('s_mov_b64 exec, -1')
        if D == 22:
            a('s_barrier')
            a('v_min_u32 v18, 379, v0'); a('v_lshlrev_b32 v18, 2, v18'); a(f'v_add_u32 v18, {KVP_L}, v18')
            for k in range(8):
                a(f'ds_read_b32 v{KVB+k}, v18 offset:{k * 1520}')
        if D == 23:
            for k in range(1, 8):
                a(f'v_add_f32 v{KVB}, v{KVB}, v{KVB+k}')
            a(f'ds_write_b32 v18, v{KVB}')
        if D == 25:
            a('s_barrier')
            a('v_min_u32 v18, 18, v8'); a('v_mul_u32_u24 v18, 80, v18'); a(f'v_add_u32 v19, {KVP_L}, v18')
            a('v_lshl_add_u32 v18, v9, 5, v19')
            a(f'ds_read_b128 {vr(KVB)}, v18'); a(f'ds_read_b128 {vr(KVB + 4)}, v18 offset:16')
            a(f'ds_read_b64 {vr(KVB + 8, 2)}, v19 offset:64')
        if D == 27:
            for k in range(5):
                a(f'v_cvt_pk_bf16_f32 v{KVB+12+k}, v{KVB+2*k}, v{KVB+2*k+1}')
            a(f'v_mov_b32 v{KVB+17}, 0')
        if D == 28:
            a(f'v_mfma_f32_32x32x16_bf16 {vr(KVA, 16)}, {vr(KVB + 12)}, {vr(QBM)}, 0')
            a(f'v_mfma_f32_32x32x8bf16_1k {vr(KVA, 16)}, {vr(KVB + 16, 2)}, {vr(QBT, 2)}, {vr(KVA, 16)}')

        def ex(lo, hi):
            for r in range(lo, hi):
                a(f'v_exp_f32 v{Sc+r}, v{Sc+r}')
        if more:
            qk2b(Sn)
            if D + 2 < 32:
                rd_kt(D + 2)
        ex(0, 10)
        pv(Sc, 0)
        if more: rd_v(D + 1, 0)
        ex(10, 17)
        if more:
            qk(Sn, 0)
            if D + 2 < 32: rd_km(D + 2, 0)
        ex(17, 19)
        pv(Sc, 1)
        if more: rd_v(D + 1, 1)
        ex(19, 23)
        if more:
            qk(Sn, 1)
            if D + 2 < 32: rd_km(D + 2, 1)
        ex(23, 27)
        pv(Sc, 2)
        if more: rd_v(D + 1, 2)
        ex(27, 32)
        if D in (12, 14, 16, 18):
            for st in range(4):
                kv_mfma(st)
        pv(Sc, 3)
        if more: rd_v(D + 1, 3)

    a('v_cmp_eq_u32 vcc, 0, v9')
    a(f'v_cndmask_b32 v18, v{O+12}, v{O+10}, vcc')
    a(f'v_mul_f32 v19, 0, v{O}')
    for r in range(1, 10):
        a(f'v_fmac_f32 v19, 0, v{O+r}')
    a('v_add_f32 v19, v19, v18')
    a('v_mov_b32 v20, 0x5F800000')
    a('v_cmp_nlt_f32 vcc, v19, v20')
    a('s_cmp_lg_u64 vcc, 0')
    a('s_cbranch_scc1 K2_SLOW')
    a.label('K2_EPI')
    a.hazard_fence()
    a('v_rcp_f32 v18, v18')
    a('v_cmp_eq_u32 vcc, 0, v9')
    a(f'v_cndmask_b32 v19, v{KVA+12}, v{KVA+10}, vcc')
    a(f'v_add_f32 v19, {EPS_BITS}, v19')
    a('v_rcp_f32 v19, v19')
    a(f'v_mul_f32 v18, v18, v{G}')
    a(f'v_sub_f32 v20, 1.0, v{G}')
    a('v_mul_f32 v19, v19, v20')
    a('v_lshrrev_b32 v20, 4, v8'); a('v_mul_u32_u24 v20, 36864, v20')
    a('v_and_b32 v21, 15, v8'); a('v_lshl_add_u32 v20, v21, 4, v20')
    a('v_lshl_add_u32 v21, v9, 8, v20')
    a('v_mul_u32_u24 v22, 18432, v9'); a('v_add_u32 v22, v22, v20')
    a('s_mul_i32 s61, s42, 73728'); a(f's_add_u32 s61, s61, {WS_OG}')
    a('s_lshr_b32 s62, s37, 1'); a('s_lshl_b32 s62, s62, 10')
    a('s_and_b32 s63, s37, 1'); a('s_lshl_b32 s63, s63, 9'); a('s_add_u32 s62, s62, s63')
    a('s_add_u32 s62, s62, s61')
    a('s_add_u32 s63, s62, 18432')
    a('s_lshr_b32 s64, s37, 4'); a('s_lshl_b32 s64, s64, 10')
    a('s_bfe_u32 s65, s37, 0x20002'); a('s_lshl_b32 s65, s65, 8'); a('s_add_u32 s64, s64, s65')
    a('s_and_b32 s65, s37, 3'); a('s_lshl_b32 s65, s65, 2'); a('s_add_u32 s64, s64, s65')
    a('s_add_u32 s64, s64, s61'); a('s_add_u32 s64, s64, 16384')
    for (src, sc, T, so) in ((O, 18, 24, 62), (KVA, 19, 28, 63)):
        for r in range(10):
            a(f'v_mul_f32 v{src+r}, v{src+r}, v{sc}')
        for k in range(4):
            a(f'v_cvt_pk_bf16_f32 v{T+k}, v{src+2*k}, v{src+2*k+1}')
        a(f'v_cvt_pk_bf16_f32 v{src+8}, v{src+8}, v{src+9}')
        a(f'v_permlane32_swap_b32 v{T}, v{T+2}')
        a(f'v_permlane32_swap_b32 v{T+1}, v{T+3}')
        a(f'buffer_store_dwordx4 {vr(T)}, v21, s[16:19], s{so} offen')
    a(f'v_permlane32_swap_b32 v{O+8}, v{KVA+8}')
    a(f'buffer_store_dword v{O+8}, v22, s[16:19], s64 offen')
    a.label('K2_END')
    a('s_endpgm')

    a.label('K2_SLOW')
    a.fence()
    a(f'v_mov_b32 v{QT+1}, 0')
    a('v_mov_b32 v20, 0xFF800000')
    for r in range(16):
        a(f'v_mov_b32 v{O+r}, 0')
    a('v_mov_b32 v21, v3'); a('v_mov_b32 v22, v4'); a('v_mov_b32 v23, v5')
    a('s_mov_b32 s61, 32')
    a.label('K2_SLOW_LOOP')
    a.fence()
    a(f'ds_read_b32 v{KT}, v22')
    a(f'ds_read_b128 {vr(KM)}, v21'); a(f'ds_read_b128 {vr(KM + 4)}, v21 offset:1024')
    for i in range(4):
        a(f'ds_read_b128 {vr(VF + 4 * i)}, v23 offset:{i * 608}')
    qk2b(SA); qk(SA, 0); qk(SA, 1)
    rowmax(SA, 18, 19)
    a('v_max_f32 v18, v18, v20')
    a('v_sub_f32 v19, v20, v18'); a('v_exp_f32 v19, v19')
    a('v_mov_b32 v20, v18')
    for r in range(32):
        a(f'v_sub_f32 v{SA+r}, v{SA+r}, v18')
    for r in range(32):
        a(f'v_exp_f32 v{SA+r}, v{SA+r}')
    for r in range(16):
        a(f'v_mul_f32 v{O+r}, v{O+r}, v19')
    for i in range(4):
        pv(SA, i)
    a('v_add_u32 v21, 2048, v21'); a('v_add_u32 v22, 256, v22'); a('v_add_u32 v23, 2432, v23')
    a('s_sub_u32 s61, s61, 1'); a('s_cmp_lg_u32 s61, 0'); a('s_cbranch_scc1 K2_SLOW_LOOP')
    a.fence()
    a('v_cmp_eq_u32 vcc, 0, v9')
    a(f'v_cndmask_b32 v18, v{O+12}, v{O+10}, vcc')
    a('s_branch K2_EPI')
    return a


DESC = f"""
.amdhsa_kernel attn_kernel
  .amdhsa_next_free_vgpr {NV2}
  .amdhsa_next_free_sgpr 96
  .amdhsa_accum_offset {NV2}
  .amdhsa_group_segment_fixed_size 0
  .amdhsa_kernarg_size 80
  .amdhsa_user_sgpr_count 2
  .amdhsa_user_sgpr_kernarg_segment_ptr 1
  .amdhsa_system_sgpr_workgroup_id_x 1
.end_amdhsa_kernel
"""
```

```python
from asmlib import Asm
from layout import *

LDS3 = 4 * 3 * 5 * 1024
OGF = 16
ACC = 160
NV = 240
NA = 180


def vr(b, n=4, p='v'):
    return f'{p}[{b}:{b+n-1}]'


def gen():
    a = Asm()
    a.raw('.p2align 8')
    a.raw('.globl oproj_kernel')
    a.raw('.type oproj_kernel,@function')
    a.label('oproj_kernel')
    a('s_cmp_ge_u32 s2, 256')
    a('s_cbranch_scc1 K3_END')
    a('s_load_dwordx2 s[4:5], s[0:1], 72')
    a('s_load_dwordx2 s[6:7], s[0:1], 56')
    a('v_lshrrev_b32 v1, 6, v0')
    a('v_and_b32 v2, 63, v0')
    a('v_readfirstlane_b32 s36, v1')
    a('s_and_b32 s37, s2, 7'); a('s_lshl_b32 s37, s37, 2')
    a('s_lshr_b32 s38, s2, 3')
    a('s_and_b32 s39, s38, 3'); a('s_add_u32 s37, s37, s39')
    a('s_lshr_b32 s38, s38, 2')
    a('s_mul_i32 s39, s38, 5'); a('s_lshl_b32 s40, s38, 2'); a('s_add_u32 s40, s40, 4')
    a('s_cmp_lt_u32 s38, 4'); a('s_cselect_b32 s39, s39, s40')
    a('v_lshlrev_b32 v3, 4, v2')
    a('s_mul_i32 s41, s36, 9216')
    a('s_mul_i32 s42, s39, 36864'); a('s_add_u32 s42, s42, s41'); a(f's_add_u32 s42, s42, {WS_WOT}')
    a('s_mul_i32 s43, s37, 147456'); a('s_add_u32 s43, s43, s41'); a(f's_add_u32 s43, s43, {WS_OG}')
    for r in range(4):
        a(f's_add_u32 s44, s36, {r}'); a('s_and_b32 s44, s44, 3')
        a(f's_mul_i32 s{48+r}, s44, 36864'); a(f's_add_u32 s{48+r}, s{48+r}, s43')
        if r:
            a(f's_mul_i32 s{52+r}, s44, 15360'); a(f's_add_u32 s{52+r}, s{52+r}, {(r-1)*5120}')
    a.waitcnt(lg=0)
    a('s_mov_b32 s16, s4'); a('s_mov_b32 s17, s5'); a(f's_mov_b32 s18, {WS_END}'); a('s_mov_b32 s19, 0x00020000')
    a('s_mov_b32 s20, s6'); a('s_mov_b32 s21, s7'); a(f's_mov_b32 s22, {2048*1152}'); a('s_mov_b32 s23, 0x00020000')
    a('s_cmp_ge_u32 s38, 4'); a('s_cbranch_scc1 K3_N4')
    import copy
    state = (a.t, dict(a.w), dict(a.cread), dict(a.storedata), copy.deepcopy(a.vm), list(a.lg), list(a.smem))
    for NT in (5, 4):
        a.t, a.w, a.cread, a.storedata = state[0], dict(state[1]), dict(state[2]), dict(state[3])
        a.vm, a.lg, a.smem = copy.deepcopy(state[4]), list(state[5]), list(state[6])
        a.label(f'K3_N{NT}')

        def loads(ks):
            g, o = ks // 4, (ks % 4) * 1024
            for r in range(4):
                if o == 0 and g:
                    a(f's_add_u32 s{48+r}, s{48+r}, 4096')
                a(f'buffer_load_dwordx4 {vr(OGF + (ks * 4 + r) * 4)}, v3, s[16:19], s{48+r} offen offset:{o}')
            for nt in range(NT):
                if o == 0:
                    a(f's_add_u32 s{60+nt}, s42, {nt * 36864 + g * 4096}')
                a(f'buffer_load_dwordx4 {vr((ks * 5 + nt) * 4, 4, "a")}, v3, s[16:19], s{60+nt} offen offset:{o}')

        def mfmas(ks):
            for nt in range(NT):
                for r in range(4):
                    d = ACC + (nt * 4 + r) * 4
                    c = '0' if ks == 0 else vr(d)
                    a(f'v_mfma_f32_16x16x32_bf16 {vr(d)}, {vr((ks * 5 + nt) * 4, 4, "a")}, {vr(OGF + (ks * 4 + r) * 4)}, {c}')
        AHEAD = 6
        for ks in range(AHEAD):
            loads(ks)
        a('v_and_b32 v4, 15, v2'); a('v_lshrrev_b32 v5, 4, v2')
        a('s_lshl_b32 s44, s37, 2'); a('s_add_u32 s44, s44, s36'); a('s_lshl_b32 s44, s44, 4')
        a('v_add_u32 v4, s44, v4'); a('v_mul_u32_u24 v4, 1152, v4')
        a('s_lshl_b32 s44, s39, 5'); a('v_add_u32 v4, s44, v4')
        a('v_lshl_add_u32 v6, v5, 3, v4')
        a('v_and_b32 v7, 1, v5'); a('v_lshl_add_u32 v4, v7, 5, v4')
        a('v_lshrrev_b32 v7, 1, v5'); a('v_lshl_add_u32 v4, v7, 4, v4')
        for r in range(1, 4):
            a(f'v_add_u32 v{8+r}, s{52+r}, v3')
        a('s_mul_i32 s44, s36, 15360'); a('v_add_u32 v8, s44, v3')
        for ks in range(9):
            if ks + AHEAD < 9:
                loads(ks + AHEAD)
            mfmas(ks)
        for r in range(1, 4):
            for nt in range(NT):
                a(f'ds_write_b128 v{8+r}, {vr(ACC + (nt * 4 + r) * 4)} offset:{nt * 1024}')
        a.waitcnt(lg=0)
        a('s_barrier')
        for nt in range(NT):
            for j in range(3):
                a(f'ds_read_b128 {vr(OGF + (nt * 3 + j) * 4)}, v8 offset:{j * 5120 + nt * 1024}')
        for nt in range(NT):
            d = ACC + nt * 16
            for j in range(3):
                s = OGF + (nt * 3 + j) * 4
                a(f'v_pk_add_f32 v[{d}:{d+1}], v[{d}:{d+1}], v[{s}:{s+1}]')
                a(f'v_pk_add_f32 v[{d+2}:{d+3}], v[{d+2}:{d+3}], v[{s+2}:{s+3}]')
            t = 100 + nt * 2
            a(f'v_cvt_pk_bf16_f32 v{t}, v{d}, v{d+1}'); a(f'v_cvt_pk_bf16_f32 v{t+1}, v{d+2}, v{d+3}')
            if nt % 2 == 1:
                t0 = t - 2
                a(f'v_permlane16_swap_b32 v{t0}, v{t0+2}'); a(f'v_permlane16_swap_b32 v{t0+1}, v{t0+3}')
                a(f'buffer_store_dwordx4 {vr(t0)}, v4, s[20:23], 0 offen offset:{(nt - 1) * 32}')
            elif nt == 4:
                a(f'buffer_store_dwordx2 {vr(t, 2)}, v6, s[20:23], 0 offen offset:128')
        a('s_branch K3_END')
    a.label('K3_END')
    a('s_endpgm')
    return a


DESC = f"""
.amdhsa_kernel oproj_kernel
  .amdhsa_next_free_vgpr {NV + NA}
  .amdhsa_next_free_sgpr 96
  .amdhsa_accum_offset {NV}
  .amdhsa_group_segment_fixed_size 0
  .amdhsa_kernarg_size 80
  .amdhsa_user_sgpr_count 2
  .amdhsa_user_sgpr_kernarg_segment_ptr 1
  .amdhsa_system_sgpr_workgroup_id_x 1
.end_amdhsa_kernel
"""
```

```python
import struct, math
def fbits(x):
    return struct.unpack('<I', struct.pack('<f', x))[0]
WS_QAM = 0x000000
WS_KAM = 0x200000
WS_QBM = 0x400000
WS_QAT = 0x600000
WS_KAT = 0x640000
WS_QBT = 0x680000
NIMG = 256 * 18 * 16
WS_VA = 0x700000
WS_KB = WS_VA + 32 * NIMG
WS_VB = WS_KB + 32 * NIMG
WS_G = 0xE20000
WS_WOT = 0xE30000
WS_OG = 0x1000000
WS_OGEND = WS_OG + 128 * 36 * 1024
WS_END = WS_OGEND + 3072 * 128
assert WS_VB + 32 * NIMG <= WS_G and WS_WOT + 36 * 36 * 1024 <= WS_OG
QSCALE = math.log2(math.e) / math.sqrt(18.0)
QSCALE_BITS = fbits(QSCALE)
LOG2E_BITS = fbits(math.log2(math.e))
NEG_EPS_LOG2E_BITS = fbits(-1e-6 * math.log2(math.e))
EPS_BITS = fbits(1e-6)
WS_PROF = 0x2000000
WS_KVS = 0xFA0000
assert WS_WOT + 36 * 36 * 1024 <= WS_KVS and WS_KVS + 32 * 8 * 1536 <= WS_OG
WS_FLG = WS_OGEND
WS_FL1 = WS_FLG
```

```python
import sys, os
sys.path.insert(0, os.path.dirname(os.path.abspath(__file__)))
import k1, k2, k3
NAME = 'gated_mix__mha_block__linear_attn_block__prompt'
ref = open(f'cdna_kernels/{NAME}.s.ref').read().splitlines()
head = [l for l in ref[:12] if l.startswith(';') and '@launch' not in l][:11]
def build(path):
    out = '\n'.join(head) + '\n'
    out += f'; @launch kernel=qkv_kernel grid=(256,1,1) block=(256,1,1) lds={k1.LDS1}\n'
    out += f'; @launch kernel=attn_kernel grid=(256,1,1) block=(512,1,1) lds={k2.LDS2}\n'
    out += f'; @launch kernel=oproj_kernel grid=(256,1,1) block=(256,1,1) lds={k3.LDS3}\n'
    out += '.amdgcn_target "amdgcn-amd-amdhsa--gfx950"\n.text\n'
    for k in (k1, k2, k3):
        a = k.gen()
        out += a.text()
        print(k.__name__, 'lines', len(a.lines), 'nops', a.n_nops)
    out += '.section .rodata,"a"\n'
    for k in (k1, k2, k3):
        out += '.p2align 6' + k.DESC
    open(path, 'w').write(out)
if __name__ == '__main__':
    build(sys.argv[1] if len(sys.argv) > 1 else f'cdna_kernels/{NAME}.s')
```

```python
import re

_REG = re.compile(r'^(v|a|s)(\d+)$')
_RNG = re.compile(r'^(v|a|s)\[(\d+):(\d+)\]$')


def regs_of(tok):
    tok = tok.strip()
    if tok.startswith('-'):
        tok = tok[1:]
    if tok.startswith('|') and tok.endswith('|'):
        tok = tok[1:-1]
    if tok.startswith('abs(') and tok.endswith(')'):
        tok = tok[4:-1]
    m = _REG.match(tok)
    if m:
        return [(m.group(1), int(m.group(2)))]
    m = _RNG.match(tok)
    if m:
        return [(m.group(1), i) for i in range(int(m.group(2)), int(m.group(3)) + 1)]
    if tok == 'vcc':
        return [('s', 106), ('s', 107)]
    if tok == 'exec':
        return [('s', 126), ('s', 127)]
    if tok == 'm0':
        return [('s', 124)]
    return []


def split_ops(s):
    out, depth, cur = [], 0, ''
    for ch in s:
        if ch in '[(':
            depth += 1
        if ch in '])':
            depth -= 1
        if ch == ',' and depth == 0:
            out.append(cur.strip())
            cur = ''
        else:
            cur += ch
    if cur.strip():
        out.append(cur.strip())
    return out


TRANS = ('v_exp_f32', 'v_log_f32', 'v_rcp_f32', 'v_rsq_f32', 'v_sqrt_f32', 'v_sin_f32', 'v_cos_f32')


def mfma_passes(mn):
    if '32x32x4_2b' in mn:
        return 16
    if '32x32' in mn:
        return 8
    if '16x16' in mn:
        return 4
    raise ValueError(mn)


RAW_VALU = {2: 5, 4: 8, 8: 12, 16: 20}
RAW_C = {2: 4, 4: 6, 8: 10, 16: 18}
WAR_C = {2: 1, 4: 3, 8: 7, 16: 15}


class Asm:
    def __init__(self):
        self.lines = []
        self.reset_state()
        self.n_nops = 0

    def reset_state(self):
        self.t = 0
        self.w = {}
        self.cread = {}
        self.storedata = {}
        self.vm = []
        self.lg = []
        self.smem = []

    def snapshot(self):
        import copy
        return (self.t, dict(self.w), dict(self.cread), dict(self.storedata), copy.deepcopy(self.vm), [set(x) for x in self.lg], list(self.smem))

    def restore(self, st):
        import copy
        self.t, self.w, self.cread, self.storedata = st[0], dict(st[1]), dict(st[2]), dict(st[3])
        self.vm, self.lg, self.smem = copy.deepcopy(st[4]), [set(x) for x in st[5]], list(st[6])

    def loop(self, label, body, tail):
        entry = self.snapshot()
        n0 = len(self.lines)
        body(); tail()
        back = self.snapshot()
        del self.lines[n0:]
        assert [set(x) for x in entry[5]] == [set(x) for x in back[5]], ('lds queue differs', entry[5], back[5])
        assert [(e['d'], e['tag']) for e in entry[4]] == [(e['d'], e['tag']) for e in back[4]], ('vm queue differs', entry[4], back[4])
        self.restore(entry)
        sh = entry[0] - back[0]
        for r, (t, k, ex) in back[1].items():
            if r not in self.w or self.w[r][0] < t + sh or (k == 'mfma' and self.w[r][1] != 'mfma' and t + sh + 20 > self.w[r][0]):
                self.w[r] = (t + sh, k, ex)
        for r, (t, p) in back[2].items():
            if r not in self.cread or self.cread[r][0] < t + sh:
                self.cread[r] = (t + sh, p)
        for r, t in back[3].items():
            self.storedata[r] = max(self.storedata.get(r, -99), t + sh)
        self.label(label)
        body(); tail()

    def raw(self, s):
        self.lines.append(s)

    def comment(self, s):
        self.lines.append('  ; ' + s)

    def label(self, name):
        self.lines.append(name + ':')

    def _emit(self, s):
        self.lines.append('  ' + s)
        self.t += 1

    def nop(self, n):
        while n > 0:
            k = min(n, 16)
            self.lines.append(f'  s_nop {k-1}')
            self.t += k
            n -= k
            self.n_nops += 1

    def fence(self):
        self.waitcnt(vm=0, lg=0)
        self.nop(20)
        self.w.clear(); self.cread.clear(); self.storedata.clear()

    def hazard_fence(self):
        self.nop(20)
        self.w.clear(); self.cread.clear(); self.storedata.clear()

    def waitcnt(self, vm=None, lg=None):
        parts = []
        if vm is not None:
            assert 0 <= vm <= 63
            parts.append(f'vmcnt({vm})')
            while len(self.vm) > vm:
                self.vm.pop(0)
        if lg is not None:
            assert 0 <= lg <= 15
            parts.append(f'lgkmcnt({lg})')
            if self.smem:
                assert lg == 0, 'smem outstanding: only lgkmcnt(0)'
                self.smem = []
            while len(self.lg) > lg:
                self.lg.pop(0)
        self._emit('s_waitcnt ' + ' '.join(parts))

    def wait_vm_tag(self, tag):
        idx = max((i for i, e in enumerate(self.vm) if e['tag'] == tag), default=None)
        if idx is None:
            return
        self.waitcnt(vm=len(self.vm) - idx - 1)

    def __call__(self, text, tag=None):
        text = text.strip()
        mn, _, rest = text.partition(' ')
        rest = rest.strip()
        ops = split_ops(rest)
        mods = ''
        if ops:
            last = ops[-1].split()
            if len(last) > 1:
                ops[-1] = last[0]
                mods = ' '.join(last[1:])
        R = [regs_of(o) for o in ops]
        reads, writes = [], []
        kind = None
        base = mn.replace('_e32', '').replace('_e64', '')
        is_mfma = base.startswith('v_mfma') or base.startswith('v_smfmac')
        if is_mfma:
            kind = 'mfma'
        elif base.startswith('v_'):
            kind = 'valu'
        elif base.startswith('ds_'):
            kind = 'ds'
        elif base.startswith('buffer_') or base.startswith('global_'):
            kind = 'vmem'
        elif base.startswith('s_load') or base.startswith('s_memtime') or base.startswith('s_memrealtime'):
            kind = 'smem'
        elif base.startswith('s_'):
            kind = 'salu'
        else:
            raise ValueError(text)

        need = 0

        def req(t_prod, states):
            nonlocal need
            need = max(need, t_prod + 1 + states)

        if kind == 'mfma':
            P = mfma_passes(base)
            D, A, B = R[0], R[1], R[2]
            if base.startswith('v_smfmac'):
                C = D
                AB = A + B + R[3]
            else:
                C = R[3]
                AB = A + B
            for r in AB:
                if r in self.w:
                    tp, k, ex = self.w[r]
                    if k in ('valu', 'trans'):
                        req(tp, 2)
                    elif k == 'mfma':
                        req(tp, RAW_VALU[ex[0]])
            for r in C:
                if r in self.w:
                    tp, k, ex = self.w[r]
                    if k in ('valu', 'trans'):
                        req(tp, 2)
                    elif k == 'mfma':
                        if ex[1] == tuple(C) and ex[0] == P:
                            req(tp, 2 if P == 2 else 0)
                        else:
                            req(tp, RAW_C[ex[0]])
            for r in D:
                if r in self.w and r not in C:
                    tp, k, ex = self.w[r]
                    if k == 'mfma' and ex[0] > P:
                        req(tp, RAW_C[ex[0]])
            reads = AB + C
            writes = D
        elif kind == 'valu':
            if base.startswith('v_cmp'):
                writes = R[0]
                reads = sum(R[1:], [])
            elif base.startswith('v_permlane') and 'swap' in base:
                writes = R[0] + R[1]
                reads = R[0] + R[1]
            elif base in ('v_fmac_f32', 'v_dot2c_f32_bf16', 'v_pk_fmac_f16'):
                writes = R[0]
                reads = sum(R, [])
            elif base in ('v_add_co_u32', 'v_sub_co_u32', 'v_addc_co_u32'):
                writes = R[0] + R[1]
                reads = sum(R[2:], [])
            else:
                writes = R[0]
                reads = sum(R[1:], [])
                if base == 'v_cndmask_b32' and len(ops) == 3:
                    reads += regs_of('vcc')
            is_trans = base in TRANS
            for r in reads:
                if r in self.w:
                    tp, k, ex = self.w[r]
                    if k == 'mfma':
                        req(tp, RAW_VALU[ex[0]])
                    elif k == 'trans' and not is_trans:
                        req(tp, 1)
                    if k in ('valu', 'trans'):
                        if r[0] == 's':
                            req(tp, 4 if base in ('v_readlane_b32', 'v_writelane_b32') else 2)
                        elif base.startswith('v_permlane') or 'dpp' in mods or 'row_' in mods or 'quad_perm' in mods:
                            req(tp, 2)
                        elif base in ('v_readfirstlane_b32', 'v_readlane_b32'):
                            req(tp, 1)
            for r in writes:
                if r in self.w and self.w[r][1] == 'mfma':
                    req(self.w[r][0], RAW_VALU[self.w[r][2][0]])
                if r in self.cread:
                    req(self.cread[r][0], WAR_C[self.cread[r][1]])
                if r in self.storedata:
                    req(self.storedata[r], 2)
        elif kind == 'ds':
            if base.startswith('ds_read'):
                writes = R[0]
                reads = sum(R[1:], [])
            else:
                reads = sum(R, [])
            for r in reads + writes:
                if r in self.w:
                    tp, k, ex = self.w[r]
                    if k == 'mfma':
                        req(tp, RAW_VALU[ex[0]])
                    elif k == 'trans' and r in reads:
                        req(tp, 1)
            for r in writes:
                if r in self.storedata:
                    req(self.storedata[r], 1)
        elif kind == 'vmem':
            lds = ' lds' in (' ' + mods) or '_lds_' in base
            if 'store' in base or 'atomic' in base:
                reads = sum(R, [])
            elif lds:
                reads = sum(R, []) + regs_of('m0')
            else:
                writes = R[0]
                reads = sum(R[1:], [])
                if 'd16' in base:
                    reads = reads + R[0]
            for r in reads + writes:
                if r in self.w:
                    tp, k, ex = self.w[r]
                    if k == 'mfma':
                        req(tp, RAW_VALU[ex[0]])
                    elif k in ('valu', 'trans') and r[0] == 's':
                        req(tp, 5)
                    elif k == 'trans' and r in reads:
                        req(tp, 1)
                    elif k == 'salu' and r == ('s', 124):
                        req(tp, 1)
            for r in writes:
                if r in self.storedata:
                    req(self.storedata[r], 1)
        elif kind == 'smem':
            writes = R[0]
            reads = sum(R[1:], [])
        else:
            if base.startswith('s_cmp') or base.startswith('s_cbranch') or base in (
                    's_branch', 's_barrier', 's_nop', 's_endpgm', 's_setprio', 's_sleep', 's_bitcmp1_b32', 's_bitcmp0_b32'):
                reads = sum(R, [])
            else:
                writes = R[0] if R else []
                reads = sum(R[1:], [])
                if 'saveexec' in base:
                    writes = writes + regs_of('exec')
            for r in reads:
                if r in self.w and self.w[r][1] in ('valu', 'trans'):
                    req(self.w[r][0], 1)

        touched = set(reads) | set(writes)
        vi = max((i for i, e in enumerate(self.vm) if e['d'] & touched and not (
            kind == 'vmem' and 'd16' in base and e.get('d16'))), default=None)
        li = max((i for i, e in enumerate(self.lg) if e & touched), default=None)
        sm = any(e & touched for e in self.smem)
        wvm = wlg = None
        if vi is not None:
            wvm = len(self.vm) - vi - 1
        if li is not None:
            wlg = len(self.lg) - li - 1
        if sm or (li is not None and self.smem):
            wlg = 0
        if kind == 'vmem' and len(self.vm) >= 63:
            wvm = min(wvm, 62) if wvm is not None else 62
        if kind == 'ds' and len(self.lg) >= 15:
            wlg = min(wlg, 14) if wlg is not None else 14
        if kind == 'ds' and self.smem:
            wlg = 0
        if wvm is not None or wlg is not None:
            self.waitcnt(vm=wvm, lg=wlg)

        if need > self.t:
            self.nop(need - self.t)
        now = self.t
        self._emit(text)

        if kind == 'mfma':
            for r in writes:
                self.w[r] = (now, 'mfma', (P, tuple(D)))
            for r in C:
                self.cread[r] = (now, P)
        elif kind == 'valu':
            k = 'trans' if base in TRANS else 'valu'
            for r in writes:
                self.w[r] = (now, k, None)
        elif kind == 'salu':
            for r in writes:
                self.w[r] = (now, 'salu', None)
        elif kind == 'ds':
            self.lg.append(set(writes))
            for r in writes:
                self.w.pop(r, None)
        elif kind == 'vmem':
            if tag != 'untracked':
                self.vm.append({'d': set() if tag == 'pf' else set(writes), 'tag': tag, 'd16': 'd16' in base})
            for r in writes:
                self.w.pop(r, None)
            if 'store' in base and ('x3' in base or 'x4' in base):
                for r in R[0]:
                    self.storedata[r] = now
        elif kind == 'smem':
            self.smem.append(set(writes))

    def stamp(self, i, real=False):
        if not getattr(self, 'prof', False):
            return
        assert i < 9
        self(f's_{"memrealtime" if real else "memtime"} s[{84+2*i}:{85+2*i}]')

    def stamp_flush(self, ws_lo, kid, nw_shift, wave_sgpr, lane_vgpr, base):
        if not getattr(self, 'prof', False):
            return
        self.waitcnt(vm=0, lg=0)
        self('s_memtime s[100:101]')
        self('s_memrealtime s[72:73]')
        self.waitcnt(lg=0)
        self(f's_mov_b32 s76, s{ws_lo}'); self(f's_mov_b32 s77, s{ws_lo+1}')
        self('s_mov_b32 s78, 0x10000000'); self('s_mov_b32 s79, 0x00020000')
        self(f's_lshl_b32 s74, s2, {nw_shift}'); self(f's_add_u32 s74, s74, s{wave_sgpr}')
        self('s_lshl_b32 s74, s74, 6'); self(f's_add_u32 s74, s74, {base + kid * 0x40000}')
        self('v_mov_b32 v1, 0')
        for i in range(9):
            self(f'v_writelane_b32 v1, s{84+2*i}, {i}')
        self('v_writelane_b32 v1, s72, 9')
        self(f'v_lshlrev_b32 v0, 2, v{lane_vgpr}')
        self('s_mov_b64 exec, 0xFFFF')
        self('buffer_store_dword v1, v0, s[76:79], s74 offen')
        self('s_mov_b64 exec, -1')

    def text(self):
        return '\n'.join(self.lines) + '\n'
```

```python
from asmlib import Asm
from layout import *

WPART = 14400
SLOT = WPART
NS = 6
XBASE = NS * SLOT
XSLOT = 16384
NX = 4
LDS1 = XBASE + NX * XSLOT
assert XBASE % 128 == 0

ACC = 128
WF = 96
NWF = 6
XF = 64


PFS = [(2, 0), (0, 4), (6, 0), (0, 8)]
PF = {'pf1': ([(2, 2)], [(4, 6), (8, 8)]), 'pf2': ([(2, 4)], [(6, 8)]), 'pf3': ([(0, 2)], [(4, 6), (8, 8)]), 'pf4': ([(2, 4)], [])}


def acc(rt, tile):
    return ACC + (tile * 4 + rt) * 4


def vr(b, n=4):
    return f'v[{b}:{b+n-1}]'


def gen(prof=False, X=()):
    a = Asm()
    a.prof = prof
    a.raw('.p2align 8')
    a.raw('.globl qkv_kernel')
    a.raw('.type qkv_kernel,@function')
    a.label('qkv_kernel')
    a('s_cmp_ge_u32 s2, 256')
    a('s_cbranch_scc1 K1_END')
    a.stamp(0, real=True); a.stamp(1)
    a('s_load_dwordx4 s[4:7], s[0:1], 0')
    a('s_load_dwordx2 s[8:9], s[0:1], 32')
    a('s_load_dwordx2 s[10:11], s[0:1], 48')
    a('s_load_dwordx2 s[12:13], s[0:1], 72')
    a('v_lshrrev_b32 v1, 6, v0')
    a('v_and_b32 v2, 63, v0')
    a('v_readfirstlane_b32 s36, v1')
    a('s_and_b32 s37, s2, 7')
    a('s_lshr_b32 s38, s2, 3')
    a('s_and_b32 s39, s37, 1')
    a('s_lshl_b32 s39, s39, 3')
    a('s_and_b32 s40, s38, 7')
    a('s_add_u32 s39, s39, s40')
    a('s_lshr_b32 s40, s37, 1')
    a('s_lshl_b32 s40, s40, 2')
    a('s_lshr_b32 s41, s38, 3')
    a('s_add_u32 s40, s40, s41')
    a('s_lshr_b32 s41, s40, 3')
    a('s_and_b32 s42, s40, 7')
    a('s_and_b32 s43, s36, 1')
    a('s_bfe_u32 s44, s36, 0x10001')
    a('s_cmp_ge_u32 s36, 4')
    a('s_cbranch_scc0 K1_COMPUTE')
    st_entry = a.snapshot()

    a('s_mov_b32 s34, 0xF7FFFFFF')
    a('s_mov_b32 s35, 0x007FFFFF')
    a('v_cmp_le_u32 vcc, 28, v2')
    a('v_mov_b32 v4, 0')
    a('v_mov_b32 v5, 3008')
    a('v_cndmask_b32 v4, v4, v5, vcc')
    a('v_lshl_add_u32 v3, v2, 4, v4')
    a('s_mul_i32 s58, s42, 432')
    a('v_add_u32 v3, s58, v3')
    a('v_lshrrev_b32 v5, 3, v2')
    a('v_and_b32 v6, 7, v2')
    a('v_and_b32 v7, 2, v5')
    a('v_lshlrev_b32 v7, 1, v7')
    a('s_lshl_b32 s58, s43, 1')
    a('v_or_b32 v7, s58, v7')
    a('v_xor_b32 v6, v6, v7')
    a('v_mul_u32_u24 v5, 1152, v5')
    a('v_lshl_add_u32 v4, v6, 4, v5')
    a('s_mul_i32 s60, s44, 7200')
    a('s_mul_i32 s58, s43, 3616')
    a('s_add_u32 s60, s60, s58')
    a('s_and_b32 s58, s36, 3')
    a('s_mul_i32 s61, s58, 27648')
    a('s_lshl_b32 s58, s43, 1'); a('s_lshl_b32 s59, s44, 3'); a('s_add_u32 s58, s58, s59')
    a('s_lshl_b32 s62, s58, 10'); a(f's_add_u32 s62, s62, {XBASE}')
    a('s_lshl_b32 s59, s39, 4'); a('s_add_u32 s58, s58, s59')
    a('s_mul_i32 s63, s58, 9216')
    a('s_and_b32 s58, s38, 7'); a('s_lshr_b32 s59, s38, 3'); a('s_lshl_b32 s59, s59, 1'); a('s_add_u32 s58, s58, s59')
    a('s_sub_u32 s59, s58, 9'); a('s_cmp_ge_u32 s58, 9'); a('s_cselect_b32 s66, s59, s58')
    if 'rot' not in X: a('s_mov_b32 s66, 0')
    a.waitcnt(lg=0)
    a('s_mov_b32 s16, s4'); a('s_mov_b32 s17, s5'); a(f's_mov_b32 s18, {2048*1152}'); a('s_mov_b32 s19, 0x00020000')
    a('s_cmp_eq_u32 s41, 0')
    a('s_cselect_b32 s20, s6, s8'); a('s_cselect_b32 s21, s7, s9')
    a(f's_mov_b32 s22, {576*3456}'); a('s_mov_b32 s23, 0x00020000')
    a('s_mov_b32 s28, s10'); a('s_mov_b32 s29, s11'); a('s_mov_b32 s30, 1152'); a('s_mov_b32 s31, 0x00020000')

    def kblock(A):
        a(f's_add_u32 s67, s66, {A}'); a('s_sub_u32 s58, s67, 9'); a('s_cmp_ge_u32 s67, 9'); a('s_cselect_b32 s67, s58, s67')

    def xhalf(A, h):
        if h == 0:
            kblock(A)
            a('s_lshl_b32 s69, s67, 7'); a('s_add_u32 s69, s69, s63')
        for n in (2 * h, 2 * h + 1):
            rg = (n & 1) + 4 * (n >> 1)
            a(f's_add_u32 m0, s62, {(A % NX) * XSLOT + rg * 1024}')
            a(f's_add_u32 s65, s69, {rg * 9216}')
            if 'noload' not in X and 'nox' not in X: a('buffer_load_dwordx4 v4, s[16:19], s65 offen lds', tag=('x', A))

    def xchunk(A):
        xhalf(A, 0); xhalf(A, 1)

    def wchunk(c):
        if c % 2 == 0:
            kblock(c // 2)
            a(f's_mul_i32 s68, s67, {64 * 3456}'); a('s_add_u32 s68, s68, s61')
        a('s_mov_b64 exec, s[34:35]')
        for n in range(4):
            a(f's_add_u32 m0, s60, {(c % NS) * SLOT + n * 896}')
            a(f's_add_u32 s64, s68, {((c % 2) * 32 + 2 * n) * 3456}')
            if 'noload' not in X and 'now' not in X: a('buffer_load_dwordx4 v3, s[20:23], s64 offen lds', tag=('w', c))
        a('s_mov_b64 exec, -1')

    xchunk(0); wchunk(0)
    a('v_lshlrev_b32 v19, 1, v2')
    for g in range(9):
        kblock(g); a('s_lshl_b32 s58, s67, 7')
        a(f'buffer_load_ushort v{41+g}, v19, s[28:31], s58 offen', tag=('w', 0))
    wchunk(1)
    if 'deep' in X: xchunk(1); wchunk(2); wchunk(3)
    a('v_bfe_u32 v6, v2, 4, 1')
    a('v_mul_u32_u24 v18, 7200, v6')
    a('v_and_b32 v6, 15, v2')
    a('v_mul_u32_u24 v6, 448, v6')
    a('v_add_u32 v18, v18, v6')
    a('v_bfe_u32 v6, v2, 3, 1')
    a('v_lshl_add_u32 v18, v6, 5, v18')
    a('v_lshrrev_b32 v6, 5, v2')
    a(f'v_mul_u32_u24 v6, {SLOT}, v6')
    a('v_add_u32 v18, v18, v6')
    a('v_add_u32 v18, 432, v18')
    a(f'v_add_u32 v17, {4*SLOT}, v18')

    def gate_write(g):
        sl = (2 * g) % NS
        if sl == 4:
            a(f'ds_write_b16 v17, v{41+g}')
        else:
            a(f'ds_write_b16 v18, v{41+g} offset:{sl * SLOT}')
    if 'free' in X:
        win = [int(x[1:]) for x in X if x[0] == 'n' and x[1:].isdigit()][0]
        a.stamp(2)
        for s in range(4, 18):
            if s % 2 == 0:
                xchunk(s // 2)
            wchunk(s)
            a.waitcnt(vm=min(win, 63))
            if s in (8, 12): a.stamp({8: 3, 12: 4}[s])
        a.stamp(5); a.stamp(6); a.stamp(7)
        a('s_sub_u32 s36, s36, 4')
        a('s_branch K1_FIN')
    a.wait_vm_tag(('w', 0))
    for g in range(3):
        gate_write(g)
    a.waitcnt(lg=0)
    a('s_barrier')
    if 'deep' not in X: xchunk(1); wchunk(2); wchunk(3)
    plan = {0: [('x', 2, 0), ('w', 4), ('x', 2, 1), ('w', 5)]}
    for s in range(1, 18):
        p = []
        if (s + 5) // 2 < 9: p.append(('x', (s + 5) // 2, (s + 5) % 2))
        if s + 5 < 18: p.append(('w', s + 5))
        plan[s] = p
    L = 'lst' in X
    for s in range(18):
        if L and s in (7, 8): a.stamp(2 + 3 * (s - 7))
        a.wait_vm_tag(('w', s + 1))
        a.wait_vm_tag(('x', (s + 1) // 2))
        a.waitcnt(lg=0)
        if L and s in (7, 8): a.stamp(3 + 3 * (s - 7))
        a('s_barrier')
        if L and s in (7, 8): a.stamp(4 + 3 * (s - 7))
        for p in plan[s]:
            if p[0] == 'x': xhalf(p[1], p[2])
            else: wchunk(p[1])
        if s + 5 < 18 and (s + 5) % 2 == 1 and s + 5 >= 7:
            gate_write((s + 5) // 2)
    if L:
        a('s_sub_u32 s36, s36, 4')
        a('s_branch K1_FIN')
    a('s_branch K1_END')

    a.restore(st_entry)
    a.label('K1_COMPUTE')
    if 'free' in X: a('s_branch K1_END')
    if 'pf' in X:
        a('s_cmp_eq_u32 s43, 1'); a('s_cbranch_scc1 K1_PFW')
        a('v_and_b32 v6, 31, v2'); a('s_and_b32 s58, s37, 1'); a('s_lshl_b32 s58, s58, 5'); a('s_add_u32 s58, s58, s38'); a('s_lshl_b32 s58, s58, 5')
        a('v_add_u32 v6, s58, v6'); a('v_mul_u32_u24 v6, 1152, v6'); a('v_lshrrev_b32 v7, 5, v2'); a('v_lshl_add_u32 v6, v7, 7, v6')
        a('s_mov_b32 s78, 128')
        stp = a.snapshot()
        a.waitcnt(lg=0)
        a('s_mov_b32 s16, s4'); a('s_mov_b32 s17, s5'); a(f's_mov_b32 s18, {2048*1152}'); a('s_mov_b32 s19, 0x00020000')
        a('s_branch K1_PFGO')
        a.restore(stp)
        a.label('K1_PFW')
        a('v_min_u32 v6, 55, v2')
        a('v_cmp_le_u32 vcc, 28, v6'); a('v_mov_b32 v7, 0'); a(f'v_mov_b32 v8, {64 * 3456 - 28 * 128}'); a('v_cndmask_b32 v7, v7, v8, vcc')
        a('v_subrev_u32 v8, 28, v6'); a('v_cndmask_b32 v8, v6, v8, vcc')
        a('v_lshl_add_u32 v6, v6, 7, v7')
        a('v_cmp_le_u32 vcc, 14, v8'); a('v_mov_b32 v7, 0'); a(f'v_mov_b32 v8, {3456 - 14 * 128}'); a('v_cndmask_b32 v7, v7, v8, vcc')
        a('v_add_u32 v6, v6, v7')
        a('s_bfe_u32 s58, s37, 0x10001'); a('s_mul_i32 s58, s58, 1664'); a('s_mul_i32 s59, s38, 6912'); a('s_add_u32 s58, s58, s59')
        a('v_add_u32 v6, s58, v6')
        a(f's_mov_b32 s78, {64 * 3456}')
        a.waitcnt(lg=0)
        a('s_cmp_eq_u32 s41, 0')
        a('s_cselect_b32 s16, s6, s8'); a('s_cselect_b32 s17, s7, s9')
        a(f's_mov_b32 s18, {576*3456}'); a('s_mov_b32 s19, 0x00020000')
        a.label('K1_PFGO')
        a('v_mov_b32 v27, v6')
        OOB = 0x7FF00000 // 1
        for sd, (b0, b1) in zip((58, 88 if False else 28, 29, 34), PFS):
            a('s_cmp_eq_u32 s44, 0'); a(f's_cselect_b32 s{sd}, {b0}, {b1}'); a(f's_mul_i32 s{sd}, s{sd}, s78')
            a(f's_cmp_eq_u32 s{sd}, 0'); a(f's_cselect_b32 s{sd}, {OOB}, s{sd}')
        a('buffer_load_dword v28, v27, s[16:19], s58 offen', tag='untracked')
    a('s_cmp_eq_u32 s42, 5')
    a('s_cselect_b32 s45, 2, 0')
    a('s_cselect_b32 s46, 0, 4')
    a('s_add_u32 s47, s45, 3')
    a('s_add_u32 s48, s45, 1')
    a('s_cmp_eq_u32 s44, 0')
    a('s_cselect_b32 s47, s45, s47')
    a('s_cselect_b32 s48, s48, s46')
    a('s_cselect_b32 s49, s45, s46')
    a('s_cselect_b32 s50, 4, 2')
    a('s_mul_i32 s51, s42, 6')
    a('s_mul_i32 s52, s41, 3')
    a('s_add_u32 s53, s51, s47')
    a('s_add_u32 s54, s51, s48')
    a('s_add_u32 s55, s51, s49')
    a('s_lshr_b32 s56, s53, 4')
    a('s_add_u32 s56, s56, s52')
    a('s_lshr_b32 s57, s54, 4')
    a('s_add_u32 s57, s57, s52')
    a('s_and_b32 s53, s53, 15')
    a('s_and_b32 s54, s54, 15')
    a('s_and_b32 s55, s55, 15')
    a('v_lshrrev_b32 v6, 5, v2')
    a('v_mul_u32_u24 v5, 7200, v6')
    a('v_bfe_u32 v6, v2, 4, 1')
    a('v_mul_u32_u24 v6, 3616, v6')
    a('v_add_u32 v5, v5, v6')
    a('v_bfe_u32 v6, v2, 2, 2')
    a('v_mul_u32_u24 v6, 448, v6')
    a('v_add_u32 v5, v5, v6')
    a('v_and_b32 v6, 3, v2')
    a('v_lshl_add_u32 v7, v6, 3, v5')
    a('s_mul_i32 s58, s47, 72')
    a('v_add_u32 v10, s58, v7')
    a('s_mul_i32 s58, s48, 72')
    a('v_add_u32 v12, s58, v7')
    a('v_add_u32 v8, s49, v6')
    a('v_mul_u32_u24 v8, 72, v8')
    a('v_add_u32 v8, 32, v8')
    a('v_lshlrev_b32 v9, 3, v6')
    a('v_add_u32 v9, 416, v9')
    a('v_cmp_gt_u32 vcc, s50, v6')
    a('v_cndmask_b32 v8, v9, v8, vcc')
    a('v_add_u32 v11, v5, v8')
    a('v_and_b32 v6, 15, v2')
    a('v_lshrrev_b32 v7, 2, v6')
    a('v_and_b32 v8, 3, v6')
    a('v_lshl_add_u32 v20, v7, 3, v8')
    a('s_lshl_b32 s58, s43, 6')
    a('v_add_u32 v9, s58, v20')
    a('v_lshlrev_b32 v9, 7, v9')
    a('v_and_b32 v8, 2, v8')
    a('v_lshlrev_b32 v8, 1, v8')
    a('v_and_b32 v7, 2, v7')
    a('v_or_b32 v7, v7, v8')
    a('v_lshrrev_b32 v21, 4, v2')
    a('v_xor_b32 v8, v21, v7')
    a('v_lshl_add_u32 v13, v8, 4, v9')
    a(f'v_add_u32 v13, {XBASE}, v13')
    a('v_xor_b32 v17, 64, v13')
    a('v_mov_b32 v18, v13')
    a('s_mov_b32 s79, 0')
    for r in (10, 11, 12):
        a(f'v_add_u32 v{r+4}, {3*SLOT}, v{r}')
    a('s_lshr_b32 s58, 0x18, s56'); a('s_and_b32 s66, s58, 1')
    a('s_lshr_b32 s58, 0x18, s57'); a('s_and_b32 s67, s58, 1')
    a(f's_mul_i32 s68, s66, {EPS_BITS}')
    a(f's_mul_i32 s69, s67, {EPS_BITS}')
    for tile in range(7):
        for r in range(16):
            a(f'v_mov_b32 v{ACC + tile*16 + r}, s{68 if tile < 2 else 69}')
    a('s_lshr_b32 s58, 0x34, s56'); a('s_and_b32 s70, s58, 1')
    a('s_lshr_b32 s58, 0x34, s57'); a('s_and_b32 s71, s58, 1')
    a('s_lshl_b32 s58, s70, 1'); a('s_or_b32 s72, s58, s71')
    a.waitcnt(lg=0)
    a('s_mov_b32 s24, s12'); a('s_mov_b32 s25, s13'); a(f's_mov_b32 s26, {WS_END}'); a('s_mov_b32 s27, 0x00020000')
    a('s_lshl_b32 s77, s39, 7'); a('s_lshl_b32 s58, s43, 6'); a('s_add_u32 s77, s77, s58')
    a('s_mov_b32 s73, 3')
    a.stamp(2)
    a('s_cmp_eq_u32 s72, 1'); a('s_cbranch_scc1 K1_TN')
    a('s_cmp_eq_u32 s72, 2'); a('s_cbranch_scc1 K1_NT')
    a('s_cmp_eq_u32 s72, 3'); a('s_cbranch_scc1 K1_NN')
    state = a.snapshot()

    def tile_addr(tile, slot):
        base = {0: 10, 1: 10, 2: 11}.get(tile, 12)
        imm = {0: 0, 1: 40, 2: 0, 3: 0, 4: 40, 5: 72, 6: 112}[tile]
        if slot >= 3:
            base += 4
            slot -= 3
        return base, imm + slot * SLOT

    for (name, Na, Nb) in (('TT', 0, 0), ('TN', 0, 1), ('NT', 1, 0), ('NN', 1, 1)):
        a.restore(state)
        a.label(f'K1_{name}')
        epi_setup(a, name, Na, Nb)

        def wread(idx):
            s, t = (idx // 7) % NS, idx % 7
            b, imm = tile_addr(t, s)
            d = WF + (idx % NWF) * 4
            a(f'ds_read_b64_tr_b16 {vr(d, 2)}, v{b} offset:{imm}')
            a(f'ds_read_b64_tr_b16 {vr(d + 2, 2)}, v{b} offset:{imm + 1792}')

        def xread(s, rt):
            d = XF + (s % 2) * 16 + rt * 4
            off = (rt // 2) * 4096 + (rt % 2) * 512
            a(f'ds_read_b128 {vr(d)}, v{13 if s % 2 == 0 else 17} offset:{off}')

        DIST = 4
        a('s_barrier')
        a.stamp(3)
        if 'pf' in X: a('buffer_load_dword v28, v27, s[16:19], s28 offen', tag='untracked')
        pre = []

        def body():
            for s in range(NS):
                a('s_barrier')
                for t in range(7):
                    idx = s * 7 + t
                    wf = WF + (idx % NWF) * 4
                    N = Na if t < 2 else Nb
                    for rt in range(4):
                        xf = XF + (s % 2) * 16 + rt * 4
                        d = acc(rt, t)
                        if 'nocomp' in X:
                            continue
                        if N:
                            a(f'v_mfma_f32_16x16x32_bf16 {vr(d)}, {vr(xf)}, {vr(wf)}, {vr(d)}')
                        else:
                            a(f'v_mfma_f32_16x16x32_bf16 {vr(d)}, {vr(wf)}, {vr(xf)}, {vr(d)}')
                        if rt == 0 and 'nowr' not in X:
                            wread(idx + DIST)
                        if rt == 2 and t <= 3 and 'nowr' not in X:
                            xread(s + 1, t)
                        if 'pf' in X and rt == 1 and t == 6 and s in (0, 2):
                            sd = 29 if s == 0 else 34
                            a(f'buffer_load_dword v28, v27, s[16:19], s{sd} offen', tag='untracked')
                            a(f's_mov_b32 s{sd}, 0x7FF00000')
                        if rt == 1 and t == 5 and s % 2 == 0:
                            a(f's_add_u32 s79, s79, {XSLOT}'); a(f's_and_b32 s79, s79, {NX * XSLOT - 1}')
                            a('v_add_u32 v13, s79, v18'); a('v_xor_b32 v17, 64, v13')

        def tail():
            a('s_sub_u32 s73, s73, 1'); a('s_cmp_lg_u32 s73, 0'); a(f's_cbranch_scc1 K1_{name}_LOOP')
        for rt in range(3):
            xread(0, rt)
        wread(0); xread(0, 3); wread(1); wread(2); wread(3)
        n0 = len(a.lines); st = a.snapshot(); body(); tail(); back = a.snapshot(); del a.lines[n0:]; a.restore(st)
        a.waitcnt(lg=0 if ('nocomp' in X or 'nowr' in X) else len(back[5]))
        a.loop(f'K1_{name}_LOOP', body, tail)
        a.stamp(7)
        if 'noepi' not in X: epilogue(a, name, Na, Nb)
        a.stamp(4); a.stamp(5); a.stamp(6)
        a('s_branch K1_END' if 'lst' in X else 's_branch K1_FIN')
    a.label('K1_FIN')
    a.reset_state()
    a.stamp_flush(12, 0, 3, 36, 2, WS_PROF)
    a.label('K1_END')
    a('s_endpgm')
    return a


def epi_setup(a, name, Na, Nb):
    def dest_scalars(stype, shp, N, sd, tail):
        if N:
            a(f's_sub_u32 s58, s{stype}, 3'); a(f's_cmp_eq_u32 s{stype}, 2'); a('s_cselect_b32 s58, 0, s58')
            a(f's_mul_i32 s58, s58, {NIMG * 32}')
            a(f's_mul_i32 s59, s{shp}, {NIMG * 2}')
            a(f's_add_u32 s{sd}, s58, s59'); a(f's_add_u32 s{sd}, s{sd}, {WS_VA}')
        else:
            a(f's_cmp_eq_u32 s{stype}, 3'); a(f's_cselect_b32 s58, 2, s{stype}')
            if tail:
                a('s_lshl_b32 s58, s58, 18'); a(f's_lshl_b32 s59, s{shp}, 14')
                a(f's_add_u32 s{sd}, s58, s59'); a(f's_add_u32 s{sd}, s{sd}, {WS_QAT}')
            else:
                a('s_lshl_b32 s58, s58, 21'); a(f's_lshl_b32 s59, s{shp}, 17')
                a(f's_add_u32 s{sd}, s58, s59')
                assert WS_QAM == 0
    dest_scalars(56, 53, Na, 80, False)
    dest_scalars(57, 54, Nb, 81, False)
    dest_scalars(57, 55, Nb, 82, True)
    for st, sd in ((56, 30), (57, 32)):
        a(f's_cmp_eq_u32 s{st}, 0'); a(f's_cselect_b32 s{sd}, {QSCALE_BITS}, 1.0'); a(f's_mov_b32 s{sd+1}, s{sd}')
    a(f's_mov_b32 s74, {LOG2E_BITS}'); a(f's_mov_b32 s75, {LOG2E_BITS}'); a(f's_mov_b32 s76, {EPS_BITS}')
    a(f'v_mov_b32 v60, {NEG_EPS_LOG2E_BITS}'); a(f'v_mov_b32 v61, {NEG_EPS_LOG2E_BITS}')
    if (not Na) or (not Nb):
        a('v_and_b32 v6, 1, v21'); a('v_lshl_add_u32 v6, v6, 2, v20'); a('v_lshlrev_b32 v6, 4, v6')
        a('v_lshrrev_b32 v7, 1, v21'); a('v_lshl_add_u32 v22, v7, 9, v6')
        a('s_lshl_b32 s58, s77, 5'); a('v_add_u32 v22, s58, v22')
    if not Nb:
        a('v_add_u32 v6, s77, v20'); a('v_lshlrev_b32 v6, 3, v6'); a('v_lshl_add_u32 v23, v21, 14, v6')
        a('v_mov_b32 v7, 0x7FF00000'); a('v_cmp_gt_u32 vcc, s50, v21'); a('v_cndmask_b32 v23, v7, v23, vcc')
    if Na or Nb:
        a('s_lshr_b32 s58, s77, 3'); a('v_add_u32 v6, s58, v21'); a('v_mul_u32_u24 v6, 18, v6')
        a('v_and_b32 v7, 15, v2'); a('v_add_u32 v24, v6, v7'); a('v_lshlrev_b32 v24, 4, v24')
    if Nb:
        a('v_and_b32 v8, 1, v7'); a('v_add3_u32 v8, v6, v8, 16'); a('v_lshlrev_b32 v8, 4, v8')
        a('v_lshrrev_b32 v9, 1, v7'); a(f's_mov_b32 s58, {NIMG}'); a('v_mul_lo_u32 v9, v9, s58'); a('v_add_u32 v25, v8, v9')
        a('v_mov_b32 v8, 0x7FF00000'); a('v_lshrrev_b32 v9, 2, v7'); a('v_cmp_gt_u32 vcc, s50, v9')
        a('v_cndmask_b32 v25, v8, v25, vcc')
    if name == 'TT':
        a('v_add_u32 v6, s77, v20'); a('v_lshlrev_b32 v6, 2, v6')
        a('v_mov_b32 v7, 0x7FF00000'); a('v_cmp_eq_u32 vcc, 2, v21'); a('v_cndmask_b32 v26, v7, v6, vcc')
        a('s_lshl_b32 s58, s40, 1'); a('s_or_b32 s58, s58, s44')
        a('s_cmp_eq_u32 s58, 1'); a(f's_cselect_b32 s83, {WS_G}, 0x7FF00000' if False else f's_mov_b32 s83, {WS_G}')
        a('s_cselect_b32 s83, s83, 0x7FF00000')


def epilogue(a, name, Na, Nb):
    ST = ' sc1' if False else ''
    cnt = [0]

    def store_tile(tile):
        N = Na if tile < 2 else Nb
        sd = 80 if tile < 2 else (82 if tile == 2 else 81)
        hl = {0: 0, 1: 1, 2: 0, 3: 0, 4: 1, 5: 2, 6: 3}[tile]
        for G in range(2):
            X, Y = acc(2 * G, tile), acc(2 * G + 1, tile)
            t = 96 + (cnt[0] % 8) * 4
            cnt[0] += 1
            a(f'v_cvt_pk_bf16_f32 v{t}, v{X}, v{X+1}'); a(f'v_cvt_pk_bf16_f32 v{t+1}, v{X+2}, v{X+3}')
            a(f'v_cvt_pk_bf16_f32 v{t+2}, v{Y}, v{Y+1}'); a(f'v_cvt_pk_bf16_f32 v{t+3}, v{Y+2}, v{Y+3}')
            if N:
                voff = 25 if tile == 2 else 24
                a(f's_add_u32 s58, s{sd}, {hl * NIMG + G * 4 * 288}')
                a(f'buffer_store_dwordx4 {vr(t)}, v{voff}, s[24:27], s58 offen{ST}')
            elif tile == 2:
                a(f'buffer_store_dwordx2 {vr(t, 2)}, v23, s[24:27], s{sd} offen offset:{G * 256}{ST}')
                a(f'buffer_store_dwordx2 {vr(t + 2, 2)}, v23, s[24:27], s{sd} offen offset:{G * 256 + 32}{ST}')
            else:
                a(f's_add_u32 s58, s{sd}, {hl * 65536 + G * 1024}')
                a(f'v_permlane16_swap_b32 v{t}, v{t+2}')
                a(f'v_permlane16_swap_b32 v{t+1}, v{t+3}')
                a(f'buffer_store_dwordx4 {vr(t)}, v22, s[24:27], s58 offen{ST}')

    a.waitcnt(lg=0)
    if name == 'TT':
        for rt in range(4):
            a(f'v_mul_f32 v{50+rt}, 0xBFB8AA3B, v{acc(rt, 2)}')
        for rt in range(4):
            a(f'v_exp_f32 v{50+rt}, v{50+rt}')
        for rt in range(4):
            a(f'v_add_f32 v{50+rt}, 1.0, v{50+rt}')
        for rt in range(4):
            a(f'v_rcp_f32 v{50+rt}, v{50+rt}')
        for rt in range(4):
            a(f'buffer_store_dword v{50+rt}, v26, s[24:27], s83 offen offset:{(rt // 2) * 128 + (rt % 2) * 16}')
    for seg, tiles, sphi, ssc in (('a', (0, 1), 66, 30), ('b', (2, 3, 4, 5, 6), 67, 32)):
        N = Na if seg == 'a' else Nb
        lab = f'K1_{name}_{seg}'
        a(f's_cmp_eq_u32 s{sphi}, 0')
        a(f's_cbranch_scc1 {lab}_nophi')
        st = a.snapshot()
        c0 = cnt[0]
        for tile in tiles:
            T = 64
            rr = [ACC + tile * 16 + r for r in range(16)]
            for k in range(0, 16, 2):
                a(f'v_pk_fma_f32 v[{T+k}:{T+k+1}], v[{rr[k]}:{rr[k]+1}], s[74:75], v[60:61]')
            for k in range(16):
                a(f'v_exp_f32_e64 v{T+k}, v{T+k} clamp')
                a(f'v_max_f32 v{rr[k]}, s76, v{rr[k]}')
            for k in range(0, 16, 2):
                a(f'v_pk_add_f32 v[{rr[k]}:{rr[k]+1}], v[{rr[k]}:{rr[k]+1}], v[{T+k}:{T+k+1}]')
            store_tile(tile)
        a(f's_branch {lab}_done')
        st1 = a.snapshot()
        a.restore(st)
        cnt[0] = c0
        a.label(f'{lab}_nophi')
        for tile in tiles:
            if not N:
                for k in range(0, 16, 2):
                    r = ACC + tile * 16 + k
                    a(f'v_pk_mul_f32 v[{r}:{r+1}], v[{r}:{r+1}], s[{ssc}:{ssc+1}]')
            store_tile(tile)
        a.label(f'{lab}_done')
        a.nop(2)


DESC = """
.amdhsa_kernel qkv_kernel
  .amdhsa_next_free_vgpr 240
  .amdhsa_next_free_sgpr 102
  .amdhsa_accum_offset 240
  .amdhsa_group_segment_fixed_size 0
  .amdhsa_kernarg_size 80
  .amdhsa_user_sgpr_count 2
  .amdhsa_user_sgpr_kernarg_segment_ptr 1
  .amdhsa_system_sgpr_workgroup_id_x 1
.end_amdhsa_kernel
"""
BLOCK = 512
```

```python
from asmlib import Asm
from layout import *

KM_L = 0
KT_L = 65536
V_L = 73728
KVP_L = V_L + NIMG
LDS2 = KVP_L + 8 * 1520
assert LDS2 <= 163840

SA, SB = 32, 64
O = 96
KM = 112
VF = 120
KT = 136
QM, QT = 138, 142
QBM, QBT = 144, 148
IDX = 150
G = 151
KVB = 152
KVA = 184
NV2 = 216
VROW = 288


def vr(b, n=4):
    return f'v[{b}:{b+n-1}]'


def gen(prof=False, X=()):
    a = Asm()
    a.prof = prof
    a.raw('.p2align 8')
    a.raw('.globl attn_kernel')
    a.raw('.type attn_kernel,@function')
    a.label('attn_kernel')
    a('s_cmp_ge_u32 s2, 256')
    a('s_cbranch_scc1 K2_END')
    a.stamp(0, real=True); a.stamp(1)
    a('s_load_dwordx2 s[4:5], s[0:1], 72')
    a('s_load_dwordx2 s[6:7], s[0:1], 16')
    a('s_load_dwordx2 s[8:9], s[0:1], 40')
    a('v_lshrrev_b32 v1, 6, v0')
    a('v_and_b32 v2, 63, v0')
    a('v_readfirstlane_b32 s36, v1')
    a('s_and_b32 s37, s2, 7')
    a('s_lshl_b32 s37, s37, 2')
    a('s_lshr_b32 s38, s2, 3')
    a('s_and_b32 s39, s38, 3')
    a('s_add_u32 s37, s37, s39')
    a('s_lshr_b32 s38, s38, 2')
    a('v_lshlrev_b32 v3, 4, v2')
    a('v_lshlrev_b32 v7, 3, v2')
    a('v_and_b32 v8, 31, v2')
    a('v_lshrrev_b32 v9, 5, v2')
    a('s_lshl_b32 s40, s36, 10')
    a('s_lshl_b32 s41, s37, 16')
    a('s_lshl_b32 s42, s38, 3'); a('s_add_u32 s42, s42, s36')
    a('s_lshl_b32 s43, s42, 10'); a('s_add_u32 s43, s43, s41')
    a('s_lshr_b32 s44, s37, 1'); a('s_lshl_b32 s44, s44, 14')
    a('s_and_b32 s45, s37, 1'); a('s_lshl_b32 s45, s45, 2'); a('s_add_u32 s44, s44, s45')
    a('s_lshl_b32 s45, s42, 8'); a('s_add_u32 s45, s45, s44')
    a('v_lshlrev_b32 v10, 3, v8')
    a('s_add_u32 s46, s41, s40'); a(f's_add_u32 s46, s46, {WS_KAM}')
    a('s_lshl_b32 s47, s36, 9'); a('s_add_u32 s47, s47, s44'); a(f's_add_u32 s47, s47, {WS_KAT}')
    a(f's_mul_i32 s48, s37, {NIMG}')
    a('s_add_u32 s49, s48, s40'); a(f's_add_u32 s49, s49, {WS_VA}')
    a('s_lshl_b32 s50, s36, 8')
    a(f's_add_u32 s51, s45, {WS_QAT}')
    a.waitcnt(lg=0)
    a('s_mov_b32 s16, s4'); a('s_mov_b32 s17, s5'); a(f's_mov_b32 s18, {WS_END}'); a('s_mov_b32 s19, 0x00020000')

    def dma(kind, r, tag):
        if kind == 'KM':
            a(f's_add_u32 m0, s40, {KM_L + r * 8192}'); a(f's_add_u32 s52, s46, {r * 8192}')
            a('buffer_load_dwordx4 v3, s[16:19], s52 offen lds', tag=tag)
        elif kind == 'V':
            a(f's_add_u32 m0, s40, {V_L + r * 8192}'); a(f's_add_u32 s52, s49, {r * 8192}')
            a('buffer_load_dwordx4 v3, s[16:19], s52 offen lds', tag=tag)
        else:
            a(f's_add_u32 m0, s50, {KT_L + r * 2048}'); a(f's_add_u32 s52, s47, {r * 4096}')
            a('buffer_load_dword v7, s[16:19], s52 offen lds', tag=tag)
    dma('KM', 0, 'pre'); dma('KT', 0, 'pre')
    a(f'buffer_load_dwordx4 {vr(QM)}, v3, s[16:19], s43 offen', tag='pre')
    a(f'buffer_load_dword v{QT}, v10, s[16:19], s51 offen', tag='pre')
    dma('V', 0, 'pre')
    dma('V', 1, 'p-1'); dma('KM', 1, 'p-1')
    a('v_mov_b32 v11, 0x7FF00000')
    a('v_cmp_eq_u32 vcc, 0, v9')
    a('v_cndmask_b32 v11, v11, v10, vcc')
    a('v_lshlrev_b32 v12, 2, v8')
    a('v_lshlrev_b32 v4, 2, v2'); a(f'v_add_u32 v4, {KT_L}, v4')
    a('v_min_u32 v14, 17, v8')
    a('v_mul_u32_u24 v16, 18, v9')
    a('v_add_u32 v17, v14, v16'); a('v_lshlrev_b32 v17, 4, v17')
    a(f'v_add_u32 v5, {V_L}, v17')
    a(f'v_add_u32 v6, {V_L + 128 * VROW}, v17')
    a('s_mov_b32 s34, 0x3FFFF'); a('s_mov_b32 s35, 0x3FFFF')
    a(f'v_mov_b32 v{IDX}, 0xDDDD')
    a(f'v_mov_b32 v{KT+1}, 0x3F80')
    a(f'v_mov_b32 v{QT+1}, 0')
    a(f'v_mov_b32 v{QBT+1}, 0')
    a('v_mov_b32 v15, 0'); a('v_mov_b32 v14, 0x3F803F80')
    a('v_cmp_eq_u32 vcc, 18, v8'); a('v_cndmask_b32 v13, v15, v14, vcc')
    a('v_cmp_eq_u32 vcc, 28, v8'); a('v_cndmask_b32 v15, v13, v14, vcc')
    for r in range(16):
        a(f'v_mov_b32 v{VF+r}, v15')
    for r in range(16):
        a(f'v_mov_b32 v{O+r}, 0')
    for r in range(16):
        a(f'v_mov_b32 v{KVA+r}, 0')
    for st in range(4):
        for r in range(4):
            a(f'v_mov_b32 v{KVB+8*st+r}, 0')
            a(f'v_mov_b32 v{KVB+8*st+4+r}, v13')

    def wo_setup():
        a('s_lshl_b32 s53, s2, 3'); a('s_add_u32 s53, s53, s36')
        a(f's_mul_hi_u32 s54, s53, {-(-(1 << 32) // 36)}')
        a('s_mul_i32 s55, s54, 36'); a('s_sub_u32 s55, s53, s55')
        a('s_cmp_ge_u32 s55, 18')
        a('s_cselect_b32 s20, s8, s6'); a('s_cselect_b32 s21, s9, s7')
        a('s_cselect_b32 s56, 18, 0'); a('s_sub_u32 s55, s55, s56')
        a(f's_mov_b32 s22, {576*1152}'); a('s_mov_b32 s23, 0x00020000')
        a('s_mul_i32 s56, s55, 36')
        a('s_mul_i32 s57, s55, 288'); a(f's_sub_u32 s57, s57, {288*16-16}')
        a('s_cmp_ge_u32 s55, 16')
        a('s_cselect_b32 s56, s57, s56')
        a('s_cselect_b32 s57, 144, 20')
        a('s_cselect_b32 s58, 72, 8')
        a('s_cselect_b32 s59, 36, 4')
        a('s_mul_i32 s59, s59, 1152')
        a('v_mul_lo_u32 v13, v9, s57')
        a('v_bfe_u32 v14, v2, 4, 1')
        a('v_mul_lo_u32 v14, v14, s58')
        a('v_add3_u32 v13, v13, v14, s56')
        a('v_mul_u32_u24 v13, 1152, v13')
        a('v_and_b32 v14, 15, v2')
        a('v_lshl_add_u32 v13, v14, 1, v13')
        a('s_lshl_b32 s56, s54, 5')
        a('s_cmp_lt_u32 s53, 1296')
        a('s_cselect_b32 s56, s56, 0x7FF00000')
        a('v_add_u32 v13, s56, v13')
        a('s_lshl_b32 s60, s53, 10'); a(f's_add_u32 s60, s60, {WS_WOT}')
        a('s_cmp_lt_u32 s53, 1296')
        a('s_cselect_b32 s60, s60, 0x7FF00000')
    wo_setup()

    def rd_kt(D):
        if 'nods' in X and D > 1: return
        a(f'ds_read_b32 v{KT}, v4 offset:{D * 256}')

    def rd_km(D, i):
        if 'nods' in X and D > 1: return
        a(f'ds_read_b128 {vr(KM + 4 * i)}, v3 offset:{(2 * D + i) * 1024}')

    def rd_v(D, i):
        c = 8 * D + 2 * i
        if 'nods' in X and D > 1: return
        if 'noexec' not in X: a('s_mov_b64 exec, s[34:35]')
        if c >= 128:
            a(f'ds_read_b128 {vr(VF + 4 * i)}, v6 offset:{(c - 128) * VROW}')
        else:
            a(f'ds_read_b128 {vr(VF + 4 * i)}, v5 offset:{c * VROW}')
        if 'noexec' not in X: a('s_mov_b64 exec, -1')

    def qk2b(S): a(f'v_mfma_f32_32x32x4_2b_bf16 {vr(S, 32)}, {vr(KT, 2)}, {vr(QT, 2)}, 0')
    def qk(S, i): a(f'v_mfma_f32_32x32x16_bf16 {vr(S + 16 * i, 16)}, {vr(KM + 4 * i)}, {vr(QM)}, {vr(S + 16 * i, 16)}')
    def pv(S, i): a(f'v_smfmac_f32_32x32x32_bf16 {vr(O, 16)}, {vr(VF + 4 * i)}, {vr(S + 8 * i, 8)}, v{IDX}')

    def rowmax(S, dst, tmp):
        a(f'v_max3_f32 v{dst}, v{S}, v{S+1}, v{S+2}')
        a(f'v_max3_f32 v{tmp}, v{S+3}, v{S+4}, v{S+5}')
        for k in range(6, 30, 4):
            a(f'v_max3_f32 v{dst}, v{S+k}, v{S+k+1}, v{dst}')
            a(f'v_max3_f32 v{tmp}, v{S+k+2}, v{S+k+3}, v{tmp}')
        a(f'v_max3_f32 v{dst}, v{S+30}, v{S+31}, v{dst}')
        a(f'v_max_f32 v{dst}, v{dst}, v{tmp}')
        a(f'v_mov_b32 v{tmp}, v{dst}')
        a(f'v_permlane32_swap_b32 v{dst}, v{tmp}')
        a(f'v_max_f32 v{dst}, v{dst}, v{tmp}')

    a.stamp(2)
    a.wait_vm_tag('pre')
    a('s_barrier')
    a.stamp(3)
    rd_kt(0); rd_km(0, 0); rd_km(0, 1)
    for i in range(4):
        rd_v(0, i)
    qk2b(SB); qk(SB, 0); qk(SB, 1)
    rowmax(SB, 18, 19)
    a('v_xor_b32 v18, 0x80000000, v18')
    a(f'v_lshrrev_b32 v{QT+1}, 16, v18')
    qk2b(SA); rd_kt(1)
    qk(SA, 0); rd_km(1, 0)
    qk(SA, 1); rd_km(1, 1)

    sched = {0: [('V', 2), ('KM', 2), ('KT', 1)], 1: [('V', 3), ('KM', 3), ('V', 4)], 2: [('KM', 4), ('KT', 2), ('V', 5)],
             3: [('KM', 5), ('V', 6), ('KM', 6)], 4: [('KT', 3), ('V', 7), ('KM', 7)], 5: [('V', 8)]}
    syncs = {2: 'p-1', 4: 'p1', 8: 'p5'}
    avail = {'KM': 256, 'KT': 512, 'V': 8192 // VROW * 8}
    issued = {'pre': [('KM', 0), ('KT', 0), ('V', 0)], 'p-1': [('V', 1), ('KM', 1)]}
    order = ['pre', 'p-1']

    def kv_load(st):
        if 'nokv' in X: return
        b = st % 4
        if b == 0:
            a(f's_mul_i32 s61, s36, {32 * VROW}'); a('s_add_u32 s61, s61, s48')
            a(f's_add_u32 s62, s61, {WS_KB + st * 2 * VROW}'); a(f's_add_u32 s63, s61, {WS_VB + st * 2 * VROW}')
        a('s_mov_b64 exec, s[34:35]')
        a(f'buffer_load_dwordx4 {vr(KVB + 8 * b)}, v17, s[16:19], s62 offen offset:{b * 2 * VROW}')
        a(f'buffer_load_dwordx4 {vr(KVB + 8 * b + 4)}, v17, s[16:19], s63 offen offset:{b * 2 * VROW}')
        a('s_mov_b64 exec, -1')

    def kv_mfma(st):
        if 'nokv' in X: return
        b = st % 4
        a(f'v_mfma_f32_32x32x16_bf16 {vr(KVA, 16)}, {vr(KVB + 8 * b)}, {vr(KVB + 8 * b + 4)}, {vr(KVA, 16)}')

    KV0 = 6
    for D in range(32):
        Sc, Sn = (SA, SB) if D % 2 == 0 else (SB, SA)
        more = D + 1 < 32
        if D in (0, 4, 12, 28): a.stamp({0: 4, 4: 5, 12: 6, 28: 7}[D])
        if D in syncs:
            a.wait_vm_tag(syncs[D])
            a('s_barrier')
            for tg in order[:order.index(syncs[D]) + 1]:
                for (k, r) in issued[tg]:
                    if k == 'V':
                        avail['V'] = max(avail['V'], min(2048, (r + 1) * 8192 // VROW * 8))
                    else:
                        avail[k] = max(avail[k], (r + 1) * (256 if k == 'KM' else 512))
        if D + 2 < 32:
            assert (D + 3) * 64 <= avail['KM'] and (D + 3) * 64 <= avail['KT'], (D, avail)
        if more:
            assert (D + 2) * 64 <= avail['V'], (D, avail)
        dl = list(sched.get(D, []))
        if dl:
            issued[f'p{D}'] = list(dl); order.append(f'p{D}')

        def slot():
            if dl:
                k, r = dl.pop(0)
                dma(k, r, f'p{D}')

        def ex(lo, hi):
            for r in range(lo, hi):
                if 'noexp' in X and r % 2: continue
                a(f'v_exp_f32 v{Sc+r}, v{Sc+r}')
        if D == 5:
            for j in range(8):
                so = '0' if j < 4 else 's59'
                a(f'buffer_load_ushort v{200+j}, v13, s[20:23], {so} offen offset:{(j % 4) * 1152}', tag='p5')
            a(f's_add_u32 s51, s43, {WS_QBM}')
            a(f'buffer_load_dwordx4 {vr(QBM)}, v3, s[16:19], s51 offen', tag='p5')
            a(f's_add_u32 s51, s45, {WS_QBT}')
            a(f'buffer_load_dword v{QBT}, v11, s[16:19], s51 offen', tag='p5')
            a('s_lshl_b32 s51, s42, 7'); a(f's_add_u32 s51, s51, {WS_G}')
            a(f'buffer_load_dword v{G}, v12, s[16:19], s51 offen', tag='p5')
        if D == 9:
            for j in range(4):
                a(f'v_lshl_or_b32 v{200+j}, v{201+2*j}, 16, v{200+2*j}')
            a(f'buffer_store_dwordx4 v[200:203], v3, s[16:19], s60 offen')
        if D == 26:
            a('v_mul_u32_u24 v18, 80, v8'); a('v_lshl_add_u32 v18, v9, 4, v18')
            a('s_mul_i32 s61, s36, 1520'); a(f's_add_u32 s61, s61, {KVP_L}'); a('v_add_u32 v18, s61, v18')
            a('s_mov_b32 exec_lo, 0x7FFFF'); a('s_mov_b32 exec_hi, 0x7FFFF')
            a(f'ds_write_b128 v18, {vr(KVA)}')
            a(f'ds_write_b128 v18, {vr(KVA + 4)} offset:32')
            a('s_mov_b32 exec_hi, 0')
            a(f'ds_write_b64 v18, {vr(KVA + 8, 2)} offset:64')
            a('s_mov_b64 exec, -1')
        if D == 27:
            a.waitcnt(lg=0)
            a('s_barrier')
            a('v_min_u32 v18, 379, v0'); a('v_lshlrev_b32 v18, 2, v18'); a(f'v_add_u32 v18, {KVP_L}, v18')
            for k in range(8):
                a(f'ds_read_b32 v{KVB+k}, v18 offset:{k * 1520}')
        if D == 28:
            for k in range(1, 8):
                a(f'v_add_f32 v{KVB}, v{KVB}, v{KVB+k}')
            a(f'ds_write_b32 v18, v{KVB}')
        if D == 29:
            a.waitcnt(lg=0)
            a('s_barrier')
            a('v_min_u32 v18, 18, v8'); a('v_mul_u32_u24 v18, 80, v18'); a(f'v_add_u32 v19, {KVP_L}, v18')
            a('v_lshl_add_u32 v18, v9, 5, v19')
            a(f'ds_read_b128 {vr(KVB)}, v18'); a(f'ds_read_b128 {vr(KVB + 4)}, v18 offset:16')
            a(f'ds_read_b64 {vr(KVB + 8, 2)}, v19 offset:64')
        if D == 30:
            for k in range(5):
                a(f'v_cvt_pk_bf16_f32 v{KVB+12+k}, v{KVB+2*k}, v{KVB+2*k+1}')
            a(f'v_mov_b32 v{KVB+17}, 0')

        Sp = Sn
        if D > 0:
            pv(Sp, 3)
            rd_v(D, 3)
        ex(0, 4)
        if more:
            qk2b(Sn)
            if D + 2 < 32: rd_kt(D + 2)
        slot()
        ex(4, 12)
        pv(Sc, 0)
        if more: rd_v(D + 1, 0)
        ex(12, 16)
        if more:
            qk(Sn, 0)
            if D + 2 < 32: rd_km(D + 2, 0)
        slot()
        ex(16, 20)
        pv(Sc, 1)
        if more: rd_v(D + 1, 1)
        ex(20, 24)
        if more:
            qk(Sn, 1)
            if D + 2 < 32: rd_km(D + 2, 1)
        else:
            a(f'v_mfma_f32_32x32x16_bf16 {vr(KVA, 16)}, {vr(KVB + 12)}, {vr(QBM)}, 0')
        slot()
        ex(24, 28)
        pv(Sc, 2)
        ex(28, 30)
        st = D - KV0 - 3
        if 0 <= st < 16:
            kv_mfma(st)
        if not more:
            a(f'v_mfma_f32_32x32x8bf16_1k {vr(KVA, 16)}, {vr(KVB + 16, 2)}, {vr(QBT, 2)}, {vr(KVA, 16)}')
        ex(30, 32)
        if more: rd_v(D + 1, 2)
        st = D - KV0
        if 0 <= st < 16:
            kv_load(st)
    pv(SB, 3)

    a('v_cmp_eq_u32 vcc, 0, v9')
    a(f'v_cndmask_b32 v18, v{O+12}, v{O+10}, vcc')
    a(f'v_mul_f32 v19, 0, v{O}')
    for r in range(1, 10):
        a(f'v_fmac_f32 v19, 0, v{O+r}')
    a('v_add_f32 v19, v19, v18')
    a('v_mov_b32 v20, 0x5F800000')
    a('v_cmp_nlt_f32 vcc, v19, v20')
    a('s_cmp_lg_u64 vcc, 0')
    if not X: a('s_cbranch_scc1 K2_SLOW')
    a.label('K2_EPI')
    a.nop(2)
    a('v_rcp_f32 v18, v18')
    a('v_cmp_eq_u32 vcc, 0, v9')
    a(f'v_cndmask_b32 v19, v{KVA+12}, v{KVA+10}, vcc')
    a(f'v_add_f32 v19, {EPS_BITS}, v19')
    a('v_rcp_f32 v19, v19')
    a(f'v_mul_f32 v18, v18, v{G}')
    a(f'v_sub_f32 v20, 1.0, v{G}')
    a('v_mul_f32 v19, v19, v20')
    a('v_lshrrev_b32 v20, 4, v8'); a('v_mul_u32_u24 v20, 36864, v20')
    a('v_and_b32 v21, 15, v8'); a('v_lshl_add_u32 v20, v21, 4, v20')
    a('v_lshl_add_u32 v21, v9, 8, v20')
    a('v_mul_u32_u24 v22, 18432, v9'); a('v_add_u32 v22, v22, v20')
    a('s_mul_i32 s61, s42, 73728'); a(f's_add_u32 s61, s61, {WS_OG}')
    a('s_lshr_b32 s62, s37, 1'); a('s_lshl_b32 s62, s62, 10')
    a('s_and_b32 s63, s37, 1'); a('s_lshl_b32 s63, s63, 9'); a('s_add_u32 s62, s62, s63')
    a('s_add_u32 s62, s62, s61')
    a('s_add_u32 s63, s62, 18432')
    a('s_lshr_b32 s64, s37, 4'); a('s_lshl_b32 s64, s64, 10')
    a('s_bfe_u32 s65, s37, 0x20002'); a('s_lshl_b32 s65, s65, 8'); a('s_add_u32 s64, s64, s65')
    a('s_and_b32 s65, s37, 3'); a('s_lshl_b32 s65, s65, 2'); a('s_add_u32 s64, s64, s65')
    a('s_add_u32 s64, s64, s61'); a('s_add_u32 s64, s64, 16384')
    for (src, sc, T, so) in ((O, 18, 24, 62), (KVA, 19, 28, 63)):
        for r in range(10):
            a(f'v_mul_f32 v{src+r}, v{src+r}, v{sc}')
        for k in range(4):
            a(f'v_cvt_pk_bf16_f32 v{T+k}, v{src+2*k}, v{src+2*k+1}')
        a(f'v_cvt_pk_bf16_f32 v{src+8}, v{src+8}, v{src+9}')
        a(f'v_permlane32_swap_b32 v{T}, v{T+2}')
        a(f'v_permlane32_swap_b32 v{T+1}, v{T+3}')
        a(f'buffer_store_dwordx4 {vr(T)}, v21, s[16:19], s{so} offen')
    a(f'v_permlane32_swap_b32 v{O+8}, v{KVA+8}')
    a(f'buffer_store_dword v{O+8}, v22, s[16:19], s64 offen')
    a.stamp_flush(4, 1, 3, 36, 2, WS_PROF)
    a.label('K2_END')
    a('s_endpgm')

    a.label('K2_SLOW')
    a.fence()
    a(f'v_mov_b32 v{QT+1}, 0')
    a('v_mov_b32 v20, 0xFF800000')
    for r in range(16):
        a(f'v_mov_b32 v{O+r}, 0')
    a('v_mov_b32 v21, v3'); a('v_mov_b32 v22, v4'); a('v_mov_b32 v23, v5')
    a('s_mov_b32 s61, 32')
    a.label('K2_SLOW_LOOP')
    a.fence()
    a(f'ds_read_b32 v{KT}, v22')
    a(f'ds_read_b128 {vr(KM)}, v21'); a(f'ds_read_b128 {vr(KM + 4)}, v21 offset:1024')
    a('s_mov_b64 exec, s[34:35]')
    for i in range(4):
        a(f'ds_read_b128 {vr(VF + 4 * i)}, v23 offset:{i * 2 * VROW}')
    a('s_mov_b64 exec, -1')
    qk2b(SA); qk(SA, 0); qk(SA, 1)
    rowmax(SA, 18, 19)
    a('v_max_f32 v18, v18, v20')
    a('v_sub_f32 v19, v20, v18'); a('v_exp_f32 v19, v19')
    a('v_mov_b32 v20, v18')
    for r in range(32):
        a(f'v_sub_f32 v{SA+r}, v{SA+r}, v18')
    for r in range(32):
        a(f'v_exp_f32 v{SA+r}, v{SA+r}')
    for r in range(16):
        a(f'v_mul_f32 v{O+r}, v{O+r}, v19')
    for i in range(4):
        pv(SA, i)
    a('v_add_u32 v21, 2048, v21'); a('v_add_u32 v22, 256, v22'); a(f'v_add_u32 v23, {8 * VROW}, v23')
    a('s_sub_u32 s61, s61, 1'); a('s_cmp_lg_u32 s61, 0'); a('s_cbranch_scc1 K2_SLOW_LOOP')
    a.fence()
    a('v_cmp_eq_u32 vcc, 0, v9')
    a(f'v_cndmask_b32 v18, v{O+12}, v{O+10}, vcc')
    a.hazard_fence()
    a('s_branch K2_EPI')
    return a


DESC = f"""
.amdhsa_kernel attn_kernel
  .amdhsa_next_free_vgpr {NV2}
  .amdhsa_next_free_sgpr 102
  .amdhsa_accum_offset {NV2}
  .amdhsa_group_segment_fixed_size 0
  .amdhsa_kernarg_size 80
  .amdhsa_user_sgpr_count 2
  .amdhsa_user_sgpr_kernarg_segment_ptr 1
  .amdhsa_system_sgpr_workgroup_id_x 1
.end_amdhsa_kernel
"""
```

```python
from asmlib import Asm
from layout import *

LDS3 = 4 * 3 * 5 * 1024
OGF = 16
ACC = 160
NV = 240
NA = 180


def vr(b, n=4, p='v'):
    return f'{p}[{b}:{b+n-1}]'


def gen(prof=False):
    a = Asm()
    a.prof = prof
    a.raw('.p2align 8')
    a.raw('.globl oproj_kernel')
    a.raw('.type oproj_kernel,@function')
    a.label('oproj_kernel')
    a('s_cmp_ge_u32 s2, 256')
    a('s_cbranch_scc1 K3_END')
    a.stamp(0, real=True); a.stamp(1)
    a('s_load_dwordx2 s[4:5], s[0:1], 72')
    a('s_load_dwordx2 s[6:7], s[0:1], 56')
    a('v_lshrrev_b32 v1, 6, v0')
    a('v_and_b32 v2, 63, v0')
    a('v_readfirstlane_b32 s36, v1')
    a('s_and_b32 s37, s2, 7'); a('s_lshl_b32 s37, s37, 2')
    a('s_lshr_b32 s38, s2, 3')
    a('s_and_b32 s39, s38, 3'); a('s_add_u32 s37, s37, s39')
    a('s_lshr_b32 s38, s38, 2')
    a('s_mul_i32 s39, s38, 5'); a('s_lshl_b32 s40, s38, 2'); a('s_add_u32 s40, s40, 4')
    a('s_cmp_lt_u32 s38, 4'); a('s_cselect_b32 s39, s39, s40')
    a('v_lshlrev_b32 v3, 4, v2')
    a('s_mul_i32 s41, s36, 9216')
    a('s_mul_i32 s42, s39, 36864'); a('s_add_u32 s42, s42, s41'); a(f's_add_u32 s42, s42, {WS_WOT}')
    a('s_mul_i32 s43, s37, 147456'); a('s_add_u32 s43, s43, s41'); a(f's_add_u32 s43, s43, {WS_OG}')
    for r in range(4):
        a(f's_add_u32 s44, s36, {r}'); a('s_and_b32 s44, s44, 3')
        a(f's_mul_i32 s{48+r}, s44, 36864'); a(f's_add_u32 s{48+r}, s{48+r}, s43')
        if r:
            a(f's_mul_i32 s{52+r}, s44, 15360'); a(f's_add_u32 s{52+r}, s{52+r}, {(r-1)*5120}')
    a.waitcnt(lg=0)
    a('s_mov_b32 s16, s4'); a('s_mov_b32 s17, s5'); a(f's_mov_b32 s18, {WS_END}'); a('s_mov_b32 s19, 0x00020000')
    a('s_mov_b32 s20, s6'); a('s_mov_b32 s21, s7'); a(f's_mov_b32 s22, {2048*1152}'); a('s_mov_b32 s23, 0x00020000')
    a('s_cmp_ge_u32 s38, 4'); a('s_cbranch_scc1 K3_N4')
    import copy
    state = (a.t, dict(a.w), dict(a.cread), dict(a.storedata), copy.deepcopy(a.vm), list(a.lg), list(a.smem))
    for NT in (5, 4):
        a.t, a.w, a.cread, a.storedata = state[0], dict(state[1]), dict(state[2]), dict(state[3])
        a.vm, a.lg, a.smem = copy.deepcopy(state[4]), list(state[5]), list(state[6])
        a.label(f'K3_N{NT}')

        def loads(ks):
            g, o = ks // 4, (ks % 4) * 1024
            for r in range(4):
                if o == 0 and g:
                    a(f's_add_u32 s{48+r}, s{48+r}, 4096')
                a(f'buffer_load_dwordx4 {vr(OGF + (ks * 4 + r) * 4)}, v3, s[16:19], s{48+r} offen offset:{o}')
            for nt in range(NT):
                if o == 0:
                    a(f's_add_u32 s{60+nt}, s42, {nt * 36864 + g * 4096}')
                a(f'buffer_load_dwordx4 {vr((ks * 5 + nt) * 4, 4, "a")}, v3, s[16:19], s{60+nt} offen offset:{o}')

        def mfmas(ks):
            for nt in range(NT):
                for r in range(4):
                    d = ACC + (nt * 4 + r) * 4
                    c = '0' if ks == 0 else vr(d)
                    a(f'v_mfma_f32_16x16x32_bf16 {vr(d)}, {vr((ks * 5 + nt) * 4, 4, "a")}, {vr(OGF + (ks * 4 + r) * 4)}, {c}')
        AHEAD = 6
        for ks in range(AHEAD):
            loads(ks)
        a('v_and_b32 v4, 15, v2'); a('v_lshrrev_b32 v5, 4, v2')
        a('s_lshl_b32 s44, s37, 2'); a('s_add_u32 s44, s44, s36'); a('s_lshl_b32 s44, s44, 4')
        a('v_add_u32 v4, s44, v4'); a('v_mul_u32_u24 v4, 1152, v4')
        a('s_lshl_b32 s44, s39, 5'); a('v_add_u32 v4, s44, v4')
        a('v_lshl_add_u32 v6, v5, 3, v4')
        a('v_and_b32 v7, 1, v5'); a('v_lshl_add_u32 v4, v7, 5, v4')
        a('v_lshrrev_b32 v7, 1, v5'); a('v_lshl_add_u32 v4, v7, 4, v4')
        for r in range(1, 4):
            a(f'v_add_u32 v{8+r}, s{52+r}, v3')
        a('s_mul_i32 s44, s36, 15360'); a('v_add_u32 v8, s44, v3')
        a.stamp(2)
        for ks in range(9):
            if ks in (1, 5): a.stamp({1: 3, 5: 4}[ks])
            if ks + AHEAD < 9:
                loads(ks + AHEAD)
            mfmas(ks)
        a.stamp(5)
        for r in range(1, 4):
            for nt in range(NT):
                a(f'ds_write_b128 v{8+r}, {vr(ACC + (nt * 4 + r) * 4)} offset:{nt * 1024}')
        a.waitcnt(lg=0)
        a('s_barrier')
        a.stamp(6)
        a.stamp(7)
        for nt in range(NT):
            for j in range(3):
                a(f'ds_read_b128 {vr(OGF + (nt * 3 + j) * 4)}, v8 offset:{j * 5120 + nt * 1024}')
        for nt in range(NT):
            d = ACC + nt * 16
            for j in range(3):
                s = OGF + (nt * 3 + j) * 4
                a(f'v_pk_add_f32 v[{d}:{d+1}], v[{d}:{d+1}], v[{s}:{s+1}]')
                a(f'v_pk_add_f32 v[{d+2}:{d+3}], v[{d+2}:{d+3}], v[{s+2}:{s+3}]')
            t = 100 + nt * 2
            a(f'v_cvt_pk_bf16_f32 v{t}, v{d}, v{d+1}'); a(f'v_cvt_pk_bf16_f32 v{t+1}, v{d+2}, v{d+3}')
            if nt % 2 == 1:
                t0 = t - 2
                a(f'v_permlane16_swap_b32 v{t0}, v{t0+2}'); a(f'v_permlane16_swap_b32 v{t0+1}, v{t0+3}')
                a(f'buffer_store_dwordx4 {vr(t0)}, v4, s[20:23], 0 offen offset:{(nt - 1) * 32}')
            elif nt == 4:
                a(f'buffer_store_dwordx2 {vr(t, 2)}, v6, s[20:23], 0 offen offset:128')
        a('s_branch K3_FIN')
    a.label('K3_FIN')
    a.reset_state()
    a.stamp_flush(4, 2, 3, 36, 2, WS_PROF)
    a.label('K3_END')
    a('s_endpgm')
    return a


DESC = f"""
.amdhsa_kernel oproj_kernel
  .amdhsa_next_free_vgpr {NV + NA}
  .amdhsa_next_free_sgpr 102
  .amdhsa_accum_offset {NV}
  .amdhsa_group_segment_fixed_size 0
  .amdhsa_kernarg_size 80
  .amdhsa_user_sgpr_count 2
  .amdhsa_user_sgpr_kernarg_segment_ptr 1
  .amdhsa_system_sgpr_workgroup_id_x 1
.end_amdhsa_kernel
"""
```

```python
import sys, os
sys.path.insert(0, os.path.dirname(os.path.abspath(__file__)))
import k1, k2, k3
NAME = 'gated_mix__mha_block__linear_attn_block__prompt'
ref = open(f'cdna_kernels/{NAME}.s.ref').read().splitlines()
head = [l for l in ref[:12] if l.startswith(';') and '@launch' not in l][:11]
def build(path, prof=False, X=None):
    out = '\n'.join(head) + '\n'
    out += f'; @launch kernel=qkv_kernel grid=(256,1,1) block=({k1.BLOCK},1,1) lds={k1.LDS1}\n'
    out += f'; @launch kernel=attn_kernel grid=(256,1,1) block=({k2.BLOCK},1,1) lds={k2.LDS2}\n'
    out += f'; @launch kernel=oproj_kernel grid=(256,1,1) block=(256,1,1) lds={k3.LDS3}\n'
    out += '.amdgcn_target "amdgcn-amd-amdhsa--gfx950"\n.text\n'
    for k in (k1, k2, k3):
        a = k.gen(prof, X[k.__name__]) if X and k.__name__ in X else k.gen(prof)
        out += a.text()
        print(k.__name__, 'lines', len(a.lines), 'nops', a.n_nops)
    out += '.section .rodata,"a"\n'
    for k in (k1, k2, k3):
        out += '.p2align 6' + k.DESC
    open(path, 'w').write(out)
if __name__ == '__main__':
    build(f'cdna_kernels/{NAME}.s')
    build('prof.s', True)
    for v in sys.argv[1:]:
        kn, fl = v.split(':')
        build(f'prof_{kn}_{fl}.s', True, {kn: tuple(fl.split('+'))})
        build(f't_{kn}_{fl}.s', False, {kn: tuple(fl.split('+'))})
```

```python
from asmlib import Asm
from layout import *

WPART = 14400
SLOT = WPART
NS = 6
XBASE = NS * SLOT
XSLOT = 16384
NX = 4
LDS1 = XBASE + NX * XSLOT
assert XBASE % 128 == 0

ACC = 128
WF = 96
NWF = 6
XF = 64


PFS = [(2, 0), (0, 4), (6, 0), (0, 8)]
PF = {'pf1': ([(2, 2)], [(4, 6), (8, 8)]), 'pf2': ([(2, 4)], [(6, 8)]), 'pf3': ([(0, 2)], [(4, 6), (8, 8)]), 'pf4': ([(2, 4)], [])}


def acc(rt, tile):
    return ACC + (tile * 4 + rt) * 4


def vr(b, n=4):
    return f'v[{b}:{b+n-1}]'


def gen(prof=False, X=()):
    a = Asm()
    a.prof = prof
    a.raw('.p2align 8')
    a.raw('.globl qkv_kernel')
    a.raw('.type qkv_kernel,@function')
    a.label('qkv_kernel')
    a('s_cmp_ge_u32 s2, 256')
    a('s_cbranch_scc1 K1_END')
    a.stamp(0, real=True); a.stamp(1)
    a('s_load_dwordx4 s[4:7], s[0:1], 0')
    a('s_load_dwordx2 s[8:9], s[0:1], 32')
    a('s_load_dwordx2 s[10:11], s[0:1], 48')
    a('s_load_dwordx2 s[12:13], s[0:1], 72')
    a('s_load_dwordx2 s[14:15], s[0:1], 16')
    a('s_load_dwordx2 s[32:33], s[0:1], 40')
    a('v_lshrrev_b32 v1, 6, v0')
    a('v_and_b32 v2, 63, v0')
    a('v_readfirstlane_b32 s36, v1')
    a('s_and_b32 s37, s2, 7')
    a('s_lshr_b32 s38, s2, 3')
    a('s_and_b32 s39, s37, 1')
    a('s_lshl_b32 s39, s39, 3')
    a('s_and_b32 s40, s38, 7')
    a('s_add_u32 s39, s39, s40')
    a('s_lshr_b32 s40, s37, 1')
    a('s_lshl_b32 s40, s40, 2')
    a('s_lshr_b32 s41, s38, 3')
    a('s_add_u32 s40, s40, s41')
    a('s_lshr_b32 s41, s40, 3')
    a('s_and_b32 s42, s40, 7')
    a('s_and_b32 s43, s36, 1')
    a('s_bfe_u32 s44, s36, 0x10001')
    a('s_cmp_ge_u32 s36, 4')
    a('s_cbranch_scc0 K1_COMPUTE')
    st_entry = a.snapshot()

    a('s_setprio 3')
    a('s_mov_b32 s34, 0xF7FFFFFF')
    a('s_mov_b32 s35, 0x007FFFFF')
    a('v_cmp_le_u32 vcc, 28, v2')
    a('v_mov_b32 v4, 0')
    a('v_mov_b32 v5, 3008')
    a('v_cndmask_b32 v4, v4, v5, vcc')
    a('v_lshl_add_u32 v3, v2, 4, v4')
    a('s_mul_i32 s58, s42, 432')
    a('v_add_u32 v3, s58, v3')
    a('v_lshrrev_b32 v5, 3, v2')
    a('v_and_b32 v6, 7, v2')
    a('v_and_b32 v7, 2, v5')
    a('v_lshlrev_b32 v7, 1, v7')
    a('s_lshl_b32 s58, s43, 1')
    a('v_or_b32 v7, s58, v7')
    a('v_xor_b32 v6, v6, v7')
    a('v_mul_u32_u24 v5, 1152, v5')
    a('v_lshl_add_u32 v4, v6, 4, v5')
    a('s_mul_i32 s60, s44, 7200')
    a('s_mul_i32 s58, s43, 3616')
    a('s_add_u32 s60, s60, s58')
    a('s_and_b32 s58, s36, 3')
    a('s_mul_i32 s61, s58, 27648')
    a('s_lshl_b32 s58, s43, 1'); a('s_lshl_b32 s59, s44, 3'); a('s_add_u32 s58, s58, s59')
    a('s_lshl_b32 s62, s58, 10'); a(f's_add_u32 s62, s62, {XBASE}')
    a('s_lshl_b32 s59, s39, 4'); a('s_add_u32 s58, s58, s59')
    a('s_mul_i32 s63, s58, 9216')
    a('s_and_b32 s58, s38, 7'); a('s_lshr_b32 s59, s38, 3'); a('s_lshl_b32 s59, s59, 1'); a('s_add_u32 s58, s58, s59')
    a('s_sub_u32 s59, s58, 9'); a('s_cmp_ge_u32 s58, 9'); a('s_cselect_b32 s66, s59, s58')
    if 'norot' in X: a('s_mov_b32 s66, 0')
    a.waitcnt(lg=0)
    a('s_mov_b32 s16, s4'); a('s_mov_b32 s17, s5'); a(f's_mov_b32 s18, {2048*1152}'); a('s_mov_b32 s19, 0x00020000')
    a('s_cmp_eq_u32 s41, 0')
    a('s_cselect_b32 s20, s6, s8'); a('s_cselect_b32 s21, s7, s9')
    a(f's_mov_b32 s22, {576*3456}'); a('s_mov_b32 s23, 0x00020000')
    a('s_mov_b32 s28, s10'); a('s_mov_b32 s29, s11'); a('s_mov_b32 s30, 1152'); a('s_mov_b32 s31, 0x00020000')

    def kblock(A):
        a(f's_add_u32 s67, s66, {A}'); a('s_sub_u32 s58, s67, 9'); a('s_cmp_ge_u32 s67, 9'); a('s_cselect_b32 s67, s58, s67')

    def xhalf(A, h):
        if h == 0:
            kblock(A)
            a('s_lshl_b32 s69, s67, 7'); a('s_add_u32 s69, s69, s63')
        for n in (2 * h, 2 * h + 1):
            rg = (n & 1) + 4 * (n >> 1)
            a(f's_add_u32 m0, s62, {(A % NX) * XSLOT + rg * 1024}')
            a(f's_add_u32 s65, s69, {rg * 9216}')
            if 'noload' not in X and 'nox' not in X: a('buffer_load_dwordx4 v4, s[16:19], s65 offen lds', tag=('x', A))

    def xchunk(A):
        xhalf(A, 0); xhalf(A, 1)

    def wchunk(c):
        if c % 2 == 0:
            kblock(c // 2)
            a(f's_mul_i32 s68, s67, {64 * 3456}'); a('s_add_u32 s68, s68, s61')
        a('s_mov_b64 exec, s[34:35]')
        for n in range(4):
            a(f's_add_u32 m0, s60, {(c % NS) * SLOT + n * 896}')
            a(f's_add_u32 s64, s68, {((c % 2) * 32 + 2 * n) * 3456}')
            if 'noload' not in X and 'now' not in X: a('buffer_load_dwordx4 v3, s[20:23], s64 offen lds', tag=('w', c))
        a('s_mov_b64 exec, -1')

    xchunk(0); wchunk(0)
    a('v_lshlrev_b32 v19, 1, v2')
    for g in range(9):
        kblock(g); a('s_lshl_b32 s58, s67, 7')
        a(f'buffer_load_ushort v{41+g}, v19, s[28:31], s58 offen', tag=('w', 0))
    wchunk(1)
    if 'deep' in X: xchunk(1); wchunk(2); wchunk(3)
    a('v_bfe_u32 v6, v2, 4, 1')
    a('v_mul_u32_u24 v18, 7200, v6')
    a('v_and_b32 v6, 15, v2')
    a('v_mul_u32_u24 v6, 448, v6')
    a('v_add_u32 v18, v18, v6')
    a('v_bfe_u32 v6, v2, 3, 1')
    a('v_lshl_add_u32 v18, v6, 5, v18')
    a('v_lshrrev_b32 v6, 5, v2')
    a(f'v_mul_u32_u24 v6, {SLOT}, v6')
    a('v_add_u32 v18, v18, v6')
    a('v_add_u32 v18, 432, v18')
    a(f'v_add_u32 v17, {4*SLOT}, v18')

    def gate_write(g):
        sl = (2 * g) % NS
        if sl == 4:
            a(f'ds_write_b16 v17, v{41+g}')
        else:
            a(f'ds_write_b16 v18, v{41+g} offset:{sl * SLOT}')
    if 'free' in X:
        win = [int(x[1:]) for x in X if x[0] == 'n' and x[1:].isdigit()][0]
        a.stamp(2)
        for s in range(4, 18):
            if s % 2 == 0:
                xchunk(s // 2)
            wchunk(s)
            a.waitcnt(vm=min(win, 63))
            if s in (8, 12): a.stamp({8: 3, 12: 4}[s])
        a.stamp(5); a.stamp(6); a.stamp(7)
        a('s_sub_u32 s36, s36, 4')
        a('s_branch K1_FIN')
    a.wait_vm_tag(('w', 0))
    for g in range(3):
        gate_write(g)
    a.waitcnt(lg=0)
    a('s_barrier')
    if 'deep' not in X: xchunk(1); wchunk(2); wchunk(3)
    plan = {0: [('x', 2, 0), ('w', 4), ('x', 2, 1), ('w', 5)]}
    for s in range(1, 18):
        p = []
        if (s + 5) // 2 < 9: p.append(('x', (s + 5) // 2, (s + 5) % 2))
        if s + 5 < 18: p.append(('w', s + 5))
        plan[s] = p
    L = 'lst' in X
    for s in range(18):
        if L and s in (7, 8): a.stamp(2 + 3 * (s - 7))
        a.wait_vm_tag(('w', s + 1))
        a.wait_vm_tag(('x', (s + 1) // 2))
        a.waitcnt(lg=0)
        if L and s in (7, 8): a.stamp(3 + 3 * (s - 7))
        a('s_barrier')
        if L and s in (7, 8): a.stamp(4 + 3 * (s - 7))
        for p in plan[s]:
            if p[0] == 'x': xhalf(p[1], p[2])
            else: wchunk(p[1])
        if s + 5 < 18 and (s + 5) % 2 == 1 and s + 5 >= 7:
            gate_write((s + 5) // 2)
        if s == 13:
            wo_gather(a, 0); wo_gather(a, 1)
        if s == 16:
            wo_store(a, 0); wo_store(a, 1)
    if L:
        a('s_sub_u32 s36, s36, 4')
        a('s_branch K1_FIN')
    a('s_branch K1_END')

    a.restore(st_entry)
    a.label('K1_COMPUTE')
    if 'free' in X: a('s_branch K1_END')
    if 'pf' in X:
        a('s_cmp_eq_u32 s43, 1'); a('s_cbranch_scc1 K1_PFW')
        a('v_and_b32 v6, 31, v2'); a('s_and_b32 s58, s37, 1'); a('s_lshl_b32 s58, s58, 5'); a('s_add_u32 s58, s58, s38'); a('s_lshl_b32 s58, s58, 5')
        a('v_add_u32 v6, s58, v6'); a('v_mul_u32_u24 v6, 1152, v6'); a('v_lshrrev_b32 v7, 5, v2'); a('v_lshl_add_u32 v6, v7, 7, v6')
        a('s_mov_b32 s78, 128')
        stp = a.snapshot()
        a.waitcnt(lg=0)
        a('s_mov_b32 s16, s4'); a('s_mov_b32 s17, s5'); a(f's_mov_b32 s18, {2048*1152}'); a('s_mov_b32 s19, 0x00020000')
        a('s_branch K1_PFGO')
        a.restore(stp)
        a.label('K1_PFW')
        a('v_min_u32 v6, 55, v2')
        a('v_cmp_le_u32 vcc, 28, v6'); a('v_mov_b32 v7, 0'); a(f'v_mov_b32 v8, {64 * 3456 - 28 * 128}'); a('v_cndmask_b32 v7, v7, v8, vcc')
        a('v_subrev_u32 v8, 28, v6'); a('v_cndmask_b32 v8, v6, v8, vcc')
        a('v_lshl_add_u32 v6, v6, 7, v7')
        a('v_cmp_le_u32 vcc, 14, v8'); a('v_mov_b32 v7, 0'); a(f'v_mov_b32 v8, {3456 - 14 * 128}'); a('v_cndmask_b32 v7, v7, v8, vcc')
        a('v_add_u32 v6, v6, v7')
        a('s_bfe_u32 s58, s37, 0x10001'); a('s_mul_i32 s58, s58, 1664'); a('s_mul_i32 s59, s38, 6912'); a('s_add_u32 s58, s58, s59')
        a('v_add_u32 v6, s58, v6')
        a(f's_mov_b32 s78, {64 * 3456}')
        a.waitcnt(lg=0)
        a('s_cmp_eq_u32 s41, 0')
        a('s_cselect_b32 s16, s6, s8'); a('s_cselect_b32 s17, s7, s9')
        a(f's_mov_b32 s18, {576*3456}'); a('s_mov_b32 s19, 0x00020000')
        a.label('K1_PFGO')
        a('v_mov_b32 v27, v6')
        OOB = 0x7FF00000 // 1
        for sd, (b0, b1) in zip((58, 88 if False else 28, 29, 34), PFS):
            a('s_cmp_eq_u32 s44, 0'); a(f's_cselect_b32 s{sd}, {b0}, {b1}'); a(f's_mul_i32 s{sd}, s{sd}, s78')
            a(f's_cmp_eq_u32 s{sd}, 0'); a(f's_cselect_b32 s{sd}, {OOB}, s{sd}')
        a('buffer_load_dword v28, v27, s[16:19], s58 offen', tag='untracked')
    a('s_cmp_eq_u32 s42, 5')
    a('s_cselect_b32 s45, 2, 0')
    a('s_cselect_b32 s46, 0, 4')
    a('s_add_u32 s47, s45, 3')
    a('s_add_u32 s48, s45, 1')
    a('s_cmp_eq_u32 s44, 0')
    a('s_cselect_b32 s47, s45, s47')
    a('s_cselect_b32 s48, s48, s46')
    a('s_cselect_b32 s49, s45, s46')
    a('s_cselect_b32 s50, 4, 2')
    a('s_mul_i32 s51, s42, 6')
    a('s_mul_i32 s52, s41, 3')
    a('s_add_u32 s53, s51, s47')
    a('s_add_u32 s54, s51, s48')
    a('s_add_u32 s55, s51, s49')
    a('s_lshr_b32 s56, s53, 4')
    a('s_add_u32 s56, s56, s52')
    a('s_lshr_b32 s57, s54, 4')
    a('s_add_u32 s57, s57, s52')
    a('s_and_b32 s53, s53, 15')
    a('s_and_b32 s54, s54, 15')
    a('s_and_b32 s55, s55, 15')
    a('v_lshrrev_b32 v6, 5, v2')
    a('v_mul_u32_u24 v5, 7200, v6')
    a('v_bfe_u32 v6, v2, 4, 1')
    a('v_mul_u32_u24 v6, 3616, v6')
    a('v_add_u32 v5, v5, v6')
    a('v_bfe_u32 v6, v2, 2, 2')
    a('v_mul_u32_u24 v6, 448, v6')
    a('v_add_u32 v5, v5, v6')
    a('v_and_b32 v6, 3, v2')
    a('v_lshl_add_u32 v7, v6, 3, v5')
    a('s_mul_i32 s58, s47, 72')
    a('v_add_u32 v10, s58, v7')
    a('s_mul_i32 s58, s48, 72')
    a('v_add_u32 v12, s58, v7')
    a('v_add_u32 v8, s49, v6')
    a('v_mul_u32_u24 v8, 72, v8')
    a('v_add_u32 v8, 32, v8')
    a('v_lshlrev_b32 v9, 3, v6')
    a('v_add_u32 v9, 416, v9')
    a('v_cmp_gt_u32 vcc, s50, v6')
    a('v_cndmask_b32 v8, v9, v8, vcc')
    a('v_add_u32 v11, v5, v8')
    a('v_and_b32 v6, 15, v2')
    a('v_lshrrev_b32 v7, 2, v6')
    a('v_and_b32 v8, 3, v6')
    a('v_lshl_add_u32 v20, v7, 3, v8')
    a('s_lshl_b32 s58, s43, 6')
    a('v_add_u32 v9, s58, v20')
    a('v_lshlrev_b32 v9, 7, v9')
    a('v_and_b32 v8, 2, v8')
    a('v_lshlrev_b32 v8, 1, v8')
    a('v_and_b32 v7, 2, v7')
    a('v_or_b32 v7, v7, v8')
    a('v_lshrrev_b32 v21, 4, v2')
    a('v_xor_b32 v8, v21, v7')
    a('v_lshl_add_u32 v13, v8, 4, v9')
    a(f'v_add_u32 v13, {XBASE}, v13')
    a('v_xor_b32 v17, 64, v13')
    a('v_mov_b32 v18, v13')
    a('s_mov_b32 s79, 0')
    for r in (10, 11, 12):
        a(f'v_add_u32 v{r+4}, {3*SLOT}, v{r}')
    a('s_lshr_b32 s58, 0x18, s56'); a('s_and_b32 s66, s58, 1')
    a('s_lshr_b32 s58, 0x18, s57'); a('s_and_b32 s67, s58, 1')
    a(f's_mul_i32 s68, s66, {EPS_BITS}')
    a(f's_mul_i32 s69, s67, {EPS_BITS}')
    for tile in range(7):
        for r in range(16):
            a(f'v_mov_b32 v{ACC + tile*16 + r}, s{68 if tile < 2 else 69}')
    a('s_lshr_b32 s58, 0x34, s56'); a('s_and_b32 s70, s58, 1')
    a('s_lshr_b32 s58, 0x34, s57'); a('s_and_b32 s71, s58, 1')
    a('s_lshl_b32 s58, s70, 1'); a('s_or_b32 s72, s58, s71')
    a.waitcnt(lg=0)
    a('s_mov_b32 s24, s12'); a('s_mov_b32 s25, s13'); a(f's_mov_b32 s26, {WS_END}'); a('s_mov_b32 s27, 0x00020000')
    a('s_lshl_b32 s77, s39, 7'); a('s_lshl_b32 s58, s43, 6'); a('s_add_u32 s77, s77, s58')
    a('s_mov_b32 s73, 3')
    a.stamp(2)
    a('s_cmp_eq_u32 s72, 1'); a('s_cbranch_scc1 K1_TN')
    a('s_cmp_eq_u32 s72, 2'); a('s_cbranch_scc1 K1_NT')
    a('s_cmp_eq_u32 s72, 3'); a('s_cbranch_scc1 K1_NN')
    state = a.snapshot()

    def tile_addr(tile, slot):
        base = {0: 10, 1: 10, 2: 11}.get(tile, 12)
        imm = {0: 0, 1: 40, 2: 0, 3: 0, 4: 40, 5: 72, 6: 112}[tile]
        if slot >= 3:
            base += 4
            slot -= 3
        return base, imm + slot * SLOT

    for (name, Na, Nb) in (('TT', 0, 0), ('TN', 0, 1), ('NT', 1, 0), ('NN', 1, 1)):
        a.restore(state)
        a.label(f'K1_{name}')
        epi_setup(a, name, Na, Nb)

        def wread(idx):
            s, t = (idx // 7) % NS, idx % 7
            b, imm = tile_addr(t, s)
            d = WF + (idx % NWF) * 4
            a(f'ds_read_b64_tr_b16 {vr(d, 2)}, v{b} offset:{imm}')
            a(f'ds_read_b64_tr_b16 {vr(d + 2, 2)}, v{b} offset:{imm + 1792}')

        def xread(s, rt):
            d = XF + (s % 2) * 16 + rt * 4
            off = (rt // 2) * 4096 + (rt % 2) * 512
            a(f'ds_read_b128 {vr(d)}, v{13 if s % 2 == 0 else 17} offset:{off}')

        DIST = 4
        a('s_barrier')
        a.stamp(3)
        if 'pf' in X: a('buffer_load_dword v28, v27, s[16:19], s28 offen', tag='untracked')
        pre = []

        def body():
            for s in range(NS):
                a('s_barrier')
                for t in range(7):
                    idx = s * 7 + t
                    wf = WF + (idx % NWF) * 4
                    N = Na if t < 2 else Nb
                    for rt in range(4):
                        xf = XF + (s % 2) * 16 + rt * 4
                        d = acc(rt, t)
                        if 'nocomp' in X:
                            continue
                        if N:
                            a(f'v_mfma_f32_16x16x32_bf16 {vr(d)}, {vr(xf)}, {vr(wf)}, {vr(d)}')
                        else:
                            a(f'v_mfma_f32_16x16x32_bf16 {vr(d)}, {vr(wf)}, {vr(xf)}, {vr(d)}')
                        if rt == 0 and 'nowr' not in X:
                            wread(idx + DIST)
                        if rt == 2 and t <= 3 and 'nowr' not in X:
                            xread(s + 1, t)
                        if 'pf' in X and rt == 1 and t == 6 and s in (0, 2):
                            sd = 29 if s == 0 else 34
                            a(f'buffer_load_dword v28, v27, s[16:19], s{sd} offen', tag='untracked')
                            a(f's_mov_b32 s{sd}, 0x7FF00000')
                        if rt == 1 and t == 5 and s % 2 == 0:
                            a(f's_add_u32 s79, s79, {XSLOT}'); a(f's_and_b32 s79, s79, {NX * XSLOT - 1}')
                            a('v_add_u32 v13, s79, v18'); a('v_xor_b32 v17, 64, v13')

        def tail():
            a('s_sub_u32 s73, s73, 1'); a('s_cmp_lg_u32 s73, 0'); a(f's_cbranch_scc1 K1_{name}_LOOP')
        for rt in range(3):
            xread(0, rt)
        wread(0); xread(0, 3); wread(1); wread(2); wread(3)
        n0 = len(a.lines); st = a.snapshot(); body(); tail(); back = a.snapshot(); del a.lines[n0:]; a.restore(st)
        a.waitcnt(lg=0 if ('nocomp' in X or 'nowr' in X) else len(back[5]))
        a.loop(f'K1_{name}_LOOP', body, tail)
        a.stamp(7)
        if 'noepi' not in X: epilogue(a, name, Na, Nb, X)
        a.stamp(4); a.stamp(5); a.stamp(6)
        a('s_branch K1_END' if 'lst' in X else 's_branch K1_FIN')
    a.label('K1_FIN')
    a.reset_state()
    a.stamp_flush(12, 0, 3, 36, 2, WS_PROF)
    a.label('K1_END')
    a('s_endpgm')
    return a


def wo_gather(a, r):
    V = 64 + 16 * r
    sf = 70 + r
    a('s_lshl_b32 s53, s2, 2'); a('s_and_b32 s58, s36, 3'); a('s_add_u32 s53, s53, s58')
    if r: a('s_add_u32 s53, s53, 1024')
    a(f's_mul_hi_u32 s54, s53, {-(-(1 << 32) // 36)}')
    a('s_mul_i32 s55, s54, 36'); a('s_sub_u32 s55, s53, s55')
    a('s_cmp_ge_u32 s55, 18')
    a('s_cselect_b32 s28, s32, s14'); a('s_cselect_b32 s29, s33, s15')
    a('s_cselect_b32 s56, 18, 0'); a('s_sub_u32 s55, s55, s56')
    a(f's_mov_b32 s30, {576*1152}'); a('s_mov_b32 s31, 0x00020000')
    a('s_mul_i32 s56, s55, 36')
    a('s_mul_i32 s57, s55, 288'); a(f's_sub_u32 s57, s57, {288*16-16}')
    a('s_cmp_ge_u32 s55, 16')
    a('s_cselect_b32 s56, s57, s56')
    a('s_cselect_b32 s57, 144, 20')
    a('s_cselect_b32 s58, 72, 8')
    a('s_cselect_b32 s59, 36, 4')
    a('s_mul_i32 s59, s59, 1152')
    a('v_lshrrev_b32 v13, 5, v2')
    a('v_mul_lo_u32 v13, v13, s57')
    a('v_bfe_u32 v14, v2, 4, 1')
    a('v_mul_lo_u32 v14, v14, s58')
    a('v_add3_u32 v13, v13, v14, s56')
    a('v_mul_u32_u24 v13, 1152, v13')
    a('v_and_b32 v14, 15, v2')
    a('v_lshl_add_u32 v13, v14, 1, v13')
    a('s_lshl_b32 s56, s54, 5')
    a('s_cmp_lt_u32 s53, 1296')
    a('s_cselect_b32 s56, s56, 0x7FF00000')
    a('v_add_u32 v13, s56, v13')
    a(f's_lshl_b32 s{sf}, s53, 10'); a(f's_add_u32 s{sf}, s{sf}, {WS_WOT}')
    a('s_cmp_lt_u32 s53, 1296')
    a(f's_cselect_b32 s{sf}, s{sf}, 0x7FF00000')
    for j in range(8):
        so = '0' if j < 4 else 's59'
        a(f'buffer_load_ushort v{V+j}, v13, s[28:31], {so} offen offset:{(j % 4) * 1152}')


def wo_store(a, r):
    V = 64 + 16 * r
    if r == 0:
        a('s_mov_b32 s24, s12'); a('s_mov_b32 s25, s13'); a(f's_mov_b32 s26, {WS_END}'); a('s_mov_b32 s27, 0x00020000')
        a('v_lshlrev_b32 v15, 4, v2')
        a('s_mul_i32 s58, s2, 1536'); a(f's_add_u32 s58, s58, {WS_KVS + 1520}')
        a('v_mov_b32 v16, 0')
        a('s_mov_b64 exec, 1')
        a('buffer_store_dword v16, v16, s[24:27], s58 offen')
        a('s_mov_b64 exec, -1')
    for j in range(4):
        a(f'v_lshl_or_b32 v{V+8+j}, v{V+1+2*j}, 16, v{V+2*j}')
    a(f'buffer_store_dwordx4 v[{V+8}:{V+11}], v15, s[24:27], s{70+r} offen')


def epi_setup(a, name, Na, Nb):
    def dest_scalars(stype, shp, N, sd, tail):
        if N:
            a(f's_sub_u32 s58, s{stype}, 3'); a(f's_cmp_eq_u32 s{stype}, 2'); a('s_cselect_b32 s58, 0, s58')
            a(f's_mul_i32 s58, s58, {NIMG * 32}')
            a(f's_mul_i32 s59, s{shp}, {NIMG * 2}')
            a(f's_add_u32 s{sd}, s58, s59'); a(f's_add_u32 s{sd}, s{sd}, {WS_VA}')
        else:
            a(f's_cmp_eq_u32 s{stype}, 3'); a(f's_cselect_b32 s58, 2, s{stype}')
            if tail:
                a('s_lshl_b32 s58, s58, 18'); a(f's_lshl_b32 s59, s{shp}, 14')
                a(f's_add_u32 s{sd}, s58, s59'); a(f's_add_u32 s{sd}, s{sd}, {WS_QAT}')
            else:
                a('s_lshl_b32 s58, s58, 21'); a(f's_lshl_b32 s59, s{shp}, 17')
                a(f's_add_u32 s{sd}, s58, s59')
                assert WS_QAM == 0
    dest_scalars(56, 53, Na, 80, False)
    dest_scalars(57, 54, Nb, 81, False)
    dest_scalars(57, 55, Nb, 82, True)
    for st, sd in ((56, 30), (57, 14)):
        a(f's_cmp_eq_u32 s{st}, 0'); a(f's_cselect_b32 s{sd}, {QSCALE_BITS}, 1.0'); a(f's_mov_b32 s{sd+1}, s{sd}')
    a(f's_mov_b32 s74, {LOG2E_BITS}'); a(f's_mov_b32 s75, {LOG2E_BITS}'); a(f's_mov_b32 s76, {EPS_BITS}')
    a(f'v_mov_b32 v60, {NEG_EPS_LOG2E_BITS}'); a(f'v_mov_b32 v61, {NEG_EPS_LOG2E_BITS}')
    if (not Na) or (not Nb):
        a('v_and_b32 v6, 1, v21'); a('v_lshl_add_u32 v6, v6, 2, v20'); a('v_lshlrev_b32 v6, 4, v6')
        a('v_lshrrev_b32 v7, 1, v21'); a('v_lshl_add_u32 v22, v7, 9, v6')
        a('s_lshl_b32 s58, s77, 5'); a('v_add_u32 v22, s58, v22')
    if not Nb:
        a('v_add_u32 v6, s77, v20'); a('v_lshlrev_b32 v6, 3, v6'); a('v_lshl_add_u32 v23, v21, 14, v6')
        a('v_mov_b32 v7, 0x7FF00000'); a('v_cmp_gt_u32 vcc, s50, v21'); a('v_cndmask_b32 v23, v7, v23, vcc')
    if Na or Nb:
        a('s_lshr_b32 s58, s77, 3'); a('v_add_u32 v6, s58, v21'); a('v_mul_u32_u24 v6, 18, v6')
        a('v_and_b32 v7, 15, v2'); a('v_add_u32 v24, v6, v7'); a('v_lshlrev_b32 v24, 4, v24')
    if Nb:
        a('v_and_b32 v8, 1, v7'); a('v_add3_u32 v8, v6, v8, 16'); a('v_lshlrev_b32 v8, 4, v8')
        a('v_lshrrev_b32 v9, 1, v7'); a(f's_mov_b32 s58, {NIMG}'); a('v_mul_lo_u32 v9, v9, s58'); a('v_add_u32 v25, v8, v9')
        a('v_mov_b32 v8, 0x7FF00000'); a('v_lshrrev_b32 v9, 2, v7'); a('v_cmp_gt_u32 vcc, s50, v9')
        a('v_cndmask_b32 v25, v8, v25, vcc')
    if name == 'TT':
        a('v_add_u32 v6, s77, v20'); a('v_lshlrev_b32 v6, 2, v6')
        a('v_mov_b32 v7, 0x7FF00000'); a('v_cmp_eq_u32 vcc, 2, v21'); a('v_cndmask_b32 v26, v7, v6, vcc')
        a('s_lshl_b32 s58, s40, 1'); a('s_or_b32 s58, s58, s44')
        a('s_cmp_eq_u32 s58, 1'); a(f's_cselect_b32 s83, {WS_G}, 0x7FF00000' if False else f's_mov_b32 s83, {WS_G}')
        a('s_cselect_b32 s83, s83, 0x7FF00000')


def epilogue(a, name, Na, Nb, X=()):
    ST = ' sc1' if 'sc1' in X else (' nt' if 'nt' in X else (' sc0 sc1' if 'sc01' in X else ''))
    cnt = [0]

    def store_tile(tile):
        N = Na if tile < 2 else Nb
        sd = 80 if tile < 2 else (82 if tile == 2 else 81)
        hl = {0: 0, 1: 1, 2: 0, 3: 0, 4: 1, 5: 2, 6: 3}[tile]
        for G in range(2):
            X, Y = acc(2 * G, tile), acc(2 * G + 1, tile)
            t = 96 + (cnt[0] % 8) * 4
            cnt[0] += 1
            a(f'v_cvt_pk_bf16_f32 v{t}, v{X}, v{X+1}'); a(f'v_cvt_pk_bf16_f32 v{t+1}, v{X+2}, v{X+3}')
            a(f'v_cvt_pk_bf16_f32 v{t+2}, v{Y}, v{Y+1}'); a(f'v_cvt_pk_bf16_f32 v{t+3}, v{Y+2}, v{Y+3}')
            if N:
                voff = 25 if tile == 2 else 24
                a(f's_add_u32 s58, s{sd}, {hl * NIMG + G * 4 * 288}')
                a(f'buffer_store_dwordx4 {vr(t)}, v{voff}, s[24:27], s58 offen{ST}')
            elif tile == 2:
                a(f'buffer_store_dwordx2 {vr(t, 2)}, v23, s[24:27], s{sd} offen offset:{G * 256}{ST}')
                a(f'buffer_store_dwordx2 {vr(t + 2, 2)}, v23, s[24:27], s{sd} offen offset:{G * 256 + 32}{ST}')
            else:
                a(f's_add_u32 s58, s{sd}, {hl * 65536 + G * 1024}')
                a(f'v_permlane16_swap_b32 v{t}, v{t+2}')
                a(f'v_permlane16_swap_b32 v{t+1}, v{t+3}')
                a(f'buffer_store_dwordx4 {vr(t)}, v22, s[24:27], s58 offen{ST}')

    a.waitcnt(lg=0)
    if name == 'TT':
        for rt in range(4):
            a(f'v_mul_f32 v{50+rt}, 0xBFB8AA3B, v{acc(rt, 2)}')
        for rt in range(4):
            a(f'v_exp_f32 v{50+rt}, v{50+rt}')
        for rt in range(4):
            a(f'v_add_f32 v{50+rt}, 1.0, v{50+rt}')
        for rt in range(4):
            a(f'v_rcp_f32 v{50+rt}, v{50+rt}')
        for rt in range(4):
            a(f'buffer_store_dword v{50+rt}, v26, s[24:27], s83 offen offset:{(rt // 2) * 128 + (rt % 2) * 16}')
    for seg, tiles, sphi, ssc in (('a', (0, 1), 66, 30), ('b', (2, 3, 4, 5, 6), 67, 14)):
        N = Na if seg == 'a' else Nb
        lab = f'K1_{name}_{seg}'
        a(f's_cmp_eq_u32 s{sphi}, 0')
        a(f's_cbranch_scc1 {lab}_nophi')
        st = a.snapshot()
        c0 = cnt[0]
        for tile in tiles:
            T = 64
            rr = [ACC + tile * 16 + r for r in range(16)]
            for k in range(0, 16, 2):
                a(f'v_pk_fma_f32 v[{T+k}:{T+k+1}], v[{rr[k]}:{rr[k]+1}], s[74:75], v[60:61]')
            for k in range(16):
                a(f'v_exp_f32_e64 v{T+k}, v{T+k} clamp')
                a(f'v_max_f32 v{rr[k]}, s76, v{rr[k]}')
            for k in range(0, 16, 2):
                a(f'v_pk_add_f32 v[{rr[k]}:{rr[k]+1}], v[{rr[k]}:{rr[k]+1}], v[{T+k}:{T+k+1}]')
            store_tile(tile)
        a(f's_branch {lab}_done')
        st1 = a.snapshot()
        a.restore(st)
        cnt[0] = c0
        a.label(f'{lab}_nophi')
        for tile in tiles:
            if not N:
                for k in range(0, 16, 2):
                    r = ACC + tile * 16 + k
                    a(f'v_pk_mul_f32 v[{r}:{r+1}], v[{r}:{r+1}], s[{ssc}:{ssc+1}]')
            store_tile(tile)
        a.label(f'{lab}_done')
        a.nop(2)


DESC = """
.amdhsa_kernel qkv_kernel
  .amdhsa_next_free_vgpr 240
  .amdhsa_next_free_sgpr 102
  .amdhsa_accum_offset 240
  .amdhsa_group_segment_fixed_size 0
  .amdhsa_kernarg_size 80
  .amdhsa_user_sgpr_count 2
  .amdhsa_user_sgpr_kernarg_segment_ptr 1
  .amdhsa_system_sgpr_workgroup_id_x 1
.end_amdhsa_kernel
"""
BLOCK = 512
```

```python
from asmlib import Asm
from layout import *

KM_L = 0
KT_L = 65536
V_L = 73728
KVP_L = V_L + NIMG
FLAG_L = KVP_L + 4 * 1520
LDS2 = FLAG_L + 64
VROW = 288
BLOCK = 768

SA, SB = 32, 64
O0, O1 = 96, 112
KM = 128
VF = 136
KT = 152
QM = (154, 160)
QT = (158, 164)
IDX = 166
G = 167
NV2 = 168


def vr(b, n=4):
    return f'v[{b}:{b+n-1}]'


def gen(prof=False, X=()):
    a = Asm()
    a.prof = prof
    a.raw('.p2align 8')
    a.raw('.globl attn_kernel')
    a.raw('.type attn_kernel,@function')
    a.label('attn_kernel')
    a('s_cmp_ge_u32 s2, 256')
    a('s_cbranch_scc1 K2_END')
    a.stamp(0, real=True); a.stamp(1)
    a('s_load_dwordx2 s[6:7], s[0:1], 72')
    a('v_lshrrev_b32 v1, 6, v0')
    a('v_and_b32 v2, 63, v0')
    a('v_readfirstlane_b32 s36, v1')
    if 'qx' not in X:
        a('s_and_b32 s37, s2, 7'); a('s_lshl_b32 s37, s37, 2'); a('s_lshr_b32 s38, s2, 3'); a('s_and_b32 s39, s38, 3')
        a('s_add_u32 s37, s37, s39'); a('s_lshr_b32 s38, s38, 2')
    else:
        a('s_lshr_b32 s37, s2, 3')
        a('s_and_b32 s38, s2, 7')
    a('v_lshlrev_b32 v3, 4, v2')
    a('v_and_b32 v8, 31, v2')
    a('v_lshrrev_b32 v9, 5, v2')
    a('s_lshl_b32 s41, s37, 16')
    a('s_lshr_b32 s44, s37, 1'); a('s_lshl_b32 s44, s44, 14')
    a('s_and_b32 s45, s37, 1'); a('s_lshl_b32 s45, s45, 2'); a('s_add_u32 s44, s44, s45')
    a(f's_mul_i32 s48, s37, {NIMG}')
    a('s_and_b32 s39, s36, 3')
    a('s_lshl_b32 s42, s38, 3'); a('s_lshl_b32 s43, s39, 1'); a('s_add_u32 s42, s42, s43')
    a('s_lshl_b32 s43, s42, 10'); a('s_add_u32 s43, s43, s41')
    a('s_lshl_b32 s45, s42, 8'); a('s_add_u32 s45, s45, s44')
    a('v_lshlrev_b32 v10, 3, v8')
    a('v_min_u32 v14, 17, v8')
    a('v_mul_u32_u24 v16, 18, v9')
    a('v_add_u32 v17, v14, v16'); a('v_lshlrev_b32 v17, 4, v17')
    a('s_mov_b32 s34, 0x3FFFF'); a('s_mov_b32 s35, 0x3FFFF')
    a('s_cmp_ge_u32 s36, 8')
    a('s_cbranch_scc1 K2_HELPER')
    st_entry = a.snapshot()

    def srd():
        a.waitcnt(lg=0)
        a('s_mov_b32 s16, s6'); a('s_mov_b32 s17, s7'); a(f's_mov_b32 s18, {WS_END}'); a('s_mov_b32 s19, 0x00020000')

    def og_addr(tile_sgpr):
        a('v_lshrrev_b32 v20, 4, v8'); a('v_mul_u32_u24 v20, 36864, v20')
        a('v_and_b32 v21, 15, v8'); a('v_lshl_add_u32 v22, v21, 4, v20')
        a('v_lshl_add_u32 v21, v9, 8, v22')
        a(f's_mul_i32 s61, s{tile_sgpr}, 73728'); a(f's_add_u32 s61, s61, {WS_OG}')
        a('s_lshr_b32 s62, s37, 1'); a('s_lshl_b32 s62, s62, 10')
        a('s_and_b32 s63, s37, 1'); a('s_lshl_b32 s63, s63, 9'); a('s_add_u32 s62, s62, s63')
        a('s_add_u32 s62, s62, s61')
        a('s_lshr_b32 s64, s37, 4'); a('s_lshl_b32 s64, s64, 10')
        a('s_bfe_u32 s65, s37, 0x20002'); a('s_lshl_b32 s65, s65, 8'); a('s_add_u32 s64, s64, s65')
        a('s_and_b32 s65, s37, 3'); a('s_lshl_b32 s65, s65, 2'); a('s_add_u32 s64, s64, s65')
        a('s_add_u32 s64, s64, s61'); a('s_add_u32 s64, s64, 16384')

    def og_store(src, sc, T, smain, stail):
        for r in range(10):
            a(f'v_mul_f32 v{src+r}, v{src+r}, v{sc}')
        for k in range(4):
            a(f'v_cvt_pk_bf16_f32 v{T+k}, v{src+2*k}, v{src+2*k+1}')
        a(f'v_cvt_pk_bf16_f32 v{src+8}, v{src+8}, v{src+9}')
        a(f'v_permlane32_swap_b32 v{T}, v{T+2}')
        a(f'v_permlane32_swap_b32 v{T+1}, v{T+3}')
        a(f'buffer_store_dwordx4 {vr(T)}, v21, s[16:19], s{smain} offen' + (' sc1' if 'sc1' in X else ''))
        a('s_mov_b32 exec_hi, 0')
        a(f'buffer_store_dword v{src+8}, v22, s[16:19], s{stail} offen' + (' sc1' if 'sc1' in X else ''))
        a('s_mov_b32 exec_hi, -1')

    a('s_lshr_b32 s40, s36, 2')
    a(f's_add_u32 s51, s45, {WS_QAT}')
    srd()
    for t in range(2):
        a(f'buffer_load_dwordx4 {vr(QM[t])}, v3, s[16:19], s43 offen offset:{t * 1024}')
        a(f'buffer_load_dword v{QT[t]}, v10, s[16:19], s51 offen offset:{t * 256}')
    a('s_add_u32 s46, s42, s40')
    a('v_lshlrev_b32 v12, 2, v8')
    a('s_lshl_b32 s51, s46, 7'); a(f's_add_u32 s51, s51, {WS_G}')
    a(f'buffer_load_dword v{G}, v12, s[16:19], s51 offen')
    a('v_lshlrev_b32 v4, 2, v2'); a(f'v_add_u32 v4, {KT_L}, v4')
    a(f'v_add_u32 v5, {V_L}, v17')
    a('s_lshl_b32 s52, s40, 15'); a('v_add_u32 v11, s52, v3')
    a('s_lshl_b32 s52, s40, 12'); a('v_add_u32 v12, s52, v4')
    a(f's_mul_i32 s52, s40, {128 * VROW}'); a('v_add_u32 v13, s52, v5')
    a(f'v_mov_b32 v{IDX}, 0xDDDD')
    a(f'v_mov_b32 v{KT+1}, 0x3F80')
    a(f'v_mov_b32 v{QT[0]+1}, 0'); a(f'v_mov_b32 v{QT[1]+1}, 0')
    a('v_mov_b32 v15, 0'); a('v_mov_b32 v14, 0x3F803F80')
    a('v_cmp_eq_u32 vcc, 18, v8'); a('v_cndmask_b32 v15, v15, v14, vcc')
    a('v_cmp_eq_u32 vcc, 28, v8'); a('v_cndmask_b32 v15, v15, v14, vcc')
    for r in range(16):
        a(f'v_mov_b32 v{VF+r}, v15')
    for r in range(32):
        a(f'v_mov_b32 v{O0+r}, 0')
    og_addr(46)
    a('s_mov_b32 s47, 0')
    a(f'v_mov_b32 v24, {FLAG_L}')

    def rd_kt(u): a(f'ds_read_b32 v{KT}, v12 offset:{u * 256}')
    def rd_km(u, i): a(f'ds_read_b128 {vr(KM + 4 * i)}, v11 offset:{(2 * u + i) * 1024}')

    def rd_v(u, i):
        a('s_mov_b64 exec, s[34:35]')
        a(f'ds_read_b128 {vr(VF + 4 * i)}, v13 offset:{(8 * u + 2 * i) * VROW}')
        a('s_mov_b64 exec, -1')

    def qk2b(S, t): a(f'v_mfma_f32_32x32x4_2b_bf16 {vr(S, 32)}, {vr(KT, 2)}, {vr(QT[t], 2)}, 0')
    def qk(S, i, t): a(f'v_mfma_f32_32x32x16_bf16 {vr(S + 16 * i, 16)}, {vr(KM + 4 * i)}, {vr(QM[t])}, {vr(S + 16 * i, 16)}')
    def pv(S, i, O): a(f'v_smfmac_f32_32x32x32_bf16 {vr(O, 16)}, {vr(VF + 4 * i)}, {vr(S + 8 * i, 8)}, v{IDX}')

    def rowmax(S, n, dst, tmp):
        a(f'v_max3_f32 v{dst}, v{S}, v{S+1}, v{S+2}')
        a(f'v_max3_f32 v{tmp}, v{S+3}, v{S+4}, v{S+5}')
        for k in range(6, n - 2, 4):
            a(f'v_max3_f32 v{dst}, v{S+k}, v{S+k+1}, v{dst}')
            a(f'v_max3_f32 v{tmp}, v{S+k+2}, v{S+k+3}, v{tmp}')
        a(f'v_max3_f32 v{dst}, v{S+n-2}, v{S+n-1}, v{dst}')
        a(f'v_max_f32 v{dst}, v{dst}, v{tmp}')
        a(f'v_mov_b32 v{tmp}, v{dst}')
        a(f'v_permlane32_swap_b32 v{dst}, v{tmp}')
        a(f'v_max_f32 v{dst}, v{dst}, v{tmp}')

    a.stamp(2)
    a.waitcnt(vm=0)
    a('s_barrier')
    a.stamp(3)
    a(f'ds_read_b32 v{KT}, v4'); a(f'ds_read_b128 {vr(KM)}, v3')
    for i in range(4):
        rd_v(0, i)
    qk2b(SA, 0); qk2b(SB, 1); qk(SA, 0, 0); qk(SB, 0, 1)
    rd_kt(0); rd_km(0, 0); rd_km(0, 1)
    for t, S in ((0, SA), (1, SB)):
        rowmax(S, 16, 18, 19)
        a('v_xor_b32 v18, 0x80000000, v18')
        a(f'v_lshrrev_b32 v{QT[t]+1}, 16, v18')
    qk2b(SA, 0); qk(SA, 0, 0); qk(SA, 1, 0)
    for r in range(24, 32):
        a(f'v_mov_b32 v{SB+r}, 0')
    a.waitcnt(lg=0)
    a.stamp(4)

    def phase(u, t):
        Sc, Sn = (SA, SB) if t == 0 else (SB, SA)
        Oc, Op = (O0, O1) if t == 0 else (O1, O0)
        e = [0]

        def ex(n):
            for r in range(e[0], e[0] + n):
                a(f'v_exp_f32 v{Sc+r}, v{Sc+r}')
            e[0] += n
        if 'noprio' not in X: a(f's_setprio {3 - (2 * u + t) % 4}')
        ex(2)
        pv(Sn, 3, Op)
        if t == 0: rd_v(u, 3)
        ex(4)
        qk2b(Sn, 1 - t)
        if t == 0: rd_kt(u + 1)
        ex(8)
        pv(Sc, 0, Oc)
        if t == 1: rd_v(u + 1, 0)
        ex(4)
        qk(Sn, 0, 1 - t)
        if t == 0: rd_km(u + 1, 0)
        ex(4)
        pv(Sc, 1, Oc)
        if t == 1: rd_v(u + 1, 1)
        ex(4)
        qk(Sn, 1, 1 - t)
        if t == 0: rd_km(u + 1, 1)
        ex(4)
        pv(Sc, 2, Oc)
        if t == 1: rd_v(u + 1, 2)
        ex(2)

    UN = 2

    def body():
        a('s_bitcmp1_b32 0xA, s47'); a('s_cbranch_scc0 K2_NOB1')
        a('s_barrier')
        a.label('K2_NOB1')
        if prof and 'it' in X:
            for k, st_ in ((1, 2), (2, 3), (5, 4)):
                a(f's_cmp_lg_u32 s47, {k}'); a(f's_cbranch_scc1 K2_NS{k}')
                a.raw(f'  s_memtime s[{84+2*st_}:{85+2*st_}]'); a.raw('  s_waitcnt lgkmcnt(0)')
                a.label(f'K2_NS{k}')
        for u in range(UN):
            phase(u, 0); phase(u, 1)

    def tail():
        a(f'v_add_u32 v11, {UN * 2048}, v11'); a(f'v_add_u32 v12, {UN * 256}, v12'); a(f'v_add_u32 v13, {UN * 8 * VROW}, v13')
        a('s_add_u32 s47, s47, 1'); a(f's_cmp_lg_u32 s47, {16 // UN}'); a('s_cbranch_scc1 K2_LOOP')
    n0 = len(a.lines); st = a.snapshot(); body(); tail(); back = a.snapshot(); del a.lines[n0:]; a.restore(st)
    a.lg = [set(x) for x in back[5]]
    a.raw('.p2align 6')
    a.loop('K2_LOOP', body, tail)
    a.stamp(5)
    pv(SB, 3, O1)

    a('v_cmp_eq_u32 vcc, 0, v9')
    a(f'v_cndmask_b32 v{O0+10}, v{O0+12}, v{O0+10}, vcc')
    a(f'v_cndmask_b32 v{O1+10}, v{O1+12}, v{O1+10}, vcc')
    a(f'v_max_f32 v19, v{O0+10}, v{O1+10}')
    a(f'v_fmac_f32 v19, 0, v{O0+10}'); a(f'v_fmac_f32 v19, 0, v{O1+10}')
    for r in range(10):
        a(f'v_fmac_f32 v19, 0, v{O0+r}'); a(f'v_fmac_f32 v19, 0, v{O1+r}')
    a('v_mov_b32 v20, 0x5F000000')
    a('v_cmp_nlt_f32 vcc, v19, v20')
    a('s_cmp_eq_u64 vcc, 0')
    a('s_cbranch_scc1 K2_OK')
    a('v_mov_b32 v19, 1')
    a('ds_write_b32 v24, v19')
    a.label('K2_OK')
    a.waitcnt(lg=0)
    a('s_barrier')
    a.stamp(6)
    a('ds_read_b32 v19, v24')
    a('s_mul_i32 s52, s36, 3072'); a('v_add_u32 v25, s52, v3')
    a('s_xor_b32 s53, s36, 4'); a('s_mul_i32 s52, s53, 3072'); a('v_add_u32 v26, s52, v3')
    a('v_readfirstlane_b32 s52, v19')
    a('s_cmp_lg_u32 s52, 0')
    a('s_cbranch_scc1 K2_SLOW')
    a('s_cmp_eq_u32 s40, 0')
    a('s_cbranch_scc1 K2_X0')
    for r in range(12):
        a(f'v_swap_b32 v{O0+r}, v{O1+r}')
    a.label('K2_X0')
    a.nop(1)
    for k in range(3):
        a(f'ds_write_b128 v25, {vr(O1 + 4 * k)} offset:{k * 1024}')
    a.waitcnt(lg=0)
    a('s_barrier')
    for k in range(3):
        a(f'ds_read_b128 {vr(O1 + 4 * k)}, v26 offset:{k * 1024}')
    for r in range(0, 12, 2):
        a(f'v_pk_add_f32 v[{O0+r}:{O0+r+1}], v[{O0+r}:{O0+r+1}], v[{O1+r}:{O1+r+1}]')
    a.label('K2_EPI')
    a.nop(2)
    a(f'v_rcp_f32 v18, v{O0+10}')
    a(f'v_mul_f32 v18, v18, v{G}')
    og_store(O0, 18, 28, 62, 64)
    a.stamp(7)
    a.stamp_flush(6, 1, 3, 36, 2, WS_PROF)
    a('s_branch K2_END')

    a.label('K2_SLOW')
    a.fence()
    a('s_cmp_eq_u32 s40, 0')
    a('s_cbranch_scc1 K2_S0')
    for r in range(5):
        a(f'v_mov_b32 v{QM[0]+r}, v{QM[1]+r}')
    a.label('K2_S0')
    a(f'v_mov_b32 v{QT[0]+1}, 0')
    a('v_mov_b32 v20, 0xFF800000')
    for r in range(16):
        a(f'v_mov_b32 v{O0+r}, 0')
    a('v_mov_b32 v11, v3'); a('v_mov_b32 v12, v4'); a('v_mov_b32 v13, v5')
    a('s_mov_b32 s47, 32')
    a.label('K2_SLOW_LOOP')
    a.fence()
    rd_kt(0); rd_km(0, 0); rd_km(0, 1)
    for i in range(4):
        rd_v(0, i)
    qk2b(SA, 0); qk(SA, 0, 0); qk(SA, 1, 0)
    rowmax(SA, 32, 18, 19)
    a('v_max_f32 v18, v18, v20')
    a('v_sub_f32 v19, v20, v18'); a('v_exp_f32 v19, v19')
    a('v_mov_b32 v20, v18')
    for r in range(32):
        a(f'v_sub_f32 v{SA+r}, v{SA+r}, v18')
    for r in range(32):
        a(f'v_exp_f32 v{SA+r}, v{SA+r}')
    for r in range(16):
        a(f'v_mul_f32 v{O0+r}, v{O0+r}, v19')
    for i in range(4):
        pv(SA, i, O0)
    a('v_add_u32 v11, 2048, v11'); a('v_add_u32 v12, 256, v12'); a(f'v_add_u32 v13, {8 * VROW}, v13')
    a('s_sub_u32 s47, s47, 1'); a('s_cmp_lg_u32 s47, 0'); a('s_cbranch_scc1 K2_SLOW_LOOP')
    a.fence()
    a('v_cmp_eq_u32 vcc, 0, v9')
    a(f'v_cndmask_b32 v{O0+10}, v{O0+12}, v{O0+10}, vcc')
    a.hazard_fence()
    a('s_branch K2_EPI')

    a.restore(st_entry)
    a.label('K2_HELPER')
    a('s_setprio 3')
    KVB, KVA = 32, 64
    QB = 96
    GB = 108
    a('v_lshlrev_b32 v7, 3, v2')
    a('s_lshl_b32 s40, s39, 10')
    a('s_add_u32 s46, s41, s40'); a(f's_add_u32 s46, s46, {WS_KAM}')
    a('s_lshl_b32 s47, s39, 9'); a('s_add_u32 s47, s47, s44'); a(f's_add_u32 s47, s47, {WS_KAT}')
    a('s_add_u32 s49, s48, s40'); a(f's_add_u32 s49, s49, {WS_VA}')
    a('s_lshl_b32 s50, s39, 8')
    srd()

    def dma(kind, n, tag):
        if kind == 'KM':
            a(f's_add_u32 m0, s40, {KM_L + n * 4096}'); a(f's_add_u32 s52, s46, {n * 4096}')
            a('buffer_load_dwordx4 v3, s[16:19], s52 offen lds', tag=tag)
        elif kind == 'V':
            a(f's_add_u32 m0, s40, {V_L + n * 4096}'); a(f's_add_u32 s52, s49, {n * 4096}')
            a('buffer_load_dwordx4 v3, s[16:19], s52 offen lds', tag=tag)
        else:
            a(f's_add_u32 m0, s50, {KT_L + n * 1024}'); a(f's_add_u32 s52, s47, {n * 2048}')
            a('buffer_load_dword v7, s[16:19], s52 offen lds', tag=tag)
    for hb in range(2):
        dma('KM', 8 * hb, 'b0'); dma('KT', 4 * hb, 'b0'); dma('V', 9 * hb, 'b0')
    for hb in range(2):
        dma('KM', 8 * hb + 1, 'b0'); dma('V', 9 * hb + 1, 'b0')
    a('v_mov_b32 v15, 0'); a(f'v_mov_b32 v24, {FLAG_L}'); a('ds_write_b32 v24, v15')
    a('v_mov_b32 v14, 0x3F803F80')
    a('v_cmp_eq_u32 vcc, 18, v8'); a('v_cndmask_b32 v13, v15, v14, vcc')
    for st in range(4):
        for r in range(4):
            a(f'v_mov_b32 v{KVB+8*st+r}, 0')
            a(f'v_mov_b32 v{KVB+8*st+4+r}, v13')
    for r in range(16):
        a(f'v_mov_b32 v{KVA+r}, 0')
    a.wait_vm_tag('b0')
    a.waitcnt(lg=0)
    a('s_barrier')
    a(f's_mul_i32 s61, s42, {4 * VROW}'); a('s_add_u32 s61, s61, s48')
    a(f's_add_u32 s62, s61, {WS_KB}'); a(f's_add_u32 s63, s61, {WS_VB}')
    order = []
    for n in range(2, 9):
        for hb in range(2):
            if n < 8: order.append(('KM', 8 * hb + n))
            order.append(('V', 9 * hb + n))
            if n in (2, 4, 6): order.append(('KT', 4 * hb + n // 2))
    first = [x for x in order if {'KM': x[1] % 8 < 4, 'V': x[1] % 9 < 4, 'KT': x[1] % 4 < 2}[x[0]]]
    rest = [x for x in order if x not in first]
    for (k, n) in first:
        dma(k, n, 'b1')
    a('s_mov_b64 exec, s[34:35]')
    for st in range(4):
        a(f'buffer_load_dwordx4 {vr(KVB + 8 * st)}, v17, s[16:19], s62 offen offset:{st * 2 * VROW}')
        a(f'buffer_load_dwordx4 {vr(KVB + 8 * st + 4)}, v17, s[16:19], s63 offen offset:{st * 2 * VROW}')
    a('s_mov_b64 exec, -1')
    for (k, n) in rest[:6]:
        dma(k, n, 'b2')
    a.wait_vm_tag('b1')
    a('s_barrier')
    for (k, n) in rest[6:]:
        dma(k, n, 'b2')
    for st in range(4):
        a(f'v_mfma_f32_32x32x16_bf16 {vr(KVA, 16)}, {vr(KVB + 8 * st)}, {vr(KVB + 8 * st + 4)}, {vr(KVA, 16)}')
    a('v_mul_u32_u24 v18, 80, v8'); a('v_lshl_add_u32 v18, v9, 4, v18')
    a('s_mul_i32 s61, s39, 1520'); a(f's_add_u32 s61, s61, {KVP_L}'); a('v_add_u32 v18, s61, v18')
    a('s_mov_b32 exec_lo, 0x7FFFF'); a('s_mov_b32 exec_hi, 0x7FFFF')
    a(f'ds_write_b128 v18, {vr(KVA)}')
    a(f'ds_write_b128 v18, {vr(KVA + 4)} offset:32')
    a('s_mov_b32 exec_hi, 0')
    a(f'ds_write_b64 v18, {vr(KVA + 8, 2)} offset:64')
    a('s_mov_b64 exec, -1')
    a.waitcnt(vm=0, lg=0)
    a('s_barrier')
    a('s_mul_i32 s57, s37, 12288'); a(f's_add_u32 s57, s57, {WS_KVS}')
    a('s_cmp_lg_u32 s39, 0')
    a('s_cbranch_scc1 K2_HPUB')
    a('v_min_u32 v19, 30, v2'); a('v_lshlrev_b32 v19, 4, v19'); a('v_add_u32 v19, 1024, v19')
    a(f'v_add_u32 v18, {KVP_L}, v3'); a(f'v_add_u32 v20, {KVP_L}, v19')
    for k in range(4):
        a(f'ds_read_b128 {vr(KVB + 8 * k)}, v18 offset:{k * 1520}')
        a(f'ds_read_b128 {vr(KVB + 8 * k + 4)}, v20 offset:{k * 1520}')
    for k in range(1, 4):
        for r in range(0, 8, 2):
            a(f'v_pk_add_f32 v[{KVB+r}:{KVB+r+1}], v[{KVB+r}:{KVB+r+1}], v[{KVB+8*k+r}:{KVB+8*k+r+1}]')
    a('s_mul_i32 s58, s38, 1536'); a('s_add_u32 s58, s58, s57')
    a(f'buffer_store_dwordx4 {vr(KVB)}, v3, s[16:19], s58 offen sc1')
    a(f'buffer_store_dwordx4 {vr(KVB + 4)}, v19, s[16:19], s58 offen sc1')
    a.waitcnt(vm=0)
    a('v_mov_b32 v18, 1'); a('v_mov_b32 v19, 1520')
    a('s_mov_b64 exec, 1')
    a('buffer_store_dword v18, v19, s[16:19], s58 offen sc1')
    a('s_mov_b64 exec, -1')
    a.label('K2_HPUB')
    a.fence()
    a('v_mov_b32 v11, 0x7FF00000'); a('v_cmp_eq_u32 vcc, 0, v9'); a('v_cndmask_b32 v11, v11, v10, vcc')
    a('v_lshlrev_b32 v12, 2, v8')
    a(f's_add_u32 s51, s43, {WS_QBM}'); a(f's_add_u32 s52, s45, {WS_QBT}')
    a('s_lshl_b32 s53, s42, 7'); a(f's_add_u32 s53, s53, {WS_G}')
    for t in range(2):
        a(f'buffer_load_dwordx4 {vr(QB + 6 * t)}, v3, s[16:19], s51 offen offset:{t * 1024}')
        a(f'buffer_load_dword v{QB + 6 * t + 4}, v11, s[16:19], s52 offen offset:{t * 256}')
        a(f'v_mov_b32 v{QB + 6 * t + 5}, 0')
        a(f'buffer_load_dword v{GB + t}, v12, s[16:19], s53 offen offset:{t * 128}')
    if 'nowo' not in X:
        a('s_lshr_b32 s53, s2, 3'); a('s_lshl_b32 s53, s53, 2'); a('s_add_u32 s53, s53, s39')
        a('s_mul_i32 s53, s53, 11264'); a(f's_add_u32 s53, s53, {WS_WOT}')
        for k in range(11):
            if k % 4 == 0 and k: a('s_add_u32 s53, s53, 4096')
            a(f'buffer_load_dwordx4 v[112:115], v3, s[16:19], s53 offen offset:{(k % 4) * 1024}', tag='untracked')
    og_addr(42)
    a('v_min_u32 v18, 18, v8'); a('v_mul_u32_u24 v19, 80, v18'); a('v_lshl_add_u32 v18, v9, 5, v19')
    a('v_and_b32 v25, 7, v2'); a('v_mul_u32_u24 v25, 1536, v25'); a('v_add_u32 v25, 1520, v25'); a('s_mov_b32 s58, 0')
    a.label('K2_POLL')
    a('buffer_load_dword v26, v25, s[16:19], s57 offen sc1')
    a.waitcnt(vm=0)
    a('v_cmp_ne_u32 vcc, 1, v26')
    a('s_cmp_eq_u64 vcc, 0'); a('s_cbranch_scc1 K2_GOT')
    a('s_sleep 16')
    a('s_add_u32 s58, s58, 1'); a('s_cmp_lt_u32 s58, 0x100000'); a('s_cbranch_scc1 K2_POLL')
    a.label('K2_GOT')
    T = 116
    for b in range(2):
        for k in range(4):
            q = 4 * b + k
            d = 32 if q == 0 else T + 10 * k
            if q % 2 == 0: a(f's_add_u32 s58, s57, {q * 1536}')
            o = (q % 2) * 1536
            a(f'buffer_load_dwordx4 {vr(d)}, v18, s[16:19], s58 offen offset:{o} sc1')
            a(f'buffer_load_dwordx4 {vr(d + 4)}, v18, s[16:19], s58 offen offset:{o + 16} sc1')
            a(f'buffer_load_dwordx2 {vr(d + 8, 2)}, v19, s[16:19], s58 offen offset:{o + 64} sc1')
        for k in range(4):
            if 4 * b + k == 0: continue
            for r in range(0, 10, 2):
                a(f'v_pk_add_f32 v[{32+r}:{33+r}], v[{32+r}:{33+r}], v[{T+10*k+r}:{T+10*k+r+1}]')
    for k in range(5):
        a(f'v_cvt_pk_bf16_f32 v{44+k}, v{32+2*k}, v{33+2*k}')
    a('v_mov_b32 v49, 0')
    for t in range(2):
        D = 64 + 16 * t
        a(f'v_mfma_f32_32x32x16_bf16 {vr(D, 16)}, v[44:47], {vr(QB + 6 * t)}, 0')
        a(f'v_mfma_f32_32x32x8bf16_1k {vr(D, 16)}, v[48:49], {vr(QB + 6 * t + 4, 2)}, {vr(D, 16)}')
    a('s_add_u32 s62, s62, 18432'); a('s_add_u32 s64, s64, 18432')
    for t in range(2):
        D = 64 + 16 * t
        a('v_cmp_eq_u32 vcc, 0, v9')
        a(f'v_cndmask_b32 v19, v{D+12}, v{D+10}, vcc')
        a(f'v_add_f32 v19, {EPS_BITS}, v19')
        a('v_rcp_f32 v19, v19')
        a(f'v_sub_f32 v20, 1.0, v{GB+t}')
        a('v_mul_f32 v19, v19, v20')
        og_store(D, 19, 28 + 0 * t, 62, 64)
        if t == 0:
            a('s_add_u32 s62, s62, 73728'); a('s_add_u32 s64, s64, 73728')
    a.label('K2_END')
    a('s_endpgm')
    return a


DESC = f"""
.amdhsa_kernel attn_kernel
  .amdhsa_next_free_vgpr {NV2}
  .amdhsa_next_free_sgpr 102
  .amdhsa_accum_offset {NV2}
  .amdhsa_group_segment_fixed_size 0
  .amdhsa_kernarg_size 80
  .amdhsa_user_sgpr_count 2
  .amdhsa_user_sgpr_kernarg_segment_ptr 1
  .amdhsa_system_sgpr_workgroup_id_x 1
.end_amdhsa_kernel
"""
```

```python
import sys
src = sys.argv[1] if len(sys.argv) > 1 else 'gated_mix__mha_block__linear_attn_block__prompt.s'
s = open(src).read()
def entry(k):
    return "  s_memrealtime s[96:97]\n  s_load_dwordx2 s[98:99], s[0:1], 72\n  s_load_dwordx2 s[88:89], s[0:1], 64\n  s_waitcnt lgkmcnt(0)\n"
COPY = """  s_cmp_lg_u32 s2, 0
  s_cbranch_scc1 K3_END_X
  s_waitcnt vmcnt(0)
  v_lshlrev_b32 v4, 2, v0
  buffer_load_dword v5, v4, s[92:95], 0 offen sc1
  s_mov_b32 s92, s88
  s_mov_b32 s93, s89
  s_mov_b32 s94, 64
  s_waitcnt vmcnt(0)
  buffer_store_dword v5, v4, s[92:95], 0 offen
"""
def exit_(k, lab):
    return f"""{lab}:
  s_cmp_ge_u32 s2, 256
  s_cbranch_scc1 {lab}_X
  s_waitcnt vmcnt(0) lgkmcnt(0)
  s_memrealtime s[100:101]
  s_waitcnt lgkmcnt(0)
  s_add_u32 s92, s98, 0x3000000
  s_addc_u32 s93, s99, 0
  s_mov_b32 s94, 256
  s_mov_b32 s95, 0x00020000
  s_cmp_eq_u32 s2, 0
  s_cselect_b32 s90, {k*8}, 0x7FF00000
  s_cmp_eq_u32 s2, 255
  s_cselect_b32 s90, {k*8+24}, s90
  v_mov_b32 v2, s96
  v_mov_b32 v3, s100
  v_lshlrev_b32 v4, 20, v0
  s_nop 4
  buffer_store_dwordx2 v[2:3], v4, s[92:95], s90 offen
{COPY if k == 2 else ''}{lab}_X:
"""
for k, (kn, lab) in enumerate((('qkv_kernel', 'K1_END'), ('attn_kernel', 'K2_END'), ('oproj_kernel', 'K3_END'))):
    s = s.replace(f'{kn}:\n', f'{kn}:\n' + entry(k), 1)
    s = s.replace(f'{lab}:\n', exit_(k, lab), 1)
open('dbgt.s', 'w').write(s)
```

```python
from asmlib import Asm
from layout import *

WPART = 14400
SLOT = WPART
NS = 6
XBASE = NS * SLOT
XSLOT = 16384
NX = 4
LDS1 = XBASE + NX * XSLOT
assert XBASE % 128 == 0

ACC = 128
WF = 96
NWF = 6
XF = 64


PFS = [(2, 0), (0, 4), (6, 0), (0, 8)]
PF = {'pf1': ([(2, 2)], [(4, 6), (8, 8)]), 'pf2': ([(2, 4)], [(6, 8)]), 'pf3': ([(0, 2)], [(4, 6), (8, 8)]), 'pf4': ([(2, 4)], [])}


def acc(rt, tile):
    return ACC + (tile * 4 + rt) * 4


def vr(b, n=4):
    return f'v[{b}:{b+n-1}]'


def gen(prof=False, X=()):
    a = Asm()
    a.prof = prof
    a.raw('.p2align 8')
    a.raw('.globl qkv_kernel')
    a.raw('.type qkv_kernel,@function')
    a.label('qkv_kernel')
    a('s_cmp_ge_u32 s2, 256')
    a('s_cbranch_scc1 K1_END')
    a.stamp(0, real=True); a.stamp(1)
    a('s_load_dwordx4 s[4:7], s[0:1], 0')
    a('s_load_dwordx2 s[8:9], s[0:1], 32')
    a('s_load_dwordx2 s[10:11], s[0:1], 48')
    a('s_load_dwordx2 s[12:13], s[0:1], 72')
    a('s_load_dwordx2 s[14:15], s[0:1], 16')
    a('s_load_dwordx2 s[32:33], s[0:1], 40')
    a('v_lshrrev_b32 v1, 6, v0')
    a('v_and_b32 v2, 63, v0')
    a('v_readfirstlane_b32 s36, v1')
    a('s_and_b32 s37, s2, 7')
    a('s_lshr_b32 s38, s2, 3')
    a('s_and_b32 s39, s37, 1')
    a('s_lshl_b32 s39, s39, 3')
    a('s_and_b32 s40, s38, 7')
    a('s_add_u32 s39, s39, s40')
    a('s_lshr_b32 s40, s37, 1')
    a('s_lshl_b32 s40, s40, 2')
    a('s_lshr_b32 s41, s38, 3')
    a('s_add_u32 s40, s40, s41')
    a('s_lshr_b32 s41, s40, 3')
    a('s_and_b32 s42, s40, 7')
    a('s_and_b32 s43, s36, 1')
    a('s_bfe_u32 s44, s36, 0x10001')
    a('s_cmp_ge_u32 s36, 4')
    a('s_cbranch_scc0 K1_COMPUTE')
    st_entry = a.snapshot()

    a('s_setprio 3')
    a('s_mov_b32 s34, 0xF7FFFFFF')
    a('s_mov_b32 s35, 0x007FFFFF')
    a('v_cmp_le_u32 vcc, 28, v2')
    a('v_mov_b32 v4, 0')
    a('v_mov_b32 v5, 3008')
    a('v_cndmask_b32 v4, v4, v5, vcc')
    a('v_lshl_add_u32 v3, v2, 4, v4')
    a('s_mul_i32 s58, s42, 432')
    a('v_add_u32 v3, s58, v3')
    a('v_lshrrev_b32 v5, 3, v2')
    a('v_and_b32 v6, 7, v2')
    a('v_and_b32 v7, 2, v5')
    a('v_lshlrev_b32 v7, 1, v7')
    a('s_lshl_b32 s58, s43, 1')
    a('v_or_b32 v7, s58, v7')
    a('v_xor_b32 v6, v6, v7')
    a('v_mul_u32_u24 v5, 1152, v5')
    a('v_lshl_add_u32 v4, v6, 4, v5')
    a('s_mul_i32 s60, s44, 7200')
    a('s_mul_i32 s58, s43, 3616')
    a('s_add_u32 s60, s60, s58')
    a('s_and_b32 s58, s36, 3')
    a('s_mul_i32 s61, s58, 27648')
    a('s_lshl_b32 s58, s43, 1'); a('s_lshl_b32 s59, s44, 3'); a('s_add_u32 s58, s58, s59')
    a('s_lshl_b32 s62, s58, 10'); a(f's_add_u32 s62, s62, {XBASE}')
    a('s_lshl_b32 s59, s39, 4'); a('s_add_u32 s58, s58, s59')
    a('s_mul_i32 s63, s58, 9216')
    a('s_and_b32 s58, s38, 7'); a('s_lshr_b32 s59, s38, 3'); a('s_lshl_b32 s59, s59, 1'); a('s_add_u32 s58, s58, s59')
    a('s_sub_u32 s59, s58, 9'); a('s_cmp_ge_u32 s58, 9'); a('s_cselect_b32 s66, s59, s58')
    if 'norot' in X: a('s_mov_b32 s66, 0')
    if 'rot3' in X:
        a('s_mul_i32 s58, s66, 43'); a('s_lshr_b32 s58, s58, 7'); a('s_mul_i32 s66, s58, 3')
    if 'rot2' in X:
        a('s_and_b32 s66, s66, 1'); a('s_lshl_b32 s66, s66, 2')
    a.waitcnt(lg=0)
    a('s_mov_b32 s16, s4'); a('s_mov_b32 s17, s5'); a(f's_mov_b32 s18, {2048*1152}'); a('s_mov_b32 s19, 0x00020000')
    a('s_cmp_eq_u32 s41, 0')
    a('s_cselect_b32 s20, s6, s8'); a('s_cselect_b32 s21, s7, s9')
    a(f's_mov_b32 s22, {576*3456}'); a('s_mov_b32 s23, 0x00020000')
    a('s_mov_b32 s28, s10'); a('s_mov_b32 s29, s11'); a('s_mov_b32 s30, 1152'); a('s_mov_b32 s31, 0x00020000')

    def kblock(A):
        a(f's_add_u32 s67, s66, {A}'); a('s_sub_u32 s58, s67, 9'); a('s_cmp_ge_u32 s67, 9'); a('s_cselect_b32 s67, s58, s67')

    def xhalf(A, h):
        if h == 0:
            kblock(A)
            a('s_lshl_b32 s69, s67, 7'); a('s_add_u32 s69, s69, s63')
        for n in (2 * h, 2 * h + 1):
            rg = (n & 1) + 4 * (n >> 1)
            a(f's_add_u32 m0, s62, {(A % NX) * XSLOT + rg * 1024}')
            a(f's_add_u32 s65, s69, {rg * 9216}')
            if 'noload' not in X and 'nox' not in X: a('buffer_load_dwordx4 v4, s[16:19], s65 offen lds', tag=('x', A))

    def xchunk(A):
        xhalf(A, 0); xhalf(A, 1)

    def wchunk(c):
        if c % 2 == 0:
            kblock(c // 2)
            a(f's_mul_i32 s68, s67, {64 * 3456}'); a('s_add_u32 s68, s68, s61')
        a('s_mov_b64 exec, s[34:35]')
        for n in range(4):
            a(f's_add_u32 m0, s60, {(c % NS) * SLOT + n * 896}')
            a(f's_add_u32 s64, s68, {((c % 2) * 32 + 2 * n) * 3456}')
            if 'noload' not in X and 'now' not in X: a('buffer_load_dwordx4 v3, s[20:23], s64 offen lds', tag=('w', c))
        a('s_mov_b64 exec, -1')

    xchunk(0); wchunk(0)
    a('v_lshlrev_b32 v19, 1, v2')
    for g in range(9):
        kblock(g); a('s_lshl_b32 s58, s67, 7')
        a(f'buffer_load_ushort v{41+g}, v19, s[28:31], s58 offen', tag=('w', 0))
    wchunk(1)
    if 'deep' in X: xchunk(1); wchunk(2); wchunk(3)
    a('v_bfe_u32 v6, v2, 4, 1')
    a('v_mul_u32_u24 v18, 7200, v6')
    a('v_and_b32 v6, 15, v2')
    a('v_mul_u32_u24 v6, 448, v6')
    a('v_add_u32 v18, v18, v6')
    a('v_bfe_u32 v6, v2, 3, 1')
    a('v_lshl_add_u32 v18, v6, 5, v18')
    a('v_lshrrev_b32 v6, 5, v2')
    a(f'v_mul_u32_u24 v6, {SLOT}, v6')
    a('v_add_u32 v18, v18, v6')
    a('v_add_u32 v18, 432, v18')
    a(f'v_add_u32 v17, {4*SLOT}, v18')

    def gate_write(g):
        sl = (2 * g) % NS
        if sl == 4:
            a(f'ds_write_b16 v17, v{41+g}')
        else:
            a(f'ds_write_b16 v18, v{41+g} offset:{sl * SLOT}')
    if 'free' in X:
        win = [int(x[1:]) for x in X if x[0] == 'n' and x[1:].isdigit()][0]
        a.stamp(2)
        for s in range(4, 18):
            if s % 2 == 0:
                xchunk(s // 2)
            wchunk(s)
            a.waitcnt(vm=min(win, 63))
            if s in (8, 12): a.stamp({8: 3, 12: 4}[s])
        a.stamp(5); a.stamp(6); a.stamp(7)
        a('s_sub_u32 s36, s36, 4')
        a('s_branch K1_FIN')
    a.wait_vm_tag(('w', 0))
    for g in range(3):
        gate_write(g)
    a.waitcnt(lg=0)
    a('s_barrier')
    if 'deep' not in X: xchunk(1); wchunk(2); wchunk(3)
    plan = {0: [('x', 2, 0), ('w', 4), ('x', 2, 1), ('w', 5)]}
    for s in range(1, 18):
        p = []
        if (s + 5) // 2 < 9: p.append(('x', (s + 5) // 2, (s + 5) % 2))
        if s + 5 < 18: p.append(('w', s + 5))
        plan[s] = p
    L = 'lst' in X
    for s in range(18):
        if L and s in (7, 8): a.stamp(2 + 3 * (s - 7))
        a.wait_vm_tag(('w', s + 1))
        a.wait_vm_tag(('x', (s + 1) // 2))
        a.waitcnt(lg=0)
        if L and s in (7, 8): a.stamp(3 + 3 * (s - 7))
        a('s_barrier')
        if L and s in (7, 8): a.stamp(4 + 3 * (s - 7))
        for p in plan[s]:
            if p[0] == 'x': xhalf(p[1], p[2])
            else: wchunk(p[1])
        if s + 5 < 18 and (s + 5) % 2 == 1 and s + 5 >= 7:
            gate_write((s + 5) // 2)
        if s == 13:
            wo_gather(a, 0); wo_gather(a, 1)
        if s == 16:
            wo_store(a, 0); wo_store(a, 1)
    if L:
        a('s_sub_u32 s36, s36, 4')
        a('s_branch K1_FIN')
    a('s_branch K1_END')

    a.restore(st_entry)
    a.label('K1_COMPUTE')
    if 'free' in X: a('s_branch K1_END')
    if 'pf' in X:
        a('s_cmp_eq_u32 s43, 1'); a('s_cbranch_scc1 K1_PFW')
        a('v_and_b32 v6, 31, v2'); a('s_and_b32 s58, s37, 1'); a('s_lshl_b32 s58, s58, 5'); a('s_add_u32 s58, s58, s38'); a('s_lshl_b32 s58, s58, 5')
        a('v_add_u32 v6, s58, v6'); a('v_mul_u32_u24 v6, 1152, v6'); a('v_lshrrev_b32 v7, 5, v2'); a('v_lshl_add_u32 v6, v7, 7, v6')
        a('s_mov_b32 s78, 128')
        stp = a.snapshot()
        a.waitcnt(lg=0)
        a('s_mov_b32 s16, s4'); a('s_mov_b32 s17, s5'); a(f's_mov_b32 s18, {2048*1152}'); a('s_mov_b32 s19, 0x00020000')
        a('s_branch K1_PFGO')
        a.restore(stp)
        a.label('K1_PFW')
        a('v_min_u32 v6, 55, v2')
        a('v_cmp_le_u32 vcc, 28, v6'); a('v_mov_b32 v7, 0'); a(f'v_mov_b32 v8, {64 * 3456 - 28 * 128}'); a('v_cndmask_b32 v7, v7, v8, vcc')
        a('v_subrev_u32 v8, 28, v6'); a('v_cndmask_b32 v8, v6, v8, vcc')
        a('v_lshl_add_u32 v6, v6, 7, v7')
        a('v_cmp_le_u32 vcc, 14, v8'); a('v_mov_b32 v7, 0'); a(f'v_mov_b32 v8, {3456 - 14 * 128}'); a('v_cndmask_b32 v7, v7, v8, vcc')
        a('v_add_u32 v6, v6, v7')
        a('s_bfe_u32 s58, s37, 0x10001'); a('s_mul_i32 s58, s58, 1664'); a('s_mul_i32 s59, s38, 6912'); a('s_add_u32 s58, s58, s59')
        a('v_add_u32 v6, s58, v6')
        a(f's_mov_b32 s78, {64 * 3456}')
        a.waitcnt(lg=0)
        a('s_cmp_eq_u32 s41, 0')
        a('s_cselect_b32 s16, s6, s8'); a('s_cselect_b32 s17, s7, s9')
        a(f's_mov_b32 s18, {576*3456}'); a('s_mov_b32 s19, 0x00020000')
        a.label('K1_PFGO')
        a('v_mov_b32 v27, v6')
        OOB = 0x7FF00000 // 1
        for sd, (b0, b1) in zip((58, 88 if False else 28, 29, 34), PFS):
            a('s_cmp_eq_u32 s44, 0'); a(f's_cselect_b32 s{sd}, {b0}, {b1}'); a(f's_mul_i32 s{sd}, s{sd}, s78')
            a(f's_cmp_eq_u32 s{sd}, 0'); a(f's_cselect_b32 s{sd}, {OOB}, s{sd}')
        a('buffer_load_dword v28, v27, s[16:19], s58 offen', tag='untracked')
    a('s_cmp_eq_u32 s42, 5')
    a('s_cselect_b32 s45, 2, 0')
    a('s_cselect_b32 s46, 0, 4')
    a('s_add_u32 s47, s45, 3')
    a('s_add_u32 s48, s45, 1')
    a('s_cmp_eq_u32 s44, 0')
    a('s_cselect_b32 s47, s45, s47')
    a('s_cselect_b32 s48, s48, s46')
    a('s_cselect_b32 s49, s45, s46')
    a('s_cselect_b32 s50, 4, 2')
    a('s_mul_i32 s51, s42, 6')
    a('s_mul_i32 s52, s41, 3')
    a('s_add_u32 s53, s51, s47')
    a('s_add_u32 s54, s51, s48')
    a('s_add_u32 s55, s51, s49')
    a('s_lshr_b32 s56, s53, 4')
    a('s_add_u32 s56, s56, s52')
    a('s_lshr_b32 s57, s54, 4')
    a('s_add_u32 s57, s57, s52')
    a('s_and_b32 s53, s53, 15')
    a('s_and_b32 s54, s54, 15')
    a('s_and_b32 s55, s55, 15')
    a('v_lshrrev_b32 v6, 5, v2')
    a('v_mul_u32_u24 v5, 7200, v6')
    a('v_bfe_u32 v6, v2, 4, 1')
    a('v_mul_u32_u24 v6, 3616, v6')
    a('v_add_u32 v5, v5, v6')
    a('v_bfe_u32 v6, v2, 2, 2')
    a('v_mul_u32_u24 v6, 448, v6')
    a('v_add_u32 v5, v5, v6')
    a('v_and_b32 v6, 3, v2')
    a('v_lshl_add_u32 v7, v6, 3, v5')
    a('s_mul_i32 s58, s47, 72')
    a('v_add_u32 v10, s58, v7')
    a('s_mul_i32 s58, s48, 72')
    a('v_add_u32 v12, s58, v7')
    a('v_add_u32 v8, s49, v6')
    a('v_mul_u32_u24 v8, 72, v8')
    a('v_add_u32 v8, 32, v8')
    a('v_lshlrev_b32 v9, 3, v6')
    a('v_add_u32 v9, 416, v9')
    a('v_cmp_gt_u32 vcc, s50, v6')
    a('v_cndmask_b32 v8, v9, v8, vcc')
    a('v_add_u32 v11, v5, v8')
    a('v_and_b32 v6, 15, v2')
    a('v_lshrrev_b32 v7, 2, v6')
    a('v_and_b32 v8, 3, v6')
    a('v_lshl_add_u32 v20, v7, 3, v8')
    a('s_lshl_b32 s58, s43, 6')
    a('v_add_u32 v9, s58, v20')
    a('v_lshlrev_b32 v9, 7, v9')
    a('v_and_b32 v8, 2, v8')
    a('v_lshlrev_b32 v8, 1, v8')
    a('v_and_b32 v7, 2, v7')
    a('v_or_b32 v7, v7, v8')
    a('v_lshrrev_b32 v21, 4, v2')
    a('v_xor_b32 v8, v21, v7')
    a('v_lshl_add_u32 v13, v8, 4, v9')
    a(f'v_add_u32 v13, {XBASE}, v13')
    a('v_xor_b32 v17, 64, v13')
    a('v_mov_b32 v18, v13')
    a('s_mov_b32 s79, 0')
    for r in (10, 11, 12):
        a(f'v_add_u32 v{r+4}, {3*SLOT}, v{r}')
    a('s_lshr_b32 s58, 0x18, s56'); a('s_and_b32 s66, s58, 1')
    a('s_lshr_b32 s58, 0x18, s57'); a('s_and_b32 s67, s58, 1')
    a(f's_mul_i32 s68, s66, {EPS_BITS}')
    a(f's_mul_i32 s69, s67, {EPS_BITS}')
    for tile in range(7):
        for r in range(16):
            a(f'v_mov_b32 v{ACC + tile*16 + r}, s{68 if tile < 2 else 69}')
    a('s_lshr_b32 s58, 0x34, s56'); a('s_and_b32 s70, s58, 1')
    a('s_lshr_b32 s58, 0x34, s57'); a('s_and_b32 s71, s58, 1')
    a('s_lshl_b32 s58, s70, 1'); a('s_or_b32 s72, s58, s71')
    a.waitcnt(lg=0)
    a('s_mov_b32 s24, s12'); a('s_mov_b32 s25, s13'); a(f's_mov_b32 s26, {WS_END}'); a('s_mov_b32 s27, 0x00020000')
    a('s_lshl_b32 s77, s39, 7'); a('s_lshl_b32 s58, s43, 6'); a('s_add_u32 s77, s77, s58')
    a('s_mov_b32 s73, 3')
    a.stamp(2)
    a('s_cmp_eq_u32 s72, 1'); a('s_cbranch_scc1 K1_TN')
    a('s_cmp_eq_u32 s72, 2'); a('s_cbranch_scc1 K1_NT')
    a('s_cmp_eq_u32 s72, 3'); a('s_cbranch_scc1 K1_NN')
    state = a.snapshot()

    def tile_addr(tile, slot):
        base = {0: 10, 1: 10, 2: 11}.get(tile, 12)
        imm = {0: 0, 1: 40, 2: 0, 3: 0, 4: 40, 5: 72, 6: 112}[tile]
        if slot >= 3:
            base += 4
            slot -= 3
        return base, imm + slot * SLOT

    for (name, Na, Nb) in (('TT', 0, 0), ('TN', 0, 1), ('NT', 1, 0), ('NN', 1, 1)):
        a.restore(state)
        a.label(f'K1_{name}')
        epi_setup(a, name, Na, Nb)

        def wread(idx):
            s, t = (idx // 7) % NS, idx % 7
            b, imm = tile_addr(t, s)
            d = WF + (idx % NWF) * 4
            a(f'ds_read_b64_tr_b16 {vr(d, 2)}, v{b} offset:{imm}')
            a(f'ds_read_b64_tr_b16 {vr(d + 2, 2)}, v{b} offset:{imm + 1792}')

        def xread(s, rt):
            d = XF + (s % 2) * 16 + rt * 4
            off = (rt // 2) * 4096 + (rt % 2) * 512
            a(f'ds_read_b128 {vr(d)}, v{13 if s % 2 == 0 else 17} offset:{off}')

        DIST = 4
        a('s_barrier')
        a.stamp(3)
        if 'pf' in X: a('buffer_load_dword v28, v27, s[16:19], s28 offen', tag='untracked')
        pre = []

        def body():
            for s in range(NS):
                a('s_barrier')
                for t in range(7):
                    idx = s * 7 + t
                    wf = WF + (idx % NWF) * 4
                    N = Na if t < 2 else Nb
                    for rt in range(4):
                        xf = XF + (s % 2) * 16 + rt * 4
                        d = acc(rt, t)
                        if 'nocomp' in X:
                            continue
                        if N:
                            a(f'v_mfma_f32_16x16x32_bf16 {vr(d)}, {vr(xf)}, {vr(wf)}, {vr(d)}')
                        else:
                            a(f'v_mfma_f32_16x16x32_bf16 {vr(d)}, {vr(wf)}, {vr(xf)}, {vr(d)}')
                        if rt == 0 and 'nowr' not in X:
                            wread(idx + DIST)
                        if rt == 2 and t <= 3 and 'nowr' not in X:
                            xread(s + 1, t)
                        if 'pf' in X and rt == 1 and t == 6 and s in (0, 2):
                            sd = 29 if s == 0 else 34
                            a(f'buffer_load_dword v28, v27, s[16:19], s{sd} offen', tag='untracked')
                            a(f's_mov_b32 s{sd}, 0x7FF00000')
                        if rt == 1 and t == 5 and s % 2 == 0:
                            a(f's_add_u32 s79, s79, {XSLOT}'); a(f's_and_b32 s79, s79, {NX * XSLOT - 1}')
                            a('v_add_u32 v13, s79, v18'); a('v_xor_b32 v17, 64, v13')

        def tail():
            a('s_sub_u32 s73, s73, 1'); a('s_cmp_lg_u32 s73, 0'); a(f's_cbranch_scc1 K1_{name}_LOOP')
        for rt in range(3):
            xread(0, rt)
        wread(0); xread(0, 3); wread(1); wread(2); wread(3)
        n0 = len(a.lines); st = a.snapshot(); body(); tail(); back = a.snapshot(); del a.lines[n0:]; a.restore(st)
        a.waitcnt(lg=0 if ('nocomp' in X or 'nowr' in X) else len(back[5]))
        a.loop(f'K1_{name}_LOOP', body, tail)
        a.stamp(7)
        if 'noepi' not in X: epilogue(a, name, Na, Nb, X)
        a.stamp(4); a.stamp(5); a.stamp(6)
        a('s_branch K1_END' if 'lst' in X else 's_branch K1_FIN')
    a.label('K1_FIN')
    a.reset_state()
    a.stamp_flush(12, 0, 3, 36, 2, WS_PROF)
    a.label('K1_END')
    a('s_endpgm')
    return a


def wo_gather(a, r):
    V = 64 + 16 * r
    sf = 70 + r
    a('s_lshl_b32 s53, s2, 2'); a('s_and_b32 s58, s36, 3'); a('s_add_u32 s53, s53, s58')
    if r: a('s_add_u32 s53, s53, 1024')
    a(f's_mul_hi_u32 s54, s53, {-(-(1 << 32) // 36)}')
    a('s_mul_i32 s55, s54, 36'); a('s_sub_u32 s55, s53, s55')
    a('s_cmp_ge_u32 s55, 18')
    a('s_cselect_b32 s28, s32, s14'); a('s_cselect_b32 s29, s33, s15')
    a('s_cselect_b32 s56, 18, 0'); a('s_sub_u32 s55, s55, s56')
    a(f's_mov_b32 s30, {576*1152}'); a('s_mov_b32 s31, 0x00020000')
    a('s_mul_i32 s56, s55, 36')
    a('s_mul_i32 s57, s55, 288'); a(f's_sub_u32 s57, s57, {288*16-16}')
    a('s_cmp_ge_u32 s55, 16')
    a('s_cselect_b32 s56, s57, s56')
    a('s_cselect_b32 s57, 144, 20')
    a('s_cselect_b32 s58, 72, 8')
    a('s_cselect_b32 s59, 36, 4')
    a('s_mul_i32 s59, s59, 1152')
    a('v_lshrrev_b32 v13, 5, v2')
    a('v_mul_lo_u32 v13, v13, s57')
    a('v_bfe_u32 v14, v2, 4, 1')
    a('v_mul_lo_u32 v14, v14, s58')
    a('v_add3_u32 v13, v13, v14, s56')
    a('v_mul_u32_u24 v13, 1152, v13')
    a('v_and_b32 v14, 15, v2')
    a('v_lshl_add_u32 v13, v14, 1, v13')
    a('s_lshl_b32 s56, s54, 5')
    a('s_cmp_lt_u32 s53, 1296')
    a('s_cselect_b32 s56, s56, 0x7FF00000')
    a('v_add_u32 v13, s56, v13')
    a(f's_lshl_b32 s{sf}, s53, 10'); a(f's_add_u32 s{sf}, s{sf}, {WS_WOT}')
    a('s_cmp_lt_u32 s53, 1296')
    a(f's_cselect_b32 s{sf}, s{sf}, 0x7FF00000')
    for j in range(8):
        so = '0' if j < 4 else 's59'
        a(f'buffer_load_ushort v{V+j}, v13, s[28:31], {so} offen offset:{(j % 4) * 1152}')


def wo_store(a, r):
    V = 64 + 16 * r
    if r == 0:
        a('s_mov_b32 s24, s12'); a('s_mov_b32 s25, s13'); a(f's_mov_b32 s26, {WS_END}'); a('s_mov_b32 s27, 0x00020000')
        a('v_lshlrev_b32 v15, 4, v2')
        a('s_mul_i32 s58, s2, 1536'); a(f's_add_u32 s58, s58, {WS_KVS + 1520}')
        a('v_mov_b32 v16, 0')
        a('s_mov_b64 exec, 1')
        a('buffer_store_dword v16, v16, s[24:27], s58 offen')
        a('s_mov_b64 exec, -1')
    for j in range(4):
        a(f'v_lshl_or_b32 v{V+8+j}, v{V+1+2*j}, 16, v{V+2*j}')
    a(f'buffer_store_dwordx4 v[{V+8}:{V+11}], v15, s[24:27], s{70+r} offen')


def epi_setup(a, name, Na, Nb):
    def dest_scalars(stype, shp, N, sd, tail):
        if N:
            a(f's_sub_u32 s58, s{stype}, 3'); a(f's_cmp_eq_u32 s{stype}, 2'); a('s_cselect_b32 s58, 0, s58')
            a(f's_mul_i32 s58, s58, {NIMG * 32}')
            a(f's_mul_i32 s59, s{shp}, {NIMG * 2}')
            a(f's_add_u32 s{sd}, s58, s59'); a(f's_add_u32 s{sd}, s{sd}, {WS_VA}')
        else:
            a(f's_cmp_eq_u32 s{stype}, 3'); a(f's_cselect_b32 s58, 2, s{stype}')
            if tail:
                a('s_lshl_b32 s58, s58, 18'); a(f's_lshl_b32 s59, s{shp}, 14')
                a(f's_add_u32 s{sd}, s58, s59'); a(f's_add_u32 s{sd}, s{sd}, {WS_QAT}')
            else:
                a('s_lshl_b32 s58, s58, 21'); a(f's_lshl_b32 s59, s{shp}, 17')
                a(f's_add_u32 s{sd}, s58, s59')
                assert WS_QAM == 0
    dest_scalars(56, 53, Na, 80, False)
    dest_scalars(57, 54, Nb, 81, False)
    dest_scalars(57, 55, Nb, 82, True)
    for st, sd in ((56, 30), (57, 14)):
        a(f's_cmp_eq_u32 s{st}, 0'); a(f's_cselect_b32 s{sd}, {QSCALE_BITS}, 1.0'); a(f's_mov_b32 s{sd+1}, s{sd}')
    a(f's_mov_b32 s74, {LOG2E_BITS}'); a(f's_mov_b32 s75, {LOG2E_BITS}'); a(f's_mov_b32 s76, {EPS_BITS}')
    a(f'v_mov_b32 v60, {NEG_EPS_LOG2E_BITS}'); a(f'v_mov_b32 v61, {NEG_EPS_LOG2E_BITS}')
    if (not Na) or (not Nb):
        a('v_and_b32 v6, 1, v21'); a('v_lshl_add_u32 v6, v6, 2, v20'); a('v_lshlrev_b32 v6, 4, v6')
        a('v_lshrrev_b32 v7, 1, v21'); a('v_lshl_add_u32 v22, v7, 9, v6')
        a('s_lshl_b32 s58, s77, 5'); a('v_add_u32 v22, s58, v22')
    if not Nb:
        a('v_add_u32 v6, s77, v20'); a('v_lshlrev_b32 v6, 3, v6'); a('v_lshl_add_u32 v23, v21, 14, v6')
        a('v_mov_b32 v7, 0x7FF00000'); a('v_cmp_gt_u32 vcc, s50, v21'); a('v_cndmask_b32 v23, v7, v23, vcc')
    if Na or Nb:
        a('s_lshr_b32 s58, s77, 3'); a('v_add_u32 v6, s58, v21'); a('v_mul_u32_u24 v6, 18, v6')
        a('v_and_b32 v7, 15, v2'); a('v_add_u32 v24, v6, v7'); a('v_lshlrev_b32 v24, 4, v24')
    if Nb:
        a('v_and_b32 v8, 1, v7'); a('v_add3_u32 v8, v6, v8, 16'); a('v_lshlrev_b32 v8, 4, v8')
        a('v_lshrrev_b32 v9, 1, v7'); a(f's_mov_b32 s58, {NIMG}'); a('v_mul_lo_u32 v9, v9, s58'); a('v_add_u32 v25, v8, v9')
        a('v_mov_b32 v8, 0x7FF00000'); a('v_lshrrev_b32 v9, 2, v7'); a('v_cmp_gt_u32 vcc, s50, v9')
        a('v_cndmask_b32 v25, v8, v25, vcc')
    if name == 'TT':
        a('v_add_u32 v6, s77, v20'); a('v_lshlrev_b32 v6, 2, v6')
        a('v_mov_b32 v7, 0x7FF00000'); a('v_cmp_eq_u32 vcc, 2, v21'); a('v_cndmask_b32 v26, v7, v6, vcc')
        a('s_lshl_b32 s58, s40, 1'); a('s_or_b32 s58, s58, s44')
        a('s_cmp_eq_u32 s58, 1'); a(f's_cselect_b32 s83, {WS_G}, 0x7FF00000' if False else f's_mov_b32 s83, {WS_G}')
        a('s_cselect_b32 s83, s83, 0x7FF00000')


def epilogue(a, name, Na, Nb, X=()):
    ST = ' sc1' if 'sc1' in X else (' nt' if 'nt' in X else (' sc0 sc1' if 'sc01' in X else ''))
    cnt = [0]

    def store_tile(tile):
        N = Na if tile < 2 else Nb
        sd = 80 if tile < 2 else (82 if tile == 2 else 81)
        hl = {0: 0, 1: 1, 2: 0, 3: 0, 4: 1, 5: 2, 6: 3}[tile]
        for G in range(2):
            X, Y = acc(2 * G, tile), acc(2 * G + 1, tile)
            t = 96 + (cnt[0] % 8) * 4
            cnt[0] += 1
            a(f'v_cvt_pk_bf16_f32 v{t}, v{X}, v{X+1}'); a(f'v_cvt_pk_bf16_f32 v{t+1}, v{X+2}, v{X+3}')
            a(f'v_cvt_pk_bf16_f32 v{t+2}, v{Y}, v{Y+1}'); a(f'v_cvt_pk_bf16_f32 v{t+3}, v{Y+2}, v{Y+3}')
            if N:
                voff = 25 if tile == 2 else 24
                a(f's_add_u32 s58, s{sd}, {hl * NIMG + G * 4 * 288}')
                a(f'buffer_store_dwordx4 {vr(t)}, v{voff}, s[24:27], s58 offen{ST}')
            elif tile == 2:
                a(f'buffer_store_dwordx2 {vr(t, 2)}, v23, s[24:27], s{sd} offen offset:{G * 256}{ST}')
                a(f'buffer_store_dwordx2 {vr(t + 2, 2)}, v23, s[24:27], s{sd} offen offset:{G * 256 + 32}{ST}')
            else:
                a(f's_add_u32 s58, s{sd}, {hl * 65536 + G * 1024}')
                a(f'v_permlane16_swap_b32 v{t}, v{t+2}')
                a(f'v_permlane16_swap_b32 v{t+1}, v{t+3}')
                a(f'buffer_store_dwordx4 {vr(t)}, v22, s[24:27], s58 offen{ST}')

    a.waitcnt(lg=0)
    if name == 'TT':
        for rt in range(4):
            a(f'v_mul_f32 v{50+rt}, 0xBFB8AA3B, v{acc(rt, 2)}')
        for rt in range(4):
            a(f'v_exp_f32 v{50+rt}, v{50+rt}')
        for rt in range(4):
            a(f'v_add_f32 v{50+rt}, 1.0, v{50+rt}')
        for rt in range(4):
            a(f'v_rcp_f32 v{50+rt}, v{50+rt}')
        for rt in range(4):
            a(f'buffer_store_dword v{50+rt}, v26, s[24:27], s83 offen offset:{(rt // 2) * 128 + (rt % 2) * 16}')
    for seg, tiles, sphi, ssc in (('a', (0, 1), 66, 30), ('b', (2, 3, 4, 5, 6), 67, 14)):
        N = Na if seg == 'a' else Nb
        lab = f'K1_{name}_{seg}'
        a(f's_cmp_eq_u32 s{sphi}, 0')
        a(f's_cbranch_scc1 {lab}_nophi')
        st = a.snapshot()
        c0 = cnt[0]
        for tile in tiles:
            T = 64
            rr = [ACC + tile * 16 + r for r in range(16)]
            for k in range(0, 16, 2):
                a(f'v_pk_fma_f32 v[{T+k}:{T+k+1}], v[{rr[k]}:{rr[k]+1}], s[74:75], v[60:61]')
            for k in range(16):
                a(f'v_exp_f32_e64 v{T+k}, v{T+k} clamp')
                a(f'v_max_f32 v{rr[k]}, s76, v{rr[k]}')
            for k in range(0, 16, 2):
                a(f'v_pk_add_f32 v[{rr[k]}:{rr[k]+1}], v[{rr[k]}:{rr[k]+1}], v[{T+k}:{T+k+1}]')
            store_tile(tile)
        a(f's_branch {lab}_done')
        st1 = a.snapshot()
        a.restore(st)
        cnt[0] = c0
        a.label(f'{lab}_nophi')
        for tile in tiles:
            if not N:
                for k in range(0, 16, 2):
                    r = ACC + tile * 16 + k
                    a(f'v_pk_mul_f32 v[{r}:{r+1}], v[{r}:{r+1}], s[{ssc}:{ssc+1}]')
            store_tile(tile)
        a.label(f'{lab}_done')
        a.nop(2)


DESC = """
.amdhsa_kernel qkv_kernel
  .amdhsa_next_free_vgpr 240
  .amdhsa_next_free_sgpr 102
  .amdhsa_accum_offset 240
  .amdhsa_group_segment_fixed_size 0
  .amdhsa_kernarg_size 80
  .amdhsa_user_sgpr_count 2
  .amdhsa_user_sgpr_kernarg_segment_ptr 1
  .amdhsa_system_sgpr_workgroup_id_x 1
.end_amdhsa_kernel
"""
BLOCK = 512
```

```python
from asmlib import Asm
from layout import *

WPART = 14400
SLOT = WPART
NS = 6
XBASE = NS * SLOT
XSLOT = 16384
NX = 4
LDS1 = XBASE + NX * XSLOT
assert XBASE % 128 == 0

ACC = 128
WF = 96
NWF = 6
XF = 64


PFS = [(2, 0), (0, 4), (6, 0), (0, 8)]
PF = {'pf1': ([(2, 2)], [(4, 6), (8, 8)]), 'pf2': ([(2, 4)], [(6, 8)]), 'pf3': ([(0, 2)], [(4, 6), (8, 8)]), 'pf4': ([(2, 4)], [])}


def acc(rt, tile):
    return ACC + (tile * 4 + rt) * 4


def vr(b, n=4):
    return f'v[{b}:{b+n-1}]'


def gen(prof=False, X=()):
    a = Asm()
    a.prof = prof
    a.raw('.p2align 8')
    a.raw('.globl qkv_kernel')
    a.raw('.type qkv_kernel,@function')
    a.label('qkv_kernel')
    a('s_cmp_ge_u32 s2, 256')
    a('s_cbranch_scc1 K1_END')
    a.stamp(0, real=True); a.stamp(1)
    a('s_load_dwordx4 s[4:7], s[0:1], 0')
    a('s_load_dwordx2 s[8:9], s[0:1], 32')
    a('s_load_dwordx2 s[10:11], s[0:1], 48')
    a('s_load_dwordx2 s[12:13], s[0:1], 72')
    a('s_load_dwordx2 s[14:15], s[0:1], 16')
    a('s_load_dwordx2 s[32:33], s[0:1], 40')
    a('v_lshrrev_b32 v1, 6, v0')
    a('v_and_b32 v2, 63, v0')
    a('v_readfirstlane_b32 s36, v1')
    a('s_and_b32 s37, s2, 7')
    a('s_lshr_b32 s38, s2, 3')
    a('s_and_b32 s39, s37, 1')
    a('s_lshl_b32 s39, s39, 3')
    a('s_and_b32 s40, s38, 7')
    a('s_add_u32 s39, s39, s40')
    a('s_lshr_b32 s40, s37, 1')
    a('s_lshl_b32 s40, s40, 2')
    a('s_lshr_b32 s41, s38, 3')
    a('s_add_u32 s40, s40, s41')
    a('s_lshr_b32 s41, s40, 3')
    a('s_and_b32 s42, s40, 7')
    a('s_and_b32 s43, s36, 1')
    a('s_bfe_u32 s44, s36, 0x10001')
    a('s_cmp_ge_u32 s36, 4')
    a('s_cbranch_scc0 K1_COMPUTE')
    st_entry = a.snapshot()

    a('s_setprio 3')
    a('s_mov_b32 s34, 0xF7FFFFFF')
    a('s_mov_b32 s35, 0x007FFFFF')
    a('v_cmp_le_u32 vcc, 28, v2')
    a('v_mov_b32 v4, 0')
    a('v_mov_b32 v5, 3008')
    a('v_cndmask_b32 v4, v4, v5, vcc')
    a('v_lshl_add_u32 v3, v2, 4, v4')
    a('s_mul_i32 s58, s42, 432')
    a('v_add_u32 v3, s58, v3')
    a('v_lshrrev_b32 v5, 3, v2')
    a('v_and_b32 v6, 7, v2')
    a('v_and_b32 v7, 2, v5')
    a('v_lshlrev_b32 v7, 1, v7')
    a('s_lshl_b32 s58, s43, 1')
    a('v_or_b32 v7, s58, v7')
    a('v_xor_b32 v6, v6, v7')
    a('v_mul_u32_u24 v5, 1152, v5')
    a('v_lshl_add_u32 v4, v6, 4, v5')
    a('s_mul_i32 s60, s44, 7200')
    a('s_mul_i32 s58, s43, 3616')
    a('s_add_u32 s60, s60, s58')
    a('s_and_b32 s58, s36, 3')
    a('s_mul_i32 s61, s58, 27648')
    a('s_lshl_b32 s58, s43, 1'); a('s_lshl_b32 s59, s44, 3'); a('s_add_u32 s58, s58, s59')
    a('s_lshl_b32 s62, s58, 10'); a(f's_add_u32 s62, s62, {XBASE}')
    a('s_lshl_b32 s59, s39, 4'); a('s_add_u32 s58, s58, s59')
    a('s_mul_i32 s63, s58, 9216')
    a('s_and_b32 s58, s38, 7'); a('s_lshr_b32 s59, s38, 3'); a('s_lshl_b32 s59, s59, 1'); a('s_add_u32 s58, s58, s59')
    a('s_sub_u32 s59, s58, 9'); a('s_cmp_ge_u32 s58, 9'); a('s_cselect_b32 s66, s59, s58')
    if 'norot' in X: a('s_mov_b32 s66, 0')
    if 'rot3' in X:
        a('s_mul_i32 s58, s66, 43'); a('s_lshr_b32 s58, s58, 7'); a('s_mul_i32 s66, s58, 3')
    if 'rot2' in X:
        a('s_and_b32 s66, s66, 1'); a('s_lshl_b32 s66, s66, 2')
    a.waitcnt(lg=0)
    a('s_mov_b32 s16, s4'); a('s_mov_b32 s17, s5'); a(f's_mov_b32 s18, {2048*1152}'); a('s_mov_b32 s19, 0x00020000')
    a('s_cmp_eq_u32 s41, 0')
    a('s_cselect_b32 s20, s6, s8'); a('s_cselect_b32 s21, s7, s9')
    a(f's_mov_b32 s22, {576*3456}'); a('s_mov_b32 s23, 0x00020000')
    a('s_mov_b32 s28, s10'); a('s_mov_b32 s29, s11'); a('s_mov_b32 s30, 1152'); a('s_mov_b32 s31, 0x00020000')

    def kblock(A):
        a(f's_add_u32 s67, s66, {A}'); a('s_sub_u32 s58, s67, 9'); a('s_cmp_ge_u32 s67, 9'); a('s_cselect_b32 s67, s58, s67')

    def xhalf(A, h):
        if h == 0:
            kblock(A)
            a('s_lshl_b32 s69, s67, 7'); a('s_add_u32 s69, s69, s63')
        for n in (2 * h, 2 * h + 1):
            rg = (n & 1) + 4 * (n >> 1)
            a(f's_add_u32 m0, s62, {(A % NX) * XSLOT + rg * 1024}')
            a(f's_add_u32 s65, s69, {rg * 9216}')
            if 'noload' not in X and 'nox' not in X: a('buffer_load_dwordx4 v4, s[16:19], s65 offen lds', tag=('x', A))

    def xchunk(A):
        xhalf(A, 0); xhalf(A, 1)

    def wchunk(c):
        if c % 2 == 0:
            kblock(c // 2)
            a(f's_mul_i32 s68, s67, {64 * 3456}'); a('s_add_u32 s68, s68, s61')
        a('s_mov_b64 exec, s[34:35]')
        for n in range(4):
            a(f's_add_u32 m0, s60, {(c % NS) * SLOT + n * 896}')
            a(f's_add_u32 s64, s68, {((c % 2) * 32 + 2 * n) * 3456}')
            if 'noload' not in X and 'now' not in X: a('buffer_load_dwordx4 v3, s[20:23], s64 offen lds', tag=('w', c))
        a('s_mov_b64 exec, -1')

    xchunk(0); wchunk(0)
    a('v_lshlrev_b32 v19, 1, v2')
    for g in range(9):
        kblock(g); a('s_lshl_b32 s58, s67, 7')
        a(f'buffer_load_ushort v{41+g}, v19, s[28:31], s58 offen', tag=('w', 0))
    wchunk(1)
    if 'deep' in X: xchunk(1); wchunk(2); wchunk(3)
    a('v_bfe_u32 v6, v2, 4, 1')
    a('v_mul_u32_u24 v18, 7200, v6')
    a('v_and_b32 v6, 15, v2')
    a('v_mul_u32_u24 v6, 448, v6')
    a('v_add_u32 v18, v18, v6')
    a('v_bfe_u32 v6, v2, 3, 1')
    a('v_lshl_add_u32 v18, v6, 5, v18')
    a('v_lshrrev_b32 v6, 5, v2')
    a(f'v_mul_u32_u24 v6, {SLOT}, v6')
    a('v_add_u32 v18, v18, v6')
    a('v_add_u32 v18, 432, v18')
    a(f'v_add_u32 v17, {4*SLOT}, v18')

    def gate_write(g):
        sl = (2 * g) % NS
        if sl == 4:
            a(f'ds_write_b16 v17, v{41+g}')
        else:
            a(f'ds_write_b16 v18, v{41+g} offset:{sl * SLOT}')
    if 'free' in X:
        win = [int(x[1:]) for x in X if x[0] == 'n' and x[1:].isdigit()][0]
        a.stamp(2)
        for s in range(4, 18):
            if s % 2 == 0:
                xchunk(s // 2)
            wchunk(s)
            a.waitcnt(vm=min(win, 63))
            if s in (8, 12): a.stamp({8: 3, 12: 4}[s])
        a.stamp(5); a.stamp(6); a.stamp(7)
        a('s_sub_u32 s36, s36, 4')
        a('s_branch K1_FIN')
    a.wait_vm_tag(('w', 0))
    for g in range(3):
        gate_write(g)
    a.waitcnt(lg=0)
    a('s_barrier')
    if 'deep' not in X: xchunk(1); wchunk(2); wchunk(3)
    plan = {0: [('x', 2, 0), ('w', 4), ('x', 2, 1), ('w', 5)]}
    for s in range(1, 18):
        p = []
        if (s + 5) // 2 < 9: p.append(('x', (s + 5) // 2, (s + 5) % 2))
        if s + 5 < 18: p.append(('w', s + 5))
        plan[s] = p
    L = 'lst' in X
    for s in range(18):
        if L and s in (7, 8): a.stamp(2 + 3 * (s - 7))
        a.wait_vm_tag(('w', s + 1))
        a.wait_vm_tag(('x', (s + 1) // 2))
        a.waitcnt(lg=0)
        if L and s in (7, 8): a.stamp(3 + 3 * (s - 7))
        a('s_barrier')
        if L and s in (7, 8): a.stamp(4 + 3 * (s - 7))
        for p in plan[s]:
            if p[0] == 'x': xhalf(p[1], p[2])
            else: wchunk(p[1])
        if s + 5 < 18 and (s + 5) % 2 == 1 and s + 5 >= 7:
            gate_write((s + 5) // 2)
        if s == 13:
            wo_gather(a, 0); wo_gather(a, 1)
        if s == 16:
            wo_store(a, 0); wo_store(a, 1)
    if L:
        a('s_sub_u32 s36, s36, 4')
        a('s_branch K1_FIN')
    a('s_branch K1_END')

    a.restore(st_entry)
    a.label('K1_COMPUTE')
    if 'free' in X: a('s_branch K1_END')
    if 'pf' in X:
        a('s_cmp_eq_u32 s43, 1'); a('s_cbranch_scc1 K1_PFW')
        a('v_and_b32 v6, 31, v2'); a('s_and_b32 s58, s37, 1'); a('s_lshl_b32 s58, s58, 5'); a('s_add_u32 s58, s58, s38'); a('s_lshl_b32 s58, s58, 5')
        a('v_add_u32 v6, s58, v6'); a('v_mul_u32_u24 v6, 1152, v6'); a('v_lshrrev_b32 v7, 5, v2'); a('v_lshl_add_u32 v6, v7, 7, v6')
        a('s_mov_b32 s78, 128')
        stp = a.snapshot()
        a.waitcnt(lg=0)
        a('s_mov_b32 s16, s4'); a('s_mov_b32 s17, s5'); a(f's_mov_b32 s18, {2048*1152}'); a('s_mov_b32 s19, 0x00020000')
        a('s_branch K1_PFGO')
        a.restore(stp)
        a.label('K1_PFW')
        a('v_min_u32 v6, 55, v2')
        a('v_cmp_le_u32 vcc, 28, v6'); a('v_mov_b32 v7, 0'); a(f'v_mov_b32 v8, {64 * 3456 - 28 * 128}'); a('v_cndmask_b32 v7, v7, v8, vcc')
        a('v_subrev_u32 v8, 28, v6'); a('v_cndmask_b32 v8, v6, v8, vcc')
        a('v_lshl_add_u32 v6, v6, 7, v7')
        a('v_cmp_le_u32 vcc, 14, v8'); a('v_mov_b32 v7, 0'); a(f'v_mov_b32 v8, {3456 - 14 * 128}'); a('v_cndmask_b32 v7, v7, v8, vcc')
        a('v_add_u32 v6, v6, v7')
        a('s_bfe_u32 s58, s37, 0x10001'); a('s_mul_i32 s58, s58, 1664'); a('s_mul_i32 s59, s38, 6912'); a('s_add_u32 s58, s58, s59')
        a('v_add_u32 v6, s58, v6')
        a(f's_mov_b32 s78, {64 * 3456}')
        a.waitcnt(lg=0)
        a('s_cmp_eq_u32 s41, 0')
        a('s_cselect_b32 s16, s6, s8'); a('s_cselect_b32 s17, s7, s9')
        a(f's_mov_b32 s18, {576*3456}'); a('s_mov_b32 s19, 0x00020000')
        a.label('K1_PFGO')
        a('v_mov_b32 v27, v6')
        OOB = 0x7FF00000 // 1
        for sd, (b0, b1) in zip((58, 88 if False else 28, 29, 34), PFS):
            a('s_cmp_eq_u32 s44, 0'); a(f's_cselect_b32 s{sd}, {b0}, {b1}'); a(f's_mul_i32 s{sd}, s{sd}, s78')
            a(f's_cmp_eq_u32 s{sd}, 0'); a(f's_cselect_b32 s{sd}, {OOB}, s{sd}')
        a('buffer_load_dword v28, v27, s[16:19], s58 offen', tag='untracked')
    a('s_cmp_eq_u32 s42, 5')
    a('s_cselect_b32 s45, 2, 0')
    a('s_cselect_b32 s46, 0, 4')
    a('s_add_u32 s47, s45, 3')
    a('s_add_u32 s48, s45, 1')
    a('s_cmp_eq_u32 s44, 0')
    a('s_cselect_b32 s47, s45, s47')
    a('s_cselect_b32 s48, s48, s46')
    a('s_cselect_b32 s49, s45, s46')
    a('s_cselect_b32 s50, 4, 2')
    a('s_mul_i32 s51, s42, 6')
    a('s_mul_i32 s52, s41, 3')
    a('s_add_u32 s53, s51, s47')
    a('s_add_u32 s54, s51, s48')
    a('s_add_u32 s55, s51, s49')
    a('s_lshr_b32 s56, s53, 4')
    a('s_add_u32 s56, s56, s52')
    a('s_lshr_b32 s57, s54, 4')
    a('s_add_u32 s57, s57, s52')
    a('s_and_b32 s53, s53, 15')
    a('s_and_b32 s54, s54, 15')
    a('s_and_b32 s55, s55, 15')
    a('v_lshrrev_b32 v6, 5, v2')
    a('v_mul_u32_u24 v5, 7200, v6')
    a('v_bfe_u32 v6, v2, 4, 1')
    a('v_mul_u32_u24 v6, 3616, v6')
    a('v_add_u32 v5, v5, v6')
    a('v_bfe_u32 v6, v2, 2, 2')
    a('v_mul_u32_u24 v6, 448, v6')
    a('v_add_u32 v5, v5, v6')
    a('v_and_b32 v6, 3, v2')
    a('v_lshl_add_u32 v7, v6, 3, v5')
    a('s_mul_i32 s58, s47, 72')
    a('v_add_u32 v10, s58, v7')
    a('s_mul_i32 s58, s48, 72')
    a('v_add_u32 v12, s58, v7')
    a('v_add_u32 v8, s49, v6')
    a('v_mul_u32_u24 v8, 72, v8')
    a('v_add_u32 v8, 32, v8')
    a('v_lshlrev_b32 v9, 3, v6')
    a('v_add_u32 v9, 416, v9')
    a('v_cmp_gt_u32 vcc, s50, v6')
    a('v_cndmask_b32 v8, v9, v8, vcc')
    a('v_add_u32 v11, v5, v8')
    a('v_and_b32 v6, 15, v2')
    a('v_lshrrev_b32 v7, 2, v6')
    a('v_and_b32 v8, 3, v6')
    a('v_lshl_add_u32 v20, v7, 3, v8')
    a('s_lshl_b32 s58, s43, 6')
    a('v_add_u32 v9, s58, v20')
    a('v_lshlrev_b32 v9, 7, v9')
    a('v_and_b32 v8, 2, v8')
    a('v_lshlrev_b32 v8, 1, v8')
    a('v_and_b32 v7, 2, v7')
    a('v_or_b32 v7, v7, v8')
    a('v_lshrrev_b32 v21, 4, v2')
    a('v_xor_b32 v8, v21, v7')
    a('v_lshl_add_u32 v13, v8, 4, v9')
    a(f'v_add_u32 v13, {XBASE}, v13')
    a('v_xor_b32 v17, 64, v13')
    a('v_mov_b32 v18, v13')
    a('s_mov_b32 s79, 0')
    for r in (10, 11, 12):
        a(f'v_add_u32 v{r+4}, {3*SLOT}, v{r}')
    a('s_lshr_b32 s58, 0x18, s56'); a('s_and_b32 s66, s58, 1')
    a('s_lshr_b32 s58, 0x18, s57'); a('s_and_b32 s67, s58, 1')
    a(f's_mul_i32 s68, s66, {EPS_BITS}')
    a(f's_mul_i32 s69, s67, {EPS_BITS}')
    for tile in range(7):
        for r in range(16):
            a(f'v_mov_b32 v{ACC + tile*16 + r}, s{68 if tile < 2 else 69}')
    a('s_lshr_b32 s58, 0x34, s56'); a('s_and_b32 s70, s58, 1')
    a('s_lshr_b32 s58, 0x34, s57'); a('s_and_b32 s71, s58, 1')
    a('s_lshl_b32 s58, s70, 1'); a('s_or_b32 s72, s58, s71')
    a.waitcnt(lg=0)
    a('s_mov_b32 s24, s12'); a('s_mov_b32 s25, s13'); a(f's_mov_b32 s26, {WS_END}'); a('s_mov_b32 s27, 0x00020000')
    a('s_lshl_b32 s77, s39, 7'); a('s_lshl_b32 s58, s43, 6'); a('s_add_u32 s77, s77, s58')
    a('s_mov_b32 s73, 3')
    a.stamp(2)
    a('s_cmp_eq_u32 s72, 1'); a('s_cbranch_scc1 K1_TN')
    a('s_cmp_eq_u32 s72, 2'); a('s_cbranch_scc1 K1_NT')
    a('s_cmp_eq_u32 s72, 3'); a('s_cbranch_scc1 K1_NN')
    state = a.snapshot()

    def tile_addr(tile, slot):
        base = {0: 10, 1: 10, 2: 11}.get(tile, 12)
        imm = {0: 0, 1: 40, 2: 0, 3: 0, 4: 40, 5: 72, 6: 112}[tile]
        if slot >= 3:
            base += 4
            slot -= 3
        return base, imm + slot * SLOT

    for (name, Na, Nb) in (('TT', 0, 0), ('TN', 0, 1), ('NT', 1, 0), ('NN', 1, 1)):
        a.restore(state)
        a.label(f'K1_{name}')
        epi_setup(a, name, Na, Nb)

        def wread(idx):
            s, t = (idx // 7) % NS, idx % 7
            b, imm = tile_addr(t, s)
            d = WF + (idx % NWF) * 4
            a(f'ds_read_b64_tr_b16 {vr(d, 2)}, v{b} offset:{imm}')
            a(f'ds_read_b64_tr_b16 {vr(d + 2, 2)}, v{b} offset:{imm + 1792}')

        def xread(s, rt):
            d = XF + (s % 2) * 16 + rt * 4
            off = (rt // 2) * 4096 + (rt % 2) * 512
            a(f'ds_read_b128 {vr(d)}, v{13 if s % 2 == 0 else 17} offset:{off}')

        DIST = 4
        a('s_barrier')
        a.stamp(3)
        if 'pf' in X: a('buffer_load_dword v28, v27, s[16:19], s28 offen', tag='untracked')
        pre = []

        def body():
            for s in range(NS):
                a('s_barrier')
                for t in range(7):
                    idx = s * 7 + t
                    wf = WF + (idx % NWF) * 4
                    N = Na if t < 2 else Nb
                    for rt in range(4):
                        xf = XF + (s % 2) * 16 + rt * 4
                        d = acc(rt, t)
                        if 'nocomp' in X:
                            continue
                        if N:
                            a(f'v_mfma_f32_16x16x32_bf16 {vr(d)}, {vr(xf)}, {vr(wf)}, {vr(d)}')
                        else:
                            a(f'v_mfma_f32_16x16x32_bf16 {vr(d)}, {vr(wf)}, {vr(xf)}, {vr(d)}')
                        if rt == 0 and 'nowr' not in X:
                            wread(idx + DIST)
                        if rt == 2 and t <= 3 and 'nowr' not in X:
                            xread(s + 1, t)
                        if 'pf' in X and rt == 1 and t == 6 and s in (0, 2):
                            sd = 29 if s == 0 else 34
                            a(f'buffer_load_dword v28, v27, s[16:19], s{sd} offen', tag='untracked')
                            a(f's_mov_b32 s{sd}, 0x7FF00000')
                        if rt == 1 and t == 5 and s % 2 == 0:
                            a(f's_add_u32 s79, s79, {XSLOT}'); a(f's_and_b32 s79, s79, {NX * XSLOT - 1}')
                            a('v_add_u32 v13, s79, v18'); a('v_xor_b32 v17, 64, v13')

        def tail():
            a('s_sub_u32 s73, s73, 1'); a('s_cmp_lg_u32 s73, 0'); a(f's_cbranch_scc1 K1_{name}_LOOP')
        for rt in range(3):
            xread(0, rt)
        wread(0); xread(0, 3); wread(1); wread(2); wread(3)
        n0 = len(a.lines); st = a.snapshot(); body(); tail(); back = a.snapshot(); del a.lines[n0:]; a.restore(st)
        a.waitcnt(lg=0 if ('nocomp' in X or 'nowr' in X) else len(back[5]))
        a.loop(f'K1_{name}_LOOP', body, tail)
        a.stamp(7)
        if 'noepi' not in X: epilogue(a, name, Na, Nb, X)
        a.stamp(4); a.stamp(5); a.stamp(6)
        a('s_branch K1_END' if 'lst' in X else 's_branch K1_FIN')
    a.label('K1_FIN')
    a.reset_state()
    a.stamp_flush(12, 0, 3, 36, 2, WS_PROF)
    a.label('K1_END')
    a('s_endpgm')
    return a


def wo_gather(a, r):
    V = 64 + 16 * r
    sf = 70 + r
    a('s_lshl_b32 s53, s2, 2'); a('s_and_b32 s58, s36, 3'); a('s_add_u32 s53, s53, s58')
    if r: a('s_add_u32 s53, s53, 1024')
    a(f's_mul_hi_u32 s54, s53, {-(-(1 << 32) // 36)}')
    a('s_mul_i32 s55, s54, 36'); a('s_sub_u32 s55, s53, s55')
    a('s_cmp_ge_u32 s55, 18')
    a('s_cselect_b32 s28, s32, s14'); a('s_cselect_b32 s29, s33, s15')
    a('s_cselect_b32 s56, 18, 0'); a('s_sub_u32 s55, s55, s56')
    a(f's_mov_b32 s30, {576*1152}'); a('s_mov_b32 s31, 0x00020000')
    a('s_mul_i32 s56, s55, 36')
    a('s_mul_i32 s57, s55, 288'); a(f's_sub_u32 s57, s57, {288*16-16}')
    a('s_cmp_ge_u32 s55, 16')
    a('s_cselect_b32 s56, s57, s56')
    a('s_cselect_b32 s57, 144, 20')
    a('s_cselect_b32 s58, 72, 8')
    a('s_cselect_b32 s59, 36, 4')
    a('s_mul_i32 s59, s59, 1152')
    a('v_lshrrev_b32 v13, 5, v2')
    a('v_mul_lo_u32 v13, v13, s57')
    a('v_bfe_u32 v14, v2, 4, 1')
    a('v_mul_lo_u32 v14, v14, s58')
    a('v_add3_u32 v13, v13, v14, s56')
    a('v_mul_u32_u24 v13, 1152, v13')
    a('v_and_b32 v14, 15, v2')
    a('v_lshl_add_u32 v13, v14, 1, v13')
    a('s_lshl_b32 s56, s54, 5')
    a('s_cmp_lt_u32 s53, 1296')
    a('s_cselect_b32 s56, s56, 0x7FF00000')
    a('v_add_u32 v13, s56, v13')
    a(f's_lshl_b32 s{sf}, s53, 10'); a(f's_add_u32 s{sf}, s{sf}, {WS_WOT}')
    a('s_cmp_lt_u32 s53, 1296')
    a(f's_cselect_b32 s{sf}, s{sf}, 0x7FF00000')
    for j in range(8):
        so = '0' if j < 4 else 's59'
        a(f'buffer_load_ushort v{V+j}, v13, s[28:31], {so} offen offset:{(j % 4) * 1152}')


def wo_store(a, r):
    V = 64 + 16 * r
    if r == 0:
        a('s_mov_b32 s24, s12'); a('s_mov_b32 s25, s13'); a(f's_mov_b32 s26, {WS_END}'); a('s_mov_b32 s27, 0x00020000')
        a('v_lshlrev_b32 v15, 4, v2')
        a('s_mul_i32 s58, s2, 1536'); a(f's_add_u32 s58, s58, {WS_KVS + 1520}')
        a('v_mov_b32 v16, 0')
        a('s_mov_b64 exec, 1')
        a('buffer_store_dword v16, v16, s[24:27], s58 offen')
        a('s_mul_i32 s58, s2, 1536'); a(f's_add_u32 s58, s58, {WS_FLG}')
        a('s_mov_b64 exec, 0xFFF')
        a('v_lshlrev_b32 v14, 7, v2')
        a('buffer_store_dword v16, v14, s[24:27], s58 offen')
        a('s_mov_b64 exec, -1')
    for j in range(4):
        a(f'v_lshl_or_b32 v{V+8+j}, v{V+1+2*j}, 16, v{V+2*j}')
    a(f'buffer_store_dwordx4 v[{V+8}:{V+11}], v15, s[24:27], s{70+r} offen')


def epi_setup(a, name, Na, Nb):
    def dest_scalars(stype, shp, N, sd, tail):
        if N:
            a(f's_sub_u32 s58, s{stype}, 3'); a(f's_cmp_eq_u32 s{stype}, 2'); a('s_cselect_b32 s58, 0, s58')
            a(f's_mul_i32 s58, s58, {NIMG * 32}')
            a(f's_mul_i32 s59, s{shp}, {NIMG * 2}')
            a(f's_add_u32 s{sd}, s58, s59'); a(f's_add_u32 s{sd}, s{sd}, {WS_VA}')
        else:
            a(f's_cmp_eq_u32 s{stype}, 3'); a(f's_cselect_b32 s58, 2, s{stype}')
            if tail:
                a('s_lshl_b32 s58, s58, 18'); a(f's_lshl_b32 s59, s{shp}, 14')
                a(f's_add_u32 s{sd}, s58, s59'); a(f's_add_u32 s{sd}, s{sd}, {WS_QAT}')
            else:
                a('s_lshl_b32 s58, s58, 21'); a(f's_lshl_b32 s59, s{shp}, 17')
                a(f's_add_u32 s{sd}, s58, s59')
                assert WS_QAM == 0
    dest_scalars(56, 53, Na, 80, False)
    dest_scalars(57, 54, Nb, 81, False)
    dest_scalars(57, 55, Nb, 82, True)
    for st, sd in ((56, 30), (57, 14)):
        a(f's_cmp_eq_u32 s{st}, 0'); a(f's_cselect_b32 s{sd}, {QSCALE_BITS}, 1.0'); a(f's_mov_b32 s{sd+1}, s{sd}')
    a(f's_mov_b32 s74, {LOG2E_BITS}'); a(f's_mov_b32 s75, {LOG2E_BITS}'); a(f's_mov_b32 s76, {EPS_BITS}')
    a(f'v_mov_b32 v60, {NEG_EPS_LOG2E_BITS}'); a(f'v_mov_b32 v61, {NEG_EPS_LOG2E_BITS}')
    if (not Na) or (not Nb):
        a('v_and_b32 v6, 1, v21'); a('v_lshl_add_u32 v6, v6, 2, v20'); a('v_lshlrev_b32 v6, 4, v6')
        a('v_lshrrev_b32 v7, 1, v21'); a('v_lshl_add_u32 v22, v7, 9, v6')
        a('s_lshl_b32 s58, s77, 5'); a('v_add_u32 v22, s58, v22')
    if not Nb:
        a('v_add_u32 v6, s77, v20'); a('v_lshlrev_b32 v6, 3, v6'); a('v_lshl_add_u32 v23, v21, 14, v6')
        a('v_mov_b32 v7, 0x7FF00000'); a('v_cmp_gt_u32 vcc, s50, v21'); a('v_cndmask_b32 v23, v7, v23, vcc')
    if Na or Nb:
        a('s_lshr_b32 s58, s77, 3'); a('v_add_u32 v6, s58, v21'); a('v_mul_u32_u24 v6, 18, v6')
        a('v_and_b32 v7, 15, v2'); a('v_add_u32 v24, v6, v7'); a('v_lshlrev_b32 v24, 4, v24')
    if Nb:
        a('v_and_b32 v8, 1, v7'); a('v_add3_u32 v8, v6, v8, 16'); a('v_lshlrev_b32 v8, 4, v8')
        a('v_lshrrev_b32 v9, 1, v7'); a(f's_mov_b32 s58, {NIMG}'); a('v_mul_lo_u32 v9, v9, s58'); a('v_add_u32 v25, v8, v9')
        a('v_mov_b32 v8, 0x7FF00000'); a('v_lshrrev_b32 v9, 2, v7'); a('v_cmp_gt_u32 vcc, s50, v9')
        a('v_cndmask_b32 v25, v8, v25, vcc')
    if name == 'TT':
        a('v_add_u32 v6, s77, v20'); a('v_lshlrev_b32 v6, 2, v6')
        a('v_mov_b32 v7, 0x7FF00000'); a('v_cmp_eq_u32 vcc, 2, v21'); a('v_cndmask_b32 v26, v7, v6, vcc')
        a('s_lshl_b32 s58, s40, 1'); a('s_or_b32 s58, s58, s44')
        a('s_cmp_eq_u32 s58, 1'); a(f's_cselect_b32 s83, {WS_G}, 0x7FF00000' if False else f's_mov_b32 s83, {WS_G}')
        a('s_cselect_b32 s83, s83, 0x7FF00000')


def epilogue(a, name, Na, Nb, X=()):
    ST = ' sc1' if 'sc1' in X else (' nt' if 'nt' in X else (' sc0 sc1' if 'sc01' in X else ''))
    cnt = [0]

    def store_tile(tile):
        N = Na if tile < 2 else Nb
        sd = 80 if tile < 2 else (82 if tile == 2 else 81)
        hl = {0: 0, 1: 1, 2: 0, 3: 0, 4: 1, 5: 2, 6: 3}[tile]
        for G in range(2):
            X, Y = acc(2 * G, tile), acc(2 * G + 1, tile)
            t = 96 + (cnt[0] % 8) * 4
            cnt[0] += 1
            a(f'v_cvt_pk_bf16_f32 v{t}, v{X}, v{X+1}'); a(f'v_cvt_pk_bf16_f32 v{t+1}, v{X+2}, v{X+3}')
            a(f'v_cvt_pk_bf16_f32 v{t+2}, v{Y}, v{Y+1}'); a(f'v_cvt_pk_bf16_f32 v{t+3}, v{Y+2}, v{Y+3}')
            if N:
                voff = 25 if tile == 2 else 24
                a(f's_add_u32 s58, s{sd}, {hl * NIMG + G * 4 * 288}')
                a(f'buffer_store_dwordx4 {vr(t)}, v{voff}, s[24:27], s58 offen{ST}')
            elif tile == 2:
                a(f'buffer_store_dwordx2 {vr(t, 2)}, v23, s[24:27], s{sd} offen offset:{G * 256}{ST}')
                a(f'buffer_store_dwordx2 {vr(t + 2, 2)}, v23, s[24:27], s{sd} offen offset:{G * 256 + 32}{ST}')
            else:
                a(f's_add_u32 s58, s{sd}, {hl * 65536 + G * 1024}')
                a(f'v_permlane16_swap_b32 v{t}, v{t+2}')
                a(f'v_permlane16_swap_b32 v{t+1}, v{t+3}')
                a(f'buffer_store_dwordx4 {vr(t)}, v22, s[24:27], s58 offen{ST}')

    a.waitcnt(lg=0)
    if name == 'TT':
        for rt in range(4):
            a(f'v_mul_f32 v{50+rt}, 0xBFB8AA3B, v{acc(rt, 2)}')
        for rt in range(4):
            a(f'v_exp_f32 v{50+rt}, v{50+rt}')
        for rt in range(4):
            a(f'v_add_f32 v{50+rt}, 1.0, v{50+rt}')
        for rt in range(4):
            a(f'v_rcp_f32 v{50+rt}, v{50+rt}')
        for rt in range(4):
            a(f'buffer_store_dword v{50+rt}, v26, s[24:27], s83 offen offset:{(rt // 2) * 128 + (rt % 2) * 16}')
    for seg, tiles, sphi, ssc in (('a', (0, 1), 66, 30), ('b', (2, 3, 4, 5, 6), 67, 14)):
        N = Na if seg == 'a' else Nb
        lab = f'K1_{name}_{seg}'
        a(f's_cmp_eq_u32 s{sphi}, 0')
        a(f's_cbranch_scc1 {lab}_nophi')
        st = a.snapshot()
        c0 = cnt[0]
        for tile in tiles:
            T = 64
            rr = [ACC + tile * 16 + r for r in range(16)]
            for k in range(0, 16, 2):
                a(f'v_pk_fma_f32 v[{T+k}:{T+k+1}], v[{rr[k]}:{rr[k]+1}], s[74:75], v[60:61]')
            for k in range(16):
                a(f'v_exp_f32_e64 v{T+k}, v{T+k} clamp')
                a(f'v_max_f32 v{rr[k]}, s76, v{rr[k]}')
            for k in range(0, 16, 2):
                a(f'v_pk_add_f32 v[{rr[k]}:{rr[k]+1}], v[{rr[k]}:{rr[k]+1}], v[{T+k}:{T+k+1}]')
            store_tile(tile)
        a(f's_branch {lab}_done')
        st1 = a.snapshot()
        a.restore(st)
        cnt[0] = c0
        a.label(f'{lab}_nophi')
        for tile in tiles:
            if not N:
                for k in range(0, 16, 2):
                    r = ACC + tile * 16 + k
                    a(f'v_pk_mul_f32 v[{r}:{r+1}], v[{r}:{r+1}], s[{ssc}:{ssc+1}]')
            store_tile(tile)
        a.label(f'{lab}_done')
        a.nop(2)


DESC = """
.amdhsa_kernel qkv_kernel
  .amdhsa_next_free_vgpr 240
  .amdhsa_next_free_sgpr 102
  .amdhsa_accum_offset 240
  .amdhsa_group_segment_fixed_size 0
  .amdhsa_kernarg_size 80
  .amdhsa_user_sgpr_count 2
  .amdhsa_user_sgpr_kernarg_segment_ptr 1
  .amdhsa_system_sgpr_workgroup_id_x 1
.end_amdhsa_kernel
"""
BLOCK = 512
```

```python
from asmlib import Asm
from layout import *

KM_L = 0
KT_L = 65536
V_L = 73728
KVP_L = V_L + NIMG
FLAG_L = KVP_L + 4 * 1520
LDS2 = FLAG_L + 64
XB = KVP_L - 8 * 3072
VROW = 288
BLOCK = 768

SA, SB = 32, 64
O0, O1 = 96, 112
KM = 128
VF = 136
KT = 152
QM = (154, 160)
QT = (158, 164)
IDX = 166
G = 167
NV2 = 168


def vr(b, n=4):
    return f'v[{b}:{b+n-1}]'


def gen(prof=False, X=()):
    a = Asm()
    a.prof = prof
    a.raw('.p2align 8')
    a.raw('.globl attn_kernel')
    a.raw('.type attn_kernel,@function')
    a.label('attn_kernel')
    a('s_cmp_ge_u32 s2, 256')
    a('s_cbranch_scc1 K2_END')
    a.stamp(0, real=True); a.stamp(1)
    a('s_load_dwordx2 s[6:7], s[0:1], 72')
    a('s_load_dwordx2 s[4:5], s[0:1], 56')
    a('v_lshrrev_b32 v1, 6, v0')
    a('v_and_b32 v2, 63, v0')
    a('v_readfirstlane_b32 s36, v1')
    if 'qx' not in X:
        a('s_and_b32 s37, s2, 7'); a('s_lshl_b32 s37, s37, 2'); a('s_lshr_b32 s38, s2, 3'); a('s_and_b32 s39, s38, 3')
        a('s_add_u32 s37, s37, s39'); a('s_lshr_b32 s38, s38, 2')
    else:
        a('s_lshr_b32 s37, s2, 3')
        a('s_and_b32 s38, s2, 7')
    a('v_lshlrev_b32 v3, 4, v2')
    a('v_and_b32 v8, 31, v2')
    a('v_lshrrev_b32 v9, 5, v2')
    a('s_lshl_b32 s41, s37, 16')
    a('s_lshr_b32 s44, s37, 1'); a('s_lshl_b32 s44, s44, 14')
    a('s_and_b32 s45, s37, 1'); a('s_lshl_b32 s45, s45, 2'); a('s_add_u32 s44, s44, s45')
    a(f's_mul_i32 s48, s37, {NIMG}')
    a('s_and_b32 s39, s36, 3')
    a('s_lshl_b32 s42, s38, 3'); a('s_lshl_b32 s43, s39, 1'); a('s_add_u32 s42, s42, s43')
    a('s_lshl_b32 s43, s42, 10'); a('s_add_u32 s43, s43, s41')
    a('s_lshl_b32 s45, s42, 8'); a('s_add_u32 s45, s45, s44')
    a('v_lshlrev_b32 v10, 3, v8')
    a('v_min_u32 v14, 17, v8')
    a('v_mul_u32_u24 v16, 18, v9')
    a('v_add_u32 v17, v14, v16'); a('v_lshlrev_b32 v17, 4, v17')
    a('s_mov_b32 s34, 0x3FFFF'); a('s_mov_b32 s35, 0x3FFFF')
    a('s_cmp_ge_u32 s36, 8')
    a('s_cbranch_scc1 K2_HELPER')
    st_entry = a.snapshot()

    def srd():
        a.waitcnt(lg=0)
        a('s_mov_b32 s16, s6'); a('s_mov_b32 s17, s7'); a(f's_mov_b32 s18, {WS_END}'); a('s_mov_b32 s19, 0x00020000')

    def og_addr(tile_sgpr):
        a('v_lshrrev_b32 v20, 4, v8'); a('v_mul_u32_u24 v20, 36864, v20')
        a('v_and_b32 v21, 15, v8'); a('v_lshl_add_u32 v22, v21, 4, v20')
        a('v_lshl_add_u32 v21, v9, 8, v22')
        a(f's_mul_i32 s61, s{tile_sgpr}, 73728'); a(f's_add_u32 s61, s61, {WS_OG}')
        a('s_lshr_b32 s62, s37, 1'); a('s_lshl_b32 s62, s62, 10')
        a('s_and_b32 s63, s37, 1'); a('s_lshl_b32 s63, s63, 9'); a('s_add_u32 s62, s62, s63')
        a('s_add_u32 s62, s62, s61')
        a('s_lshr_b32 s64, s37, 4'); a('s_lshl_b32 s64, s64, 10')
        a('s_bfe_u32 s65, s37, 0x20002'); a('s_lshl_b32 s65, s65, 8'); a('s_add_u32 s64, s64, s65')
        a('s_and_b32 s65, s37, 3'); a('s_lshl_b32 s65, s65, 2'); a('s_add_u32 s64, s64, s65')
        a('s_add_u32 s64, s64, s61'); a('s_add_u32 s64, s64, 16384')

    def og_store(src, sc, T, smain, stail):
        for r in range(10):
            a(f'v_mul_f32 v{src+r}, v{src+r}, v{sc}')
        for k in range(4):
            a(f'v_cvt_pk_bf16_f32 v{T+k}, v{src+2*k}, v{src+2*k+1}')
        a(f'v_cvt_pk_bf16_f32 v{src+8}, v{src+8}, v{src+9}')
        a(f'v_permlane32_swap_b32 v{T}, v{T+2}')
        a(f'v_permlane32_swap_b32 v{T+1}, v{T+3}')
        a(f'buffer_store_dwordx4 {vr(T)}, v21, s[16:19], s{smain} offen' + (' sc1'))
        a('s_mov_b32 exec_hi, 0')
        a(f'buffer_store_dword v{src+8}, v22, s[16:19], s{stail} offen' + (' sc1'))
        a('s_mov_b32 exec_hi, -1')

    OGF, XW, WR, ACC = 32, 80, 128, 8

    def frag_src(f):
        half, r = divmod(f, 72); nt, k = divmod(r, 18)
        return (nt * 36 + (18 if half == 0 else 0) + k) * 1024

    def p3_setup():
        a('s_lshr_b32 s66, s36, 2'); a('s_mul_i32 s66, s66, 6144')
        a('s_and_b32 s52, s37, 7')
        a('s_lshr_b32 s53, s37, 3')
        a('s_mul_i32 s67, s52, 147456'); a(f's_add_u32 s67, s67, {WS_WOT}')
        a('s_and_b32 s54, s52, 3'); a('s_add_u32 s54, s54, 32')
        a('s_mul_i32 s68, s54, 36864'); a('s_add_u32 s68, s68, s66'); a(f's_add_u32 s68, s68, {WS_WOT}')
        a('s_lshl_b32 s71, s54, 5'); a('s_lshl_b32 s72, s52, 7')
        a('s_lshr_b32 s55, s39, 1'); a('s_lshr_b32 s56, s52, 2')
        a('s_cmp_eq_u32 s55, s56'); a('s_cselect_b32 s68, s68, 0x7FF00000'); a('s_cselect_b32 s71, s71, 0x7FF00000')
        a('s_lshl_b32 s70, s38, 2'); a('s_add_u32 s70, s70, s53')
        a('s_lshl_b32 s73, s70, 2'); a('s_add_u32 s73, s73, s39')
        a('s_mul_i32 s69, s73, 36864'); a('s_add_u32 s69, s69, s66'); a(f's_add_u32 s69, s69, {WS_OG}')
        a('s_lshl_b32 s74, s70, 12'); a(f's_add_u32 s74, s74, {WS_FLG + 2048 * 128}')
        a('s_lshl_b32 s70, s70, 13'); a(f's_add_u32 s70, s70, {WS_FLG}')

    def six(dst, sbase, add, fl, tag=None):
        a(f's_add_u32 s56, s{sbase}, {add}'); a(f's_add_u32 s57, s{sbase}, {add + 4096}')
        for k in range(6):
            a(f'buffer_load_dwordx4 {vr(dst + 4 * k)}, v3, s[16:19], s{56 if k < 4 else 57} offen offset:{(k % 4) * 1024}{fl}', tag=tag)

    a('s_lshr_b32 s40, s36, 2')
    a(f's_add_u32 s51, s45, {WS_QAT}')
    srd()
    for t in range(2):
        a(f'buffer_load_dwordx4 {vr(QM[t])}, v3, s[16:19], s43 offen offset:{t * 1024}')
        a(f'buffer_load_dword v{QT[t]}, v10, s[16:19], s51 offen offset:{t * 256}')
    a('s_add_u32 s46, s42, s40')
    a('v_lshlrev_b32 v12, 2, v8')
    a('s_lshl_b32 s51, s46, 7'); a(f's_add_u32 s51, s51, {WS_G}')
    a(f'buffer_load_dword v{G}, v12, s[16:19], s51 offen')
    a('v_lshlrev_b32 v4, 2, v2'); a(f'v_add_u32 v4, {KT_L}, v4')
    a(f'v_add_u32 v5, {V_L}, v17')
    a('s_lshl_b32 s52, s40, 15'); a('v_add_u32 v11, s52, v3')
    a('s_lshl_b32 s52, s40, 12'); a('v_add_u32 v12, s52, v4')
    a(f's_mul_i32 s52, s40, {128 * VROW}'); a('v_add_u32 v13, s52, v5')
    a(f'v_mov_b32 v{IDX}, 0xDDDD')
    a(f'v_mov_b32 v{KT+1}, 0x3F80')
    a(f'v_mov_b32 v{QT[0]+1}, 0'); a(f'v_mov_b32 v{QT[1]+1}, 0')
    a('v_mov_b32 v15, 0'); a('v_mov_b32 v14, 0x3F803F80')
    a('v_cmp_eq_u32 vcc, 18, v8'); a('v_cndmask_b32 v15, v15, v14, vcc')
    a('v_cmp_eq_u32 vcc, 28, v8'); a('v_cndmask_b32 v15, v15, v14, vcc')
    for r in range(16):
        a(f'v_mov_b32 v{VF+r}, v15')
    for r in range(32):
        a(f'v_mov_b32 v{O0+r}, 0')
    og_addr(46)
    p3_setup()
    a('s_mov_b32 s47, 0')
    a(f'v_mov_b32 v24, {FLAG_L}')

    def rd_kt(u): a(f'ds_read_b32 v{KT}, v12 offset:{u * 256}')
    def rd_km(u, i): a(f'ds_read_b128 {vr(KM + 4 * i)}, v11 offset:{(2 * u + i) * 1024}')

    def rd_v(u, i):
        a('s_mov_b64 exec, s[34:35]')
        a(f'ds_read_b128 {vr(VF + 4 * i)}, v13 offset:{(8 * u + 2 * i) * VROW}')
        a('s_mov_b64 exec, -1')

    def qk2b(S, t): a(f'v_mfma_f32_32x32x4_2b_bf16 {vr(S, 32)}, {vr(KT, 2)}, {vr(QT[t], 2)}, 0')
    def qk(S, i, t): a(f'v_mfma_f32_32x32x16_bf16 {vr(S + 16 * i, 16)}, {vr(KM + 4 * i)}, {vr(QM[t])}, {vr(S + 16 * i, 16)}')
    def pv(S, i, O): a(f'v_smfmac_f32_32x32x32_bf16 {vr(O, 16)}, {vr(VF + 4 * i)}, {vr(S + 8 * i, 8)}, v{IDX}')

    def rowmax(S, n, dst, tmp):
        a(f'v_max3_f32 v{dst}, v{S}, v{S+1}, v{S+2}')
        a(f'v_max3_f32 v{tmp}, v{S+3}, v{S+4}, v{S+5}')
        for k in range(6, n - 2, 4):
            a(f'v_max3_f32 v{dst}, v{S+k}, v{S+k+1}, v{dst}')
            a(f'v_max3_f32 v{tmp}, v{S+k+2}, v{S+k+3}, v{tmp}')
        a(f'v_max3_f32 v{dst}, v{S+n-2}, v{S+n-1}, v{dst}')
        a(f'v_max_f32 v{dst}, v{dst}, v{tmp}')
        a(f'v_mov_b32 v{tmp}, v{dst}')
        a(f'v_permlane32_swap_b32 v{dst}, v{tmp}')
        a(f'v_max_f32 v{dst}, v{dst}, v{tmp}')

    a.stamp(2)
    a.waitcnt(vm=0)
    a('s_barrier')
    a.stamp(3)
    a(f'ds_read_b32 v{KT}, v4'); a(f'ds_read_b128 {vr(KM)}, v3')
    for i in range(4):
        rd_v(0, i)
    qk2b(SA, 0); qk2b(SB, 1); qk(SA, 0, 0); qk(SB, 0, 1)
    rd_kt(0); rd_km(0, 0); rd_km(0, 1)
    for t, S in ((0, SA), (1, SB)):
        rowmax(S, 16, 18, 19)
        a('v_xor_b32 v18, 0x80000000, v18')
        a(f'v_lshrrev_b32 v{QT[t]+1}, 16, v18')
    qk2b(SA, 0); qk(SA, 0, 0); qk(SA, 1, 0)
    for r in range(24, 32):
        a(f'v_mov_b32 v{SB+r}, 0')
    a.waitcnt(lg=0)
    a.stamp(4)

    def phase(u, t):
        Sc, Sn = (SA, SB) if t == 0 else (SB, SA)
        Oc, Op = (O0, O1) if t == 0 else (O1, O0)
        e = [0]

        def ex(n):
            for r in range(e[0], e[0] + n):
                a(f'v_exp_f32 v{Sc+r}, v{Sc+r}')
            e[0] += n
        if 'noprio' not in X: a(f's_setprio {3 - (2 * u + t) % 4}')
        ex(2)
        pv(Sn, 3, Op)
        if t == 0: rd_v(u, 3)
        ex(4)
        qk2b(Sn, 1 - t)
        if t == 0: rd_kt(u + 1)
        ex(8)
        pv(Sc, 0, Oc)
        if t == 1: rd_v(u + 1, 0)
        ex(4)
        qk(Sn, 0, 1 - t)
        if t == 0: rd_km(u + 1, 0)
        ex(4)
        pv(Sc, 1, Oc)
        if t == 1: rd_v(u + 1, 1)
        ex(4)
        qk(Sn, 1, 1 - t)
        if t == 0: rd_km(u + 1, 1)
        ex(4)
        pv(Sc, 2, Oc)
        if t == 1: rd_v(u + 1, 2)
        ex(2)

    UN = 2

    def body():
        a('s_bitcmp1_b32 0xA, s47'); a('s_cbranch_scc0 K2_NOB1')
        a('s_barrier')
        a.label('K2_NOB1')
        if prof and 'it' in X:
            for k, st_ in ((1, 2), (2, 3), (5, 4)):
                a(f's_cmp_lg_u32 s47, {k}'); a(f's_cbranch_scc1 K2_NS{k}')
                a.raw(f'  s_memtime s[{84+2*st_}:{85+2*st_}]'); a.raw('  s_waitcnt lgkmcnt(0)')
                a.label(f'K2_NS{k}')
        for u in range(UN):
            phase(u, 0); phase(u, 1)

    def tail():
        a(f'v_add_u32 v11, {UN * 2048}, v11'); a(f'v_add_u32 v12, {UN * 256}, v12'); a(f'v_add_u32 v13, {UN * 8 * VROW}, v13')
        a('s_add_u32 s47, s47, 1'); a(f's_cmp_lg_u32 s47, {16 // UN}'); a('s_cbranch_scc1 K2_LOOP')
    n0 = len(a.lines); st = a.snapshot(); body(); tail(); back = a.snapshot(); del a.lines[n0:]; a.restore(st)
    a.lg = [set(x) for x in back[5]]
    a.raw('.p2align 6')
    a.loop('K2_LOOP', body, tail)
    a.stamp(5)
    a('s_setprio 3')
    pv(SB, 3, O1)

    a('v_cmp_eq_u32 vcc, 0, v9')
    a(f'v_cndmask_b32 v{O0+10}, v{O0+12}, v{O0+10}, vcc')
    a(f'v_cndmask_b32 v{O1+10}, v{O1+12}, v{O1+10}, vcc')
    a(f'v_max_f32 v19, v{O0+10}, v{O1+10}')
    a(f'v_fmac_f32 v19, 0, v{O0+10}'); a(f'v_fmac_f32 v19, 0, v{O1+10}')
    for r in range(10):
        a(f'v_fmac_f32 v19, 0, v{O0+r}'); a(f'v_fmac_f32 v19, 0, v{O1+r}')
    a('v_mov_b32 v20, 0x5F000000')
    a('v_cmp_nlt_f32 vcc, v19, v20')
    a('s_cmp_eq_u64 vcc, 0')
    a('s_cbranch_scc1 K2_OK')
    a('v_mov_b32 v19, 1')
    a('ds_write_b32 v24, v19')
    a.label('K2_OK')
    a.waitcnt(lg=0)
    a('s_barrier')
    a.stamp(6)
    a('ds_read_b32 v19, v24')
    a('s_mul_i32 s52, s36, 3072'); a(f's_add_u32 s52, s52, {XB}')
    a('s_xor_b32 s53, s36, 4'); a('s_mul_i32 s53, s53, 3072'); a(f's_add_u32 s53, s53, {XB}')
    a('v_add_u32 v25, s52, v3'); a('v_add_u32 v26, s53, v3')
    a('v_readfirstlane_b32 s52, v19')
    a('s_cmp_lg_u32 s52, 0')
    a('s_cbranch_scc1 K2_SLOW')
    a('s_cmp_eq_u32 s40, 0')
    a('s_cbranch_scc1 K2_X0')
    for r in range(11):
        a(f'v_swap_b32 v{O0+r}, v{O1+r}')
    a.label('K2_X0')
    a.nop(1)
    for k in range(3):
        a(f'ds_write_b128 v25, {vr(O1 + 4 * k)} offset:{k * 1024}')
    a.waitcnt(lg=0)
    if 'e2' in X: a.stamp(2)
    a('s_barrier')
    if 'e2' in X: a.stamp(3)
    for k in (2, 0, 1):
        a(f'ds_read_b128 {vr(O1 + 4 * k)}, v26 offset:{k * 1024}')
    for r in (10, 8, 0, 2, 4, 6):
        a(f'v_pk_add_f32 v[{O0+r}:{O0+r+1}], v[{O0+r}:{O0+r+1}], v[{O1+r}:{O1+r+1}]')
    a.label('K2_EPI')
    a.nop(2)
    if 'e2' in X: a.stamp(4)
    a(f'v_rcp_f32 v18, v{O0+10}')
    a(f'v_mul_f32 v18, v18, v{G}')
    og_store(O0, 18, 28, 62, 64)
    a('s_setprio 0')
    if 'e2' in X: a.stamp(5)
    six(OGF, 69, 18432, '')
    a('s_xor_b32 s45, s36, 4'); a('s_mul_i32 s45, s45, 3072')
    base = frag_src(120)
    assert all(frag_src(120 + i) == base + i * 1024 for i in range(6)) and all(frag_src(126 + i) == frag_src(126) + i * 1024 for i in range(18))
    a(f's_add_u32 s52, s45, {base}'); a(f's_add_u32 s55, s45, {frag_src(126) - 6 * 1024}')
    a('s_cmp_ge_u32 s45, 6144'); a('s_cselect_b32 s52, s55, s52'); a('s_add_u32 s52, s52, s67')
    a(f's_add_u32 m0, s45, {XB}')
    a.stamp(7)
    six(XW, 68, 18432, '')
    a('s_barrier')
    for i in range(3):
        a(f'buffer_load_dwordx4 v3, s[16:19], s52 offen offset:{i * 1024} lds')
    st_p3c = a.snapshot()
    a('s_branch K2_P3')

    a.label('K2_SLOW')
    a.fence()
    a('s_cmp_eq_u32 s40, 0')
    a('s_cbranch_scc1 K2_S0')
    for r in range(5):
        a(f'v_mov_b32 v{QM[0]+r}, v{QM[1]+r}')
    a.label('K2_S0')
    a(f'v_mov_b32 v{QT[0]+1}, 0')
    a('v_mov_b32 v20, 0xFF800000')
    for r in range(16):
        a(f'v_mov_b32 v{O0+r}, 0')
    a('v_mov_b32 v11, v3'); a('v_mov_b32 v12, v4'); a('v_mov_b32 v13, v5')
    a('s_mov_b32 s47, 32')
    a.label('K2_SLOW_LOOP')
    a.fence()
    rd_kt(0); rd_km(0, 0); rd_km(0, 1)
    for i in range(4):
        rd_v(0, i)
    qk2b(SA, 0); qk(SA, 0, 0); qk(SA, 1, 0)
    rowmax(SA, 32, 18, 19)
    a('v_max_f32 v18, v18, v20')
    a('v_sub_f32 v19, v20, v18'); a('v_exp_f32 v19, v19')
    a('v_mov_b32 v20, v18')
    for r in range(32):
        a(f'v_sub_f32 v{SA+r}, v{SA+r}, v18')
    for r in range(32):
        a(f'v_exp_f32 v{SA+r}, v{SA+r}')
    for r in range(16):
        a(f'v_mul_f32 v{O0+r}, v{O0+r}, v19')
    for i in range(4):
        pv(SA, i, O0)
    a('v_add_u32 v11, 2048, v11'); a('v_add_u32 v12, 256, v12'); a(f'v_add_u32 v13, {8 * VROW}, v13')
    a('s_sub_u32 s47, s47, 1'); a('s_cmp_lg_u32 s47, 0'); a('s_cbranch_scc1 K2_SLOW_LOOP')
    a.fence()
    a('v_cmp_eq_u32 vcc, 0, v9')
    a(f'v_cndmask_b32 v{O0+10}, v{O0+12}, v{O0+10}, vcc')
    a.hazard_fence()
    a('s_barrier')
    a('s_branch K2_EPI')

    a.restore(st_entry)
    a.label('K2_HELPER')
    a('s_setprio 3')
    KVB, KVA = 32, 64
    QB = 96
    GB = 108
    a('v_lshlrev_b32 v7, 3, v2')
    a('s_lshl_b32 s40, s39, 10')
    a('s_add_u32 s46, s41, s40'); a(f's_add_u32 s46, s46, {WS_KAM}')
    a('s_lshl_b32 s47, s39, 9'); a('s_add_u32 s47, s47, s44'); a(f's_add_u32 s47, s47, {WS_KAT}')
    a('s_add_u32 s49, s48, s40'); a(f's_add_u32 s49, s49, {WS_VA}')
    a('s_lshl_b32 s50, s39, 8')
    srd()

    def dma(kind, n, tag):
        if kind == 'KM':
            a(f's_add_u32 m0, s40, {KM_L + n * 4096}'); a(f's_add_u32 s52, s46, {n * 4096}')
            a('buffer_load_dwordx4 v3, s[16:19], s52 offen lds', tag=tag)
        elif kind == 'V':
            a(f's_add_u32 m0, s40, {V_L + n * 4096}'); a(f's_add_u32 s52, s49, {n * 4096}')
            a('buffer_load_dwordx4 v3, s[16:19], s52 offen lds', tag=tag)
        else:
            a(f's_add_u32 m0, s50, {KT_L + n * 1024}'); a(f's_add_u32 s52, s47, {n * 2048}')
            a('buffer_load_dword v7, s[16:19], s52 offen lds', tag=tag)
    for hb in range(2):
        dma('KM', 8 * hb, 'b0'); dma('KT', 4 * hb, 'b0'); dma('V', 9 * hb, 'b0')
    for hb in range(2):
        dma('KM', 8 * hb + 1, 'b0'); dma('V', 9 * hb + 1, 'b0')
    a('v_mov_b32 v15, 0'); a(f'v_mov_b32 v24, {FLAG_L}'); a('ds_write_b32 v24, v15')
    a('v_mov_b32 v14, 0x3F803F80')
    a('v_cmp_eq_u32 vcc, 18, v8'); a('v_cndmask_b32 v13, v15, v14, vcc')
    for st in range(4):
        for r in range(4):
            a(f'v_mov_b32 v{KVB+8*st+r}, 0')
            a(f'v_mov_b32 v{KVB+8*st+4+r}, v13')
    for r in range(16):
        a(f'v_mov_b32 v{KVA+r}, 0')
    a.wait_vm_tag('b0')
    a.waitcnt(lg=0)
    a('s_barrier')
    a(f's_mul_i32 s61, s42, {4 * VROW}'); a('s_add_u32 s61, s61, s48')
    a(f's_add_u32 s62, s61, {WS_KB}'); a(f's_add_u32 s63, s61, {WS_VB}')
    order = []
    for n in range(2, 9):
        for hb in range(2):
            if n < 8: order.append(('KM', 8 * hb + n))
            order.append(('V', 9 * hb + n))
            if n in (2, 4, 6): order.append(('KT', 4 * hb + n // 2))
    first = [x for x in order if {'KM': x[1] % 8 < 4, 'V': x[1] % 9 < 4, 'KT': x[1] % 4 < 2}[x[0]]]
    rest = [x for x in order if x not in first]
    for (k, n) in first:
        dma(k, n, 'b1')
    a('s_mov_b64 exec, s[34:35]')
    for st in range(4):
        a(f'buffer_load_dwordx4 {vr(KVB + 8 * st)}, v17, s[16:19], s62 offen offset:{st * 2 * VROW}')
        a(f'buffer_load_dwordx4 {vr(KVB + 8 * st + 4)}, v17, s[16:19], s63 offen offset:{st * 2 * VROW}')
    a('s_mov_b64 exec, -1')
    for (k, n) in rest[:6]:
        dma(k, n, 'b2')
    for st in range(4):
        a(f'v_mfma_f32_32x32x16_bf16 {vr(KVA, 16)}, {vr(KVB + 8 * st)}, {vr(KVB + 8 * st + 4)}, {vr(KVA, 16)}')
    a('v_mul_u32_u24 v18, 80, v8'); a('v_lshl_add_u32 v18, v9, 4, v18')
    a('s_mul_i32 s61, s39, 1520'); a(f's_add_u32 s61, s61, {KVP_L}'); a('v_add_u32 v18, s61, v18')
    a('s_mov_b32 exec_lo, 0x7FFFF'); a('s_mov_b32 exec_hi, 0x7FFFF')
    a(f'ds_write_b128 v18, {vr(KVA)}')
    a(f'ds_write_b128 v18, {vr(KVA + 4)} offset:32')
    a('s_mov_b32 exec_hi, 0')
    a(f'ds_write_b64 v18, {vr(KVA + 8, 2)} offset:64')
    a('s_mov_b64 exec, -1')
    a.wait_vm_tag('b1')
    a.waitcnt(lg=0)
    a('s_barrier')
    a('s_mul_i32 s57, s37, 12288'); a(f's_add_u32 s57, s57, {WS_KVS}')
    a('s_cmp_lg_u32 s39, 0')
    a('s_cbranch_scc1 K2_HPUB')
    st_skip = a.snapshot()
    a('v_min_u32 v19, 30, v2'); a('v_lshlrev_b32 v19, 4, v19'); a('v_add_u32 v19, 1024, v19')
    a(f'v_add_u32 v18, {KVP_L}, v3'); a(f'v_add_u32 v20, {KVP_L}, v19')
    for k in range(4):
        a(f'ds_read_b128 {vr(KVB + 8 * k)}, v18 offset:{k * 1520}')
        a(f'ds_read_b128 {vr(KVB + 8 * k + 4)}, v20 offset:{k * 1520}')
    for k in range(1, 4):
        for r in range(0, 8, 2):
            a(f'v_pk_add_f32 v[{KVB+r}:{KVB+r+1}], v[{KVB+r}:{KVB+r+1}], v[{KVB+8*k+r}:{KVB+8*k+r+1}]')
    a('s_mul_i32 s58, s38, 1536'); a('s_add_u32 s58, s58, s57')
    a(f'buffer_store_dwordx4 {vr(KVB)}, v3, s[16:19], s58 offen sc1')
    a(f'buffer_store_dwordx4 {vr(KVB + 4)}, v19, s[16:19], s58 offen sc1')
    a.waitcnt(vm=0)
    a('v_mov_b32 v18, 1'); a('v_mov_b32 v19, 1520')
    a('s_mov_b64 exec, 1')
    a('buffer_store_dword v18, v19, s[16:19], s58 offen sc1')
    a('s_mov_b64 exec, -1')
    a.restore(st_skip)
    a.label('K2_HPUB')
    a.nop(2)
    for (k, n) in rest[6:]:
        dma(k, n, 'b2')
    og_addr(42)
    for r in range(4):
        a(f'v_mov_b32 v{28+r}, -1')
    for t in range(2):
        a(f's_add_u32 s52, s62, {t * 73728}'); a(f's_add_u32 s53, s64, {t * 73728}')
        a('buffer_store_dwordx4 v[28:31], v21, s[16:19], s52 offen sc1')
        a('s_mov_b32 exec_hi, 0')
        a('buffer_store_dword v28, v22, s[16:19], s53 offen sc1')
        a('s_mov_b32 exec_hi, -1')
    a.waitcnt(vm=0)
    a('s_barrier')
    if 'hst' in X: a.stamp(2)
    a('v_mov_b32 v11, 0x7FF00000'); a('v_cmp_eq_u32 vcc, 0, v9'); a('v_cndmask_b32 v11, v11, v10, vcc')
    a('v_lshlrev_b32 v12, 2, v8')
    a(f's_add_u32 s51, s43, {WS_QBM}'); a(f's_add_u32 s52, s45, {WS_QBT}')
    a('s_lshl_b32 s53, s42, 7'); a(f's_add_u32 s53, s53, {WS_G}')
    for t in range(2):
        a(f'buffer_load_dwordx4 {vr(QB + 6 * t)}, v3, s[16:19], s51 offen offset:{t * 1024}')
        a(f'buffer_load_dword v{QB + 6 * t + 4}, v11, s[16:19], s52 offen offset:{t * 256}')
        a(f'v_mov_b32 v{QB + 6 * t + 5}, 0')
        a(f'buffer_load_dword v{GB + t}, v12, s[16:19], s53 offen offset:{t * 128}')
    if 'nowo' not in X:
        a('s_lshr_b32 s53, s2, 3'); a('s_lshl_b32 s53, s53, 2'); a('s_add_u32 s53, s53, s39')
        a('s_mul_i32 s53, s53, 11264'); a(f's_add_u32 s53, s53, {WS_WOT}')
        for k in range(11):
            if k % 4 == 0 and k: a('s_add_u32 s53, s53, 4096')
            a(f'buffer_load_dwordx4 v[112:115], v3, s[16:19], s53 offen offset:{(k % 4) * 1024}', tag='untracked')
    a('v_min_u32 v18, 18, v8'); a('v_mul_u32_u24 v19, 80, v18'); a('v_lshl_add_u32 v18, v9, 5, v19')
    a('v_and_b32 v25, 7, v2'); a('v_mul_u32_u24 v25, 1536, v25'); a('v_add_u32 v25, 1520, v25'); a('s_mov_b32 s58, 0')
    a.label('K2_POLL')
    a('buffer_load_dword v26, v25, s[16:19], s57 offen sc1')
    a.waitcnt(vm=0)
    a('v_cmp_ne_u32 vcc, 1, v26')
    a('s_cmp_eq_u64 vcc, 0'); a('s_cbranch_scc1 K2_GOT')
    a('s_sleep 4')
    a('s_add_u32 s58, s58, 1'); a('s_cmp_lt_u32 s58, 0x40000'); a('s_cbranch_scc1 K2_POLL')
    a.label('K2_GOT')
    if 'hst' in X: a.stamp(3)
    TS = [32, 40, 48, 56, 64, 72, 80, 88]
    a('v_min_u32 v20, 30, v2'); a('v_lshlrev_b32 v20, 4, v20'); a('v_add_u32 v20, 1024, v20')
    for q in range(8):
        d = TS[q]
        if q % 2 == 0: a(f's_add_u32 s58, s57, {q * 1536}')
        o = (q % 2) * 1536
        a(f'buffer_load_dwordx4 {vr(d)}, v3, s[16:19], s58 offen offset:{o}')
        a(f'buffer_load_dwordx4 {vr(d + 4)}, v20, s[16:19], s58 offen offset:{o}')
    a('s_mul_i32 s58, s39, 1520'); a(f's_add_u32 s58, s58, {KVP_L}')
    a('v_add_u32 v25, s58, v3'); a('v_add_u32 v20, s58, v20'); a('v_add_u32 v18, s58, v18'); a('v_add_u32 v19, s58, v19')
    for q in range(1, 8):
        for r in range(0, 8, 2):
            a(f'v_pk_add_f32 v[{32+r}:{33+r}], v[{32+r}:{33+r}], v[{TS[q]+r}:{TS[q]+r+1}]')
    a('ds_write_b128 v25, v[32:35]'); a('ds_write_b128 v20, v[36:39]')
    a.waitcnt(lg=0)
    a('ds_read_b128 v[32:35], v18'); a('ds_read_b128 v[36:39], v18 offset:16'); a('ds_read_b64 v[40:41], v19 offset:64')
    if 'hst' in X: a.stamp(4)
    for k in range(5):
        a(f'v_cvt_pk_bf16_f32 v{44+k}, v{32+2*k}, v{33+2*k}')
    a('v_mov_b32 v49, 0')
    for t in range(2):
        D = 64 + 16 * t
        a(f'v_mfma_f32_32x32x16_bf16 {vr(D, 16)}, v[44:47], {vr(QB + 6 * t)}, 0')
        a(f'v_mfma_f32_32x32x8bf16_1k {vr(D, 16)}, v[48:49], {vr(QB + 6 * t + 4, 2)}, {vr(D, 16)}')
    a('s_add_u32 s62, s62, 18432'); a('s_add_u32 s64, s64, 18432')
    for t in range(2):
        D = 64 + 16 * t
        a('v_cmp_eq_u32 vcc, 0, v9')
        a(f'v_cndmask_b32 v19, v{D+12}, v{D+10}, vcc')
        a(f'v_add_f32 v19, {EPS_BITS}, v19')
        a('v_rcp_f32 v19, v19')
        a(f'v_sub_f32 v20, 1.0, v{GB+t}')
        a('v_mul_f32 v19, v19, v20')
        og_store(D, 19, 28 + 0 * t, 62, 64)
        if t == 0:
            a('s_add_u32 s62, s62, 73728'); a('s_add_u32 s64, s64, 73728')
    a('s_lshl_b32 s59, s38, 2'); a('s_add_u32 s59, s59, s39'); a('s_lshl_b32 s59, s59, 12'); a(f's_add_u32 s59, s59, {WS_FLG + 2048 * 128}')
    a('v_mov_b32 v4, 1'); a('v_mov_b32 v5, s37'); a('v_lshlrev_b32 v5, 7, v5')
    a.waitcnt(vm=0)
    a('s_mov_b64 exec, 1')
    a('buffer_store_dword v4, v5, s[16:19], s59 offen sc1')
    if 'hst' in X: a.stamp(5)
    a('s_mov_b64 exec, -1')
    p3_setup()
    six(XW, 68, 18432, '')
    STG = (56, 104, 128)
    a('s_mul_i32 s45, s39, 36864'); a('s_add_u32 s45, s45, s67')
    for i in range(3):
        six(STG[i], 45, 18432 + i * 6144, '')
    def a_src(j):
        srcs = [frag_src(72 + 12 * l + j) for l in range(4)]
        a('s_cmp_eq_u32 s39, 1'); a(f's_mov_b32 s52, {srcs[0]}'); a(f's_cselect_b32 s52, {srcs[1]}, s52')
        a('s_cmp_eq_u32 s39, 2'); a(f's_cselect_b32 s52, {srcs[2]}, s52')
        a('s_cmp_eq_u32 s39, 3'); a(f's_cselect_b32 s52, {srcs[3]}, s52'); a('s_add_u32 s52, s52, s67')
    STA = [152, 156, 160, 164, 8, 12, 16, 20, 24]
    for j in range(4):
        a_src(j)
        a(f'buffer_load_dwordx4 {vr(STA[j])}, v3, s[16:19], s52 offen')
    a('v_lshlrev_b32 v30, 7, v8'); a('s_mov_b32 s60, 0')
    a.label('K2_PB')
    a('buffer_load_dword v31, v30, s[16:19], s74 offen sc1')
    a.waitcnt(vm=0)
    a('v_cmp_ne_u32 vcc, 1, v31')
    a('s_cmp_eq_u64 vcc, 0'); a('s_cbranch_scc1 K2_GB')
    a('s_sleep 4')
    a('s_add_u32 s60, s60, 1'); a('s_cmp_lt_u32 s60, 0x40000'); a('s_cbranch_scc1 K2_PB')
    a.label('K2_GB')
    if 'hst' in X: a.stamp(6)
    six(OGF, 69, 18432, '')
    for k in range(12):
        if k % 4 == 0: a(f's_add_u32 s56, s69, {18432 - 12288 + k * 1024}')
        a(f'buffer_load_dwordx4 v[4:7], v3, s[16:19], s56 offen offset:{(k % 4) * 1024}', tag='untracked')
    for j in range(4, 9):
        a_src(j)
        a(f'buffer_load_dwordx4 {vr(STA[j])}, v3, s[16:19], s52 offen')
    a('s_mul_i32 s45, s39, 18432'); a('v_add_u32 v29, s45, v3')
    a('s_mul_i32 s45, s39, 12288'); a('s_add_u32 s45, s45, 73728'); a('v_add_u32 v28, s45, v3')
    a.waitcnt(vm=0)
    if 'hst' in X: a.stamp(7)
    a('s_setprio 0')
    a('s_barrier')
    a('s_barrier')
    for i in range(18):
        a(f'ds_write_b128 v29, {vr(STG[i // 6] + 4 * (i % 6))} offset:{i * 1024}')
    a.waitcnt(lg=0)
    a('s_barrier')
    for j in range(9):
        a(f'ds_write_b128 v28, {vr(STA[j])} offset:{j * 1024}')
    for j in range(9, 12):
        a(f's_add_u32 m0, s45, {j * 1024}')
        a_src(j)
        a('buffer_load_dwordx4 v3, s[16:19], s52 offen lds')
    a.waitcnt(lg=0)
    a.restore(st_p3c)
    phase3(a, X, six)
    a.label('K2_END')
    a('s_endpgm')
    return a


def phase3(a, X, six):
    OGF, XW, WR, ACC = 32, 80, 128, 8
    a.label('K2_P3')
    a.nop(2)
    a('v_add_u32 v6, s66, v3')
    a('v_add_u32 v7, 73728, v6')
    a('s_mov_b32 s20, s4'); a('s_mov_b32 s21, s5'); a(f's_mov_b32 s22, {2048*1152}'); a('s_mov_b32 s23, 0x00020000')
    if 'p3' in X: a.stamp(5)
    six(XW + 24, 68, 0, '')
    a('v_and_b32 v5, 15, v2'); a('v_lshrrev_b32 v31, 4, v2')
    a('s_lshl_b32 s58, s73, 4'); a('v_add_u32 v5, s58, v5'); a('v_mul_u32_u24 v5, 1152, v5')
    a('v_lshl_add_u32 v28, v31, 3, v5')
    a('v_and_b32 v29, 1, v31'); a('v_lshl_add_u32 v5, v29, 5, v5')
    a('v_lshrrev_b32 v29, 1, v31'); a('v_lshl_add_u32 v29, v29, 4, v5')

    def wrd(hf, k):
        for nt in range(4):
            a(f'ds_read_b128 {vr(WR + (k % 2) * 16 + 4 * nt)}, v{6 + hf} offset:{nt * 18432 + k * 1024}')

    def half(hf):
        for k in range(6):
            for nt in range(5):
                d = ACC + 4 * nt
                A = XW + 24 * hf + 4 * k if nt == 4 else WR + (k % 2) * 16 + 4 * nt
                a(f'v_mfma_f32_16x16x32_bf16 {vr(d)}, {vr(A)}, {vr(OGF + 24 * hf + 4 * k)}, {"0" if k == 0 and hf == 0 else vr(d)}')
            if k + 2 < 6:
                wrd(hf, k + 2)
    wrd(0, 0); wrd(0, 1)
    if 'late' not in X: six(OGF + 24, 69, 0, '')
    half(0)
    if 'late' in X: six(OGF + 24, 69, 0, '')
    if 'p3' in X: a.stamp(6)
    a('s_mov_b32 s60, 0')
    a.waitcnt(vm=0)
    if 'p3' in X: a.stamp(7)
    a('s_barrier')
    wrd(1, 0); wrd(1, 1)
    a('s_branch K2_P3CHK')
    a.label('K2_P3RETRY')
    six(OGF + 24, 69, 0, ' sc1')
    a.waitcnt(vm=0)
    a.label('K2_P3CHK')
    R = OGF + 24
    a(f'v_max3_u32 v31, v{R}, v{R+1}, v{R+2}'); a(f'v_max3_u32 v5, v{R+3}, v{R+4}, v{R+5}')
    for k in range(6, 22, 4):
        a(f'v_max3_u32 v31, v{R+k}, v{R+k+1}, v31'); a(f'v_max3_u32 v5, v{R+k+2}, v{R+k+3}, v5')
    a(f'v_max3_u32 v31, v{R+22}, v{R+23}, v31'); a('v_max_u32 v31, v31, v5')
    a('v_cmp_eq_u32 vcc, -1, v31')
    a('s_add_u32 s60, s60, 1'); a('s_cmp_lt_u32 s60, 0x2000'); a('s_cselect_b64 s[76:77], -1, 0')
    a('s_and_b64 vcc, vcc, s[76:77]')
    a('s_cbranch_scc1 K2_P3RETRY')
    if 'p3' in X and a.prof:
        a.waitcnt(lg=0); a('s_mul_i32 s92, s60, 1000'); a('s_add_u32 s92, s92, s86')
    if 'hst' not in X and 'e2' not in X: a.stamp(2)
    a('s_mul_i32 s58, s36, 5120'); a('v_add_u32 v6, s58, v3')
    half(1)
    if 'hst' not in X and 'e2' not in X: a.stamp(3)
    a('s_cmp_eq_u32 s66, 0'); a('s_cbranch_scc1 K2_P3R')
    st = a.snapshot()
    for nt in range(5):
        a(f'ds_write_b128 v6, {vr(ACC + 4 * nt)} offset:{nt * 1024}')
    a.waitcnt(lg=0)
    a('s_barrier')
    a('s_branch K2_FIN')
    a.restore(st)
    a.label('K2_P3R')
    a('s_barrier')
    for j in range(2):
        for nt in range(5):
            a(f'ds_read_b128 {vr(OGF + (j * 5 + nt) * 4)}, v6 offset:{(j + 1) * 20480 + nt * 1024}')
    for nt in range(5):
        d = ACC + 4 * nt
        for j in range(2):
            s_ = OGF + (j * 5 + nt) * 4
            a(f'v_pk_add_f32 v[{d}:{d+1}], v[{d}:{d+1}], v[{s_}:{s_+1}]')
            a(f'v_pk_add_f32 v[{d+2}:{d+3}], v[{d+2}:{d+3}], v[{s_+2}:{s_+3}]')
        t = XW + nt * 2
        a(f'v_cvt_pk_bf16_f32 v{t}, v{d}, v{d+1}'); a(f'v_cvt_pk_bf16_f32 v{t+1}, v{d+2}, v{d+3}')
        if nt % 2 == 1:
            t0 = t - 2
            a(f'v_permlane16_swap_b32 v{t0}, v{t0+2}'); a(f'v_permlane16_swap_b32 v{t0+1}, v{t0+3}')
            a(f'buffer_store_dwordx4 {vr(t0)}, v29, s[20:23], s72 offen offset:{(nt - 1) * 32}')
        elif nt == 4:
            a(f'buffer_store_dwordx2 {vr(t, 2)}, v28, s[20:23], s71 offen')
    a.label('K2_FIN')
    if a.prof:
        if 'hst' in X:
            a('s_cmp_lt_u32 s36, 4'); a('s_cbranch_scc1 K2_END'); a('s_sub_u32 s36, s36, 4')
        else:
            a('s_cmp_ge_u32 s36, 8'); a('s_cbranch_scc1 K2_END')
        a.reset_state()
        a.stamp_flush(6, 1, 3, 36, 2, WS_PROF)


DESC = f"""
.amdhsa_kernel attn_kernel
  .amdhsa_next_free_vgpr {NV2}
  .amdhsa_next_free_sgpr 102
  .amdhsa_accum_offset {NV2}
  .amdhsa_group_segment_fixed_size 0
  .amdhsa_kernarg_size 80
  .amdhsa_user_sgpr_count 2
  .amdhsa_user_sgpr_kernarg_segment_ptr 1
  .amdhsa_system_sgpr_workgroup_id_x 1
.end_amdhsa_kernel
"""
```

```python
import sys, os
sys.path.insert(0, os.path.dirname(os.path.abspath(__file__)))
import k1, k2, k3
NAME = 'gated_mix__mha_block__linear_attn_block__prompt'
ref = open(f'cdna_kernels/{NAME}.s.ref').read().splitlines()
head = [l for l in ref[:12] if l.startswith(';') and '@launch' not in l][:11]
def build(path, prof=False, X=None):
    out = '\n'.join(head) + '\n'
    out += f'; @launch kernel=qkv_kernel grid=(256,1,1) block=({k1.BLOCK},1,1) lds={k1.LDS1}\n'
    out += f'; @launch kernel=attn_kernel grid=(256,1,1) block=({k2.BLOCK},1,1) lds={k2.LDS2}\n'
    out += '.amdgcn_target "amdgcn-amd-amdhsa--gfx950"\n.text\n'
    for k in (k1, k2):
        a = k.gen(prof, X[k.__name__]) if X and k.__name__ in X else k.gen(prof)
        out += a.text()
        print(k.__name__, 'lines', len(a.lines), 'nops', a.n_nops)
    out += '.section .rodata,"a"\n'
    for k in (k1, k2):
        out += '.p2align 6' + k.DESC
    open(path, 'w').write(out)
if __name__ == '__main__':
    build(f'cdna_kernels/{NAME}.s')
    build('prof.s', True)
    for v in sys.argv[1:]:
        kn, fl = v.split(':')
        build(f'prof_{kn}_{fl}.s', True, {kn: tuple(fl.split('+'))})
        build(f't_{kn}_{fl}.s', False, {kn: tuple(fl.split('+'))})
```

```python
from asmlib import Asm
from layout import *

WPART = 14400
SLOT = WPART
NS = 6
XBASE = NS * SLOT
XSLOT = 16384
NX = 4
LDS1 = XBASE + NX * XSLOT
assert XBASE % 128 == 0

ACC = 128
WF = 96
NWF = 6
XF = 64


PFS = [(2, 0), (0, 4), (6, 0), (0, 8)]
PF = {'pf1': ([(2, 2)], [(4, 6), (8, 8)]), 'pf2': ([(2, 4)], [(6, 8)]), 'pf3': ([(0, 2)], [(4, 6), (8, 8)]), 'pf4': ([(2, 4)], [])}


def acc(rt, tile):
    return ACC + (tile * 4 + rt) * 4


def vr(b, n=4):
    return f'v[{b}:{b+n-1}]'


def gen(prof=False, X=()):
    a = Asm()
    a.prof = prof
    a.raw('.p2align 8')
    a.raw('.globl qkv_kernel')
    a.raw('.type qkv_kernel,@function')
    a.label('qkv_kernel')
    a('s_cmp_ge_u32 s2, 256')
    a('s_cbranch_scc1 K1_END')
    a.stamp(0, real=True); a.stamp(1)
    a('s_load_dwordx4 s[4:7], s[0:1], 0')
    a('s_load_dwordx2 s[8:9], s[0:1], 32')
    a('s_load_dwordx2 s[10:11], s[0:1], 48')
    a('s_load_dwordx2 s[12:13], s[0:1], 72')
    a('s_load_dwordx2 s[14:15], s[0:1], 16')
    a('s_load_dwordx2 s[32:33], s[0:1], 40')
    a('v_lshrrev_b32 v1, 6, v0')
    a('v_and_b32 v2, 63, v0')
    a('v_readfirstlane_b32 s36, v1')
    a('s_and_b32 s37, s2, 7')
    a('s_lshr_b32 s38, s2, 3')
    a('s_and_b32 s39, s37, 1')
    a('s_lshl_b32 s39, s39, 3')
    a('s_and_b32 s40, s38, 7')
    a('s_add_u32 s39, s39, s40')
    a('s_lshr_b32 s40, s37, 1')
    a('s_lshl_b32 s40, s40, 2')
    a('s_lshr_b32 s41, s38, 3')
    a('s_add_u32 s40, s40, s41')
    a('s_lshr_b32 s41, s40, 3')
    a('s_and_b32 s42, s40, 7')
    a('s_and_b32 s43, s36, 1')
    a('s_bfe_u32 s44, s36, 0x10001')
    a('s_cmp_ge_u32 s36, 4')
    a('s_cbranch_scc0 K1_COMPUTE')
    st_entry = a.snapshot()

    a('s_setprio 3')
    a('s_mov_b32 s34, 0xF7FFFFFF')
    a('s_mov_b32 s35, 0x007FFFFF')
    a('v_cmp_le_u32 vcc, 28, v2')
    a('v_mov_b32 v4, 0')
    a('v_mov_b32 v5, 3008')
    a('v_cndmask_b32 v4, v4, v5, vcc')
    a('v_lshl_add_u32 v3, v2, 4, v4')
    a('s_mul_i32 s58, s42, 432')
    a('v_add_u32 v3, s58, v3')
    a('v_lshrrev_b32 v5, 3, v2')
    a('v_and_b32 v6, 7, v2')
    a('v_and_b32 v7, 2, v5')
    a('v_lshlrev_b32 v7, 1, v7')
    a('s_lshl_b32 s58, s43, 1')
    a('v_or_b32 v7, s58, v7')
    a('v_xor_b32 v6, v6, v7')
    a('v_mul_u32_u24 v5, 1152, v5')
    a('v_lshl_add_u32 v4, v6, 4, v5')
    a('s_mul_i32 s60, s44, 7200')
    a('s_mul_i32 s58, s43, 3616')
    a('s_add_u32 s60, s60, s58')
    a('s_and_b32 s58, s36, 3')
    a('s_mul_i32 s61, s58, 27648')
    a('s_lshl_b32 s58, s43, 1'); a('s_lshl_b32 s59, s44, 3'); a('s_add_u32 s58, s58, s59')
    a('s_lshl_b32 s62, s58, 10'); a(f's_add_u32 s62, s62, {XBASE}')
    a('s_lshl_b32 s59, s39, 4'); a('s_add_u32 s58, s58, s59')
    a('s_mul_i32 s63, s58, 9216')
    a('s_and_b32 s58, s38, 7'); a('s_lshr_b32 s59, s38, 3'); a('s_lshl_b32 s59, s59, 1'); a('s_add_u32 s58, s58, s59')
    a('s_sub_u32 s59, s58, 9'); a('s_cmp_ge_u32 s58, 9'); a('s_cselect_b32 s66, s59, s58')
    if 'norot' in X: a('s_mov_b32 s66, 0')
    if 'h1' in X or 'h2' in X: a('s_min_u32 s66, s66, 7' if 'h1' in X else 's_min_u32 s66, s66, 6')
    if 'rot3' in X:
        a('s_mul_i32 s58, s66, 43'); a('s_lshr_b32 s58, s58, 7'); a('s_mul_i32 s66, s58, 3')
    if 'rot2' in X:
        a('s_and_b32 s66, s66, 1'); a('s_lshl_b32 s66, s66, 2')
    a.waitcnt(lg=0)
    a('s_mov_b32 s16, s4'); a('s_mov_b32 s17, s5'); a(f's_mov_b32 s18, {2048*1152}'); a('s_mov_b32 s19, 0x00020000')
    a('s_cmp_eq_u32 s41, 0')
    a('s_cselect_b32 s20, s6, s8'); a('s_cselect_b32 s21, s7, s9')
    a(f's_mov_b32 s22, {576*3456}'); a('s_mov_b32 s23, 0x00020000')
    a('s_mov_b32 s28, s10'); a('s_mov_b32 s29, s11'); a('s_mov_b32 s30, 1152'); a('s_mov_b32 s31, 0x00020000')

    def kblock(A):
        H = [int(x[1:]) for x in X if x[0] == 'h' and x[1:].isdigit()]
        if H:
            h = H[0]
            if A < h:
                a(f's_mov_b32 s67, {A}')
            else:
                n = 9 - h
                a(f's_add_u32 s67, s66, {A - h}')
                for _ in range(2 if n < 8 else 1):
                    a(f's_sub_u32 s58, s67, {n}'); a(f's_cmp_ge_u32 s67, {n}'); a('s_cselect_b32 s67, s58, s67')
                a(f's_add_u32 s67, s67, {h}')
            return
        a(f's_add_u32 s67, s66, {A}'); a('s_sub_u32 s58, s67, 9'); a('s_cmp_ge_u32 s67, 9'); a('s_cselect_b32 s67, s58, s67')

    def xhalf(A, h):
        if h == 0:
            kblock(A)
            a('s_lshl_b32 s69, s67, 7'); a('s_add_u32 s69, s69, s63')
        for n in (2 * h, 2 * h + 1):
            rg = (n & 1) + 4 * (n >> 1)
            a(f's_add_u32 m0, s62, {(A % NX) * XSLOT + rg * 1024}')
            a(f's_add_u32 s65, s69, {rg * 9216}')
            if 'noload' not in X and 'nox' not in X: a('buffer_load_dwordx4 v4, s[16:19], s65 offen lds', tag=('x', A))

    def xchunk(A):
        xhalf(A, 0); xhalf(A, 1)

    def wchunk(c):
        if c % 2 == 0:
            kblock(c // 2)
            a(f's_mul_i32 s68, s67, {64 * 3456}'); a('s_add_u32 s68, s68, s61')
        a('s_mov_b64 exec, s[34:35]')
        for n in range(4):
            a(f's_add_u32 m0, s60, {(c % NS) * SLOT + n * 896}')
            a(f's_add_u32 s64, s68, {((c % 2) * 32 + 2 * n) * 3456}')
            if 'noload' not in X and 'now' not in X: a('buffer_load_dwordx4 v3, s[20:23], s64 offen lds', tag=('w', c))
        a('s_mov_b64 exec, -1')

    PF2 = 'pf2' in X
    if PF2:
        a('v_lshrrev_b32 v20, 3, v2'); a('s_and_b32 s58, s37, 1'); a('s_lshl_b32 s58, s58, 5'); a('s_add_u32 s58, s58, s38')
        a('s_lshl_b32 s58, s58, 2'); a('s_and_b32 s59, s36, 3'); a('s_add_u32 s58, s58, s59'); a('s_lshl_b32 s58, s58, 3')
        a('v_add_u32 v20, s58, v20'); a('v_mul_u32_u24 v20, 1152, v20'); a('v_and_b32 v21, 7, v2'); a('v_lshl_add_u32 v20, v21, 4, v20')
        a('s_lshl_b32 s59, s59, 10'); a('v_lshlrev_b32 v21, 4, v2'); a('v_add_u32 v21, s59, v21')
        a('v_mov_b32 v22, 0'); a('v_mov_b32 v23, 1664'); a('v_cmp_le_u32 vcc, 0x700, v21'); a('v_cndmask_b32 v22, v22, v23, vcc')
        a('v_min_u32 v21, 3568, v21'); a('v_add_u32 v21, v21, v22')
        a('s_bfe_u32 s58, s37, 0x10001'); a('s_mul_i32 s58, s58, 1664'); a('s_mul_i32 s59, s38, 6912'); a('s_add_u32 s58, s58, s59')
        a('v_add_u32 v21, s58, v21')

    def pfx(b):
        if PF2 and b < 9:
            a(f's_mov_b32 s58, {b * 128}'); a('buffer_load_dwordx4 v[24:27], v20, s[16:19], s58 offen', tag='pf')

    def pfw(b):
        if PF2 and b < 9:
            a(f's_mov_b32 s58, {b * 64 * 3456}'); a('buffer_load_dwordx4 v[28:31], v21, s[20:23], s58 offen', tag='pf')
    xchunk(0); wchunk(0)
    a('v_lshlrev_b32 v19, 1, v2')
    for g in range(9):
        kblock(g); a('s_lshl_b32 s58, s67, 7')
        a(f'buffer_load_ushort v{41+g}, v19, s[28:31], s58 offen', tag=('w', 0))
    wchunk(1)
    for b in (1, 2, 3):
        pfx(b); pfw(b)
    if 'deep' in X: xchunk(1); wchunk(2); wchunk(3)
    a('v_bfe_u32 v6, v2, 4, 1')
    a('v_mul_u32_u24 v18, 7200, v6')
    a('v_and_b32 v6, 15, v2')
    a('v_mul_u32_u24 v6, 448, v6')
    a('v_add_u32 v18, v18, v6')
    a('v_bfe_u32 v6, v2, 3, 1')
    a('v_lshl_add_u32 v18, v6, 5, v18')
    a('v_lshrrev_b32 v6, 5, v2')
    a(f'v_mul_u32_u24 v6, {SLOT}, v6')
    a('v_add_u32 v18, v18, v6')
    a('v_add_u32 v18, 432, v18')
    a(f'v_add_u32 v17, {4*SLOT}, v18')

    def gate_write(g):
        sl = (2 * g) % NS
        if sl == 4:
            a(f'ds_write_b16 v17, v{41+g}')
        else:
            a(f'ds_write_b16 v18, v{41+g} offset:{sl * SLOT}')
    if 'free' in X:
        win = [int(x[1:]) for x in X if x[0] == 'n' and x[1:].isdigit()][0]
        a.stamp(2)
        for s in range(4, 18):
            if s % 2 == 0:
                xchunk(s // 2)
            wchunk(s)
            a.waitcnt(vm=min(win, 63))
            if s in (8, 12): a.stamp({8: 3, 12: 4}[s])
        a.stamp(5); a.stamp(6); a.stamp(7)
        a('s_sub_u32 s36, s36, 4')
        a('s_branch K1_FIN')
    a.wait_vm_tag(('w', 0))
    for g in range(3):
        gate_write(g)
    a.waitcnt(lg=0)
    a('s_barrier')
    if 'deep' not in X: xchunk(1); wchunk(2); wchunk(3)
    plan = {0: [('x', 2, 0), ('w', 4), ('x', 2, 1), ('w', 5)]}
    for s in range(1, 18):
        p = []
        if (s + 5) // 2 < 9: p.append(('x', (s + 5) // 2, (s + 5) % 2))
        if s + 5 < 18: p.append(('w', s + 5))
        plan[s] = p
    L = 'lst' in X
    PFD = 4
    for s in range(18):
        if L and s in (7, 8): a.stamp(2 + 3 * (s - 7))
        a.wait_vm_tag(('w', s + 1))
        a.wait_vm_tag(('x', (s + 1) // 2))
        a.waitcnt(lg=0)
        if L and s in (7, 8): a.stamp(3 + 3 * (s - 7))
        a('s_barrier')
        if L and s in (7, 8): a.stamp(4 + 3 * (s - 7))
        for p in plan[s]:
            if p[0] == 'x': xhalf(p[1], p[2])
            else: wchunk(p[1])
        if s + 5 < 18 and (s + 5) % 2 == 1 and s + 5 >= 7:
            gate_write((s + 5) // 2)
        if s % 2 == 0: pfx(s // 2 + PFD); pfw(s // 2 + PFD)
        if s == 13:
            wo_gather(a, 0); wo_gather(a, 1)
        if s == 16:
            wo_store(a, 0); wo_store(a, 1)
    if L:
        a('s_sub_u32 s36, s36, 4')
        a('s_branch K1_FIN')
    a('s_branch K1_END')

    a.restore(st_entry)
    a.label('K1_COMPUTE')
    if 'free' in X: a('s_branch K1_END')
    if 'pf' in X:
        a('s_cmp_eq_u32 s43, 1'); a('s_cbranch_scc1 K1_PFW')
        a('v_and_b32 v6, 31, v2'); a('s_and_b32 s58, s37, 1'); a('s_lshl_b32 s58, s58, 5'); a('s_add_u32 s58, s58, s38'); a('s_lshl_b32 s58, s58, 5')
        a('v_add_u32 v6, s58, v6'); a('v_mul_u32_u24 v6, 1152, v6'); a('v_lshrrev_b32 v7, 5, v2'); a('v_lshl_add_u32 v6, v7, 7, v6')
        a('s_mov_b32 s78, 128')
        stp = a.snapshot()
        a.waitcnt(lg=0)
        a('s_mov_b32 s16, s4'); a('s_mov_b32 s17, s5'); a(f's_mov_b32 s18, {2048*1152}'); a('s_mov_b32 s19, 0x00020000')
        a('s_branch K1_PFGO')
        a.restore(stp)
        a.label('K1_PFW')
        a('v_min_u32 v6, 55, v2')
        a('v_cmp_le_u32 vcc, 28, v6'); a('v_mov_b32 v7, 0'); a(f'v_mov_b32 v8, {64 * 3456 - 28 * 128}'); a('v_cndmask_b32 v7, v7, v8, vcc')
        a('v_subrev_u32 v8, 28, v6'); a('v_cndmask_b32 v8, v6, v8, vcc')
        a('v_lshl_add_u32 v6, v6, 7, v7')
        a('v_cmp_le_u32 vcc, 14, v8'); a('v_mov_b32 v7, 0'); a(f'v_mov_b32 v8, {3456 - 14 * 128}'); a('v_cndmask_b32 v7, v7, v8, vcc')
        a('v_add_u32 v6, v6, v7')
        a('s_bfe_u32 s58, s37, 0x10001'); a('s_mul_i32 s58, s58, 1664'); a('s_mul_i32 s59, s38, 6912'); a('s_add_u32 s58, s58, s59')
        a('v_add_u32 v6, s58, v6')
        a(f's_mov_b32 s78, {64 * 3456}')
        a.waitcnt(lg=0)
        a('s_cmp_eq_u32 s41, 0')
        a('s_cselect_b32 s16, s6, s8'); a('s_cselect_b32 s17, s7, s9')
        a(f's_mov_b32 s18, {576*3456}'); a('s_mov_b32 s19, 0x00020000')
        a.label('K1_PFGO')
        a('v_mov_b32 v27, v6')
        OOB = 0x7FF00000 // 1
        for sd, (b0, b1) in zip((58, 88 if False else 28, 29, 34), PFS):
            a('s_cmp_eq_u32 s44, 0'); a(f's_cselect_b32 s{sd}, {b0}, {b1}'); a(f's_mul_i32 s{sd}, s{sd}, s78')
            a(f's_cmp_eq_u32 s{sd}, 0'); a(f's_cselect_b32 s{sd}, {OOB}, s{sd}')
        a('buffer_load_dword v28, v27, s[16:19], s58 offen', tag='untracked')
    a('s_cmp_eq_u32 s42, 5')
    a('s_cselect_b32 s45, 2, 0')
    a('s_cselect_b32 s46, 0, 4')
    a('s_add_u32 s47, s45, 3')
    a('s_add_u32 s48, s45, 1')
    a('s_cmp_eq_u32 s44, 0')
    a('s_cselect_b32 s47, s45, s47')
    a('s_cselect_b32 s48, s48, s46')
    a('s_cselect_b32 s49, s45, s46')
    a('s_cselect_b32 s50, 4, 2')
    a('s_mul_i32 s51, s42, 6')
    a('s_mul_i32 s52, s41, 3')
    a('s_add_u32 s53, s51, s47')
    a('s_add_u32 s54, s51, s48')
    a('s_add_u32 s55, s51, s49')
    a('s_lshr_b32 s56, s53, 4')
    a('s_add_u32 s56, s56, s52')
    a('s_lshr_b32 s57, s54, 4')
    a('s_add_u32 s57, s57, s52')
    a('s_and_b32 s53, s53, 15')
    a('s_and_b32 s54, s54, 15')
    a('s_and_b32 s55, s55, 15')
    a('v_lshrrev_b32 v6, 5, v2')
    a('v_mul_u32_u24 v5, 7200, v6')
    a('v_bfe_u32 v6, v2, 4, 1')
    a('v_mul_u32_u24 v6, 3616, v6')
    a('v_add_u32 v5, v5, v6')
    a('v_bfe_u32 v6, v2, 2, 2')
    a('v_mul_u32_u24 v6, 448, v6')
    a('v_add_u32 v5, v5, v6')
    a('v_and_b32 v6, 3, v2')
    a('v_lshl_add_u32 v7, v6, 3, v5')
    a('s_mul_i32 s58, s47, 72')
    a('v_add_u32 v10, s58, v7')
    a('s_mul_i32 s58, s48, 72')
    a('v_add_u32 v12, s58, v7')
    a('v_add_u32 v8, s49, v6')
    a('v_mul_u32_u24 v8, 72, v8')
    a('v_add_u32 v8, 32, v8')
    a('v_lshlrev_b32 v9, 3, v6')
    a('v_add_u32 v9, 416, v9')
    a('v_cmp_gt_u32 vcc, s50, v6')
    a('v_cndmask_b32 v8, v9, v8, vcc')
    a('v_add_u32 v11, v5, v8')
    a('v_and_b32 v6, 15, v2')
    a('v_lshrrev_b32 v7, 2, v6')
    a('v_and_b32 v8, 3, v6')
    a('v_lshl_add_u32 v20, v7, 3, v8')
    a('s_lshl_b32 s58, s43, 6')
    a('v_add_u32 v9, s58, v20')
    a('v_lshlrev_b32 v9, 7, v9')
    a('v_and_b32 v8, 2, v8')
    a('v_lshlrev_b32 v8, 1, v8')
    a('v_and_b32 v7, 2, v7')
    a('v_or_b32 v7, v7, v8')
    a('v_lshrrev_b32 v21, 4, v2')
    a('v_xor_b32 v8, v21, v7')
    a('v_lshl_add_u32 v13, v8, 4, v9')
    a(f'v_add_u32 v13, {XBASE}, v13')
    a('v_xor_b32 v17, 64, v13')
    a('v_mov_b32 v18, v13')
    a('s_mov_b32 s79, 0')
    for r in (10, 11, 12):
        a(f'v_add_u32 v{r+4}, {3*SLOT}, v{r}')
    a('s_lshr_b32 s58, 0x18, s56'); a('s_and_b32 s66, s58, 1')
    a('s_lshr_b32 s58, 0x18, s57'); a('s_and_b32 s67, s58, 1')
    a(f's_mul_i32 s68, s66, {EPS_BITS}')
    a(f's_mul_i32 s69, s67, {EPS_BITS}')
    for tile in range(7):
        for r in range(16):
            a(f'v_mov_b32 v{ACC + tile*16 + r}, s{68 if tile < 2 else 69}')
    a('s_lshr_b32 s58, 0x34, s56'); a('s_and_b32 s70, s58, 1')
    a('s_lshr_b32 s58, 0x34, s57'); a('s_and_b32 s71, s58, 1')
    a('s_lshl_b32 s58, s70, 1'); a('s_or_b32 s72, s58, s71')
    a.waitcnt(lg=0)
    a('s_mov_b32 s24, s12'); a('s_mov_b32 s25, s13'); a(f's_mov_b32 s26, {WS_END}'); a('s_mov_b32 s27, 0x00020000')
    a('s_lshl_b32 s77, s39, 7'); a('s_lshl_b32 s58, s43, 6'); a('s_add_u32 s77, s77, s58')
    a('s_mov_b32 s73, 3')
    a.stamp(2)
    a('s_cmp_eq_u32 s72, 1'); a('s_cbranch_scc1 K1_TN')
    a('s_cmp_eq_u32 s72, 2'); a('s_cbranch_scc1 K1_NT')
    a('s_cmp_eq_u32 s72, 3'); a('s_cbranch_scc1 K1_NN')
    state = a.snapshot()

    def tile_addr(tile, slot):
        base = {0: 10, 1: 10, 2: 11}.get(tile, 12)
        imm = {0: 0, 1: 40, 2: 0, 3: 0, 4: 40, 5: 72, 6: 112}[tile]
        if slot >= 3:
            base += 4
            slot -= 3
        return base, imm + slot * SLOT

    for (name, Na, Nb) in (('TT', 0, 0), ('TN', 0, 1), ('NT', 1, 0), ('NN', 1, 1)):
        a.restore(state)
        a.label(f'K1_{name}')
        epi_setup(a, name, Na, Nb)

        def wread(idx):
            s, t = (idx // 7) % NS, idx % 7
            b, imm = tile_addr(t, s)
            d = WF + (idx % NWF) * 4
            a(f'ds_read_b64_tr_b16 {vr(d, 2)}, v{b} offset:{imm}')
            a(f'ds_read_b64_tr_b16 {vr(d + 2, 2)}, v{b} offset:{imm + 1792}')

        def xread(s, rt):
            d = XF + (s % 2) * 16 + rt * 4
            off = (rt // 2) * 4096 + (rt % 2) * 512
            a(f'ds_read_b128 {vr(d)}, v{13 if s % 2 == 0 else 17} offset:{off}')

        DIST = 4
        a('s_barrier')
        a.stamp(3)
        if 'pf' in X: a('buffer_load_dword v28, v27, s[16:19], s28 offen', tag='untracked')
        pre = []

        def body():
            for s in range(NS):
                a('s_barrier')
                for t in range(7):
                    idx = s * 7 + t
                    wf = WF + (idx % NWF) * 4
                    N = Na if t < 2 else Nb
                    for rt in range(4):
                        xf = XF + (s % 2) * 16 + rt * 4
                        d = acc(rt, t)
                        if 'nocomp' in X:
                            continue
                        if N:
                            a(f'v_mfma_f32_16x16x32_bf16 {vr(d)}, {vr(xf)}, {vr(wf)}, {vr(d)}')
                        else:
                            a(f'v_mfma_f32_16x16x32_bf16 {vr(d)}, {vr(wf)}, {vr(xf)}, {vr(d)}')
                        if rt == 0 and 'nowr' not in X:
                            wread(idx + DIST)
                        if rt == 2 and t <= 3 and 'nowr' not in X:
                            xread(s + 1, t)
                        if 'pf' in X and rt == 1 and t == 6 and s in (0, 2):
                            sd = 29 if s == 0 else 34
                            a(f'buffer_load_dword v28, v27, s[16:19], s{sd} offen', tag='untracked')
                            a(f's_mov_b32 s{sd}, 0x7FF00000')
                        if rt == 1 and t == 5 and s % 2 == 0:
                            a(f's_add_u32 s79, s79, {XSLOT}'); a(f's_and_b32 s79, s79, {NX * XSLOT - 1}')
                            a('v_add_u32 v13, s79, v18'); a('v_xor_b32 v17, 64, v13')

        def tail():
            a('s_sub_u32 s73, s73, 1'); a('s_cmp_lg_u32 s73, 0'); a(f's_cbranch_scc1 K1_{name}_LOOP')
        for rt in range(3):
            xread(0, rt)
        wread(0); xread(0, 3); wread(1); wread(2); wread(3)
        n0 = len(a.lines); st = a.snapshot(); body(); tail(); back = a.snapshot(); del a.lines[n0:]; a.restore(st)
        a.waitcnt(lg=0 if ('nocomp' in X or 'nowr' in X) else len(back[5]))
        a.loop(f'K1_{name}_LOOP', body, tail)
        a.stamp(7)
        if 'noepi' not in X: epilogue(a, name, Na, Nb, X)
        a.stamp(4); a.stamp(5); a.stamp(6)
        a('s_branch K1_END' if 'lst' in X else 's_branch K1_FIN')
    a.label('K1_FIN')
    a.reset_state()
    a.stamp_flush(12, 0, 3, 36, 2, WS_PROF)
    a.label('K1_END')
    a('s_endpgm')
    return a


def wo_gather(a, r):
    V = 64 + 16 * r
    sf = 70 + r
    a('s_lshl_b32 s53, s2, 2'); a('s_and_b32 s58, s36, 3'); a('s_add_u32 s53, s53, s58')
    if r: a('s_add_u32 s53, s53, 1024')
    a(f's_mul_hi_u32 s54, s53, {-(-(1 << 32) // 36)}')
    a('s_mul_i32 s55, s54, 36'); a('s_sub_u32 s55, s53, s55')
    a('s_cmp_ge_u32 s55, 18')
    a('s_cselect_b32 s28, s32, s14'); a('s_cselect_b32 s29, s33, s15')
    a('s_cselect_b32 s56, 18, 0'); a('s_sub_u32 s55, s55, s56')
    a(f's_mov_b32 s30, {576*1152}'); a('s_mov_b32 s31, 0x00020000')
    a('s_mul_i32 s56, s55, 36')
    a('s_mul_i32 s57, s55, 288'); a(f's_sub_u32 s57, s57, {288*16-16}')
    a('s_cmp_ge_u32 s55, 16')
    a('s_cselect_b32 s56, s57, s56')
    a('s_cselect_b32 s57, 144, 20')
    a('s_cselect_b32 s58, 72, 8')
    a('s_cselect_b32 s59, 36, 4')
    a('s_mul_i32 s59, s59, 1152')
    a('v_lshrrev_b32 v13, 5, v2')
    a('v_mul_lo_u32 v13, v13, s57')
    a('v_bfe_u32 v14, v2, 4, 1')
    a('v_mul_lo_u32 v14, v14, s58')
    a('v_add3_u32 v13, v13, v14, s56')
    a('v_mul_u32_u24 v13, 1152, v13')
    a('v_and_b32 v14, 15, v2')
    a('v_lshl_add_u32 v13, v14, 1, v13')
    a('s_lshl_b32 s56, s54, 5')
    a('s_cmp_lt_u32 s53, 1296')
    a('s_cselect_b32 s56, s56, 0x7FF00000')
    a('v_add_u32 v13, s56, v13')
    a(f's_lshl_b32 s{sf}, s53, 10'); a(f's_add_u32 s{sf}, s{sf}, {WS_WOT}')
    a('s_cmp_lt_u32 s53, 1296')
    a(f's_cselect_b32 s{sf}, s{sf}, 0x7FF00000')
    for j in range(8):
        so = '0' if j < 4 else 's59'
        a(f'buffer_load_ushort v{V+j}, v13, s[28:31], {so} offen offset:{(j % 4) * 1152}')


def wo_store(a, r):
    V = 64 + 16 * r
    if r == 0:
        a('s_mov_b32 s24, s12'); a('s_mov_b32 s25, s13'); a(f's_mov_b32 s26, {WS_END}'); a('s_mov_b32 s27, 0x00020000')
        a('v_lshlrev_b32 v15, 4, v2')
        a('s_mul_i32 s58, s2, 1536'); a(f's_add_u32 s58, s58, {WS_KVS + 1520}')
        a('v_mov_b32 v16, 0')
        a('s_mov_b64 exec, 1')
        a('buffer_store_dword v16, v16, s[24:27], s58 offen')
        a('s_mul_i32 s58, s2, 1536'); a(f's_add_u32 s58, s58, {WS_FLG}')
        a('s_mov_b64 exec, 0xFFF')
        a('v_lshlrev_b32 v14, 7, v2')
        a('buffer_store_dword v16, v14, s[24:27], s58 offen')
        a('s_mov_b64 exec, -1')
    for j in range(4):
        a(f'v_lshl_or_b32 v{V+8+j}, v{V+1+2*j}, 16, v{V+2*j}')
    a(f'buffer_store_dwordx4 v[{V+8}:{V+11}], v15, s[24:27], s{70+r} offen')


def epi_setup(a, name, Na, Nb):
    def dest_scalars(stype, shp, N, sd, tail):
        if N:
            a(f's_sub_u32 s58, s{stype}, 3'); a(f's_cmp_eq_u32 s{stype}, 2'); a('s_cselect_b32 s58, 0, s58')
            a(f's_mul_i32 s58, s58, {NIMG * 32}')
            a(f's_mul_i32 s59, s{shp}, {NIMG * 2}')
            a(f's_add_u32 s{sd}, s58, s59'); a(f's_add_u32 s{sd}, s{sd}, {WS_VA}')
        else:
            a(f's_cmp_eq_u32 s{stype}, 3'); a(f's_cselect_b32 s58, 2, s{stype}')
            if tail:
                a('s_lshl_b32 s58, s58, 18'); a(f's_lshl_b32 s59, s{shp}, 14')
                a(f's_add_u32 s{sd}, s58, s59'); a(f's_add_u32 s{sd}, s{sd}, {WS_QAT}')
            else:
                a('s_lshl_b32 s58, s58, 21'); a(f's_lshl_b32 s59, s{shp}, 17')
                a(f's_add_u32 s{sd}, s58, s59')
                assert WS_QAM == 0
    dest_scalars(56, 53, Na, 80, False)
    dest_scalars(57, 54, Nb, 81, False)
    dest_scalars(57, 55, Nb, 82, True)
    for st, sd in ((56, 30), (57, 14)):
        a(f's_cmp_eq_u32 s{st}, 0'); a(f's_cselect_b32 s{sd}, {QSCALE_BITS}, 1.0'); a(f's_mov_b32 s{sd+1}, s{sd}')
    a(f's_mov_b32 s74, {LOG2E_BITS}'); a(f's_mov_b32 s75, {LOG2E_BITS}'); a(f's_mov_b32 s76, {EPS_BITS}')
    a(f'v_mov_b32 v60, {NEG_EPS_LOG2E_BITS}'); a(f'v_mov_b32 v61, {NEG_EPS_LOG2E_BITS}')
    if (not Na) or (not Nb):
        a('v_and_b32 v6, 1, v21'); a('v_lshl_add_u32 v6, v6, 2, v20'); a('v_lshlrev_b32 v6, 4, v6')
        a('v_lshrrev_b32 v7, 1, v21'); a('v_lshl_add_u32 v22, v7, 9, v6')
        a('s_lshl_b32 s58, s77, 5'); a('v_add_u32 v22, s58, v22')
    if not Nb:
        a('v_add_u32 v6, s77, v20'); a('v_lshlrev_b32 v6, 3, v6'); a('v_lshl_add_u32 v23, v21, 14, v6')
        a('v_mov_b32 v7, 0x7FF00000'); a('v_cmp_gt_u32 vcc, s50, v21'); a('v_cndmask_b32 v23, v7, v23, vcc')
    if Na or Nb:
        a('s_lshr_b32 s58, s77, 3'); a('v_add_u32 v6, s58, v21'); a('v_mul_u32_u24 v6, 18, v6')
        a('v_and_b32 v7, 15, v2'); a('v_add_u32 v24, v6, v7'); a('v_lshlrev_b32 v24, 4, v24')
    if Nb:
        a('v_and_b32 v8, 1, v7'); a('v_add3_u32 v8, v6, v8, 16'); a('v_lshlrev_b32 v8, 4, v8')
        a('v_lshrrev_b32 v9, 1, v7'); a(f's_mov_b32 s58, {NIMG}'); a('v_mul_lo_u32 v9, v9, s58'); a('v_add_u32 v25, v8, v9')
        a('v_mov_b32 v8, 0x7FF00000'); a('v_lshrrev_b32 v9, 2, v7'); a('v_cmp_gt_u32 vcc, s50, v9')
        a('v_cndmask_b32 v25, v8, v25, vcc')
    if name == 'TT':
        a('v_add_u32 v6, s77, v20'); a('v_lshlrev_b32 v6, 2, v6')
        a('v_mov_b32 v7, 0x7FF00000'); a('v_cmp_eq_u32 vcc, 2, v21'); a('v_cndmask_b32 v26, v7, v6, vcc')
        a('s_lshl_b32 s58, s40, 1'); a('s_or_b32 s58, s58, s44')
        a('s_cmp_eq_u32 s58, 1'); a(f's_cselect_b32 s83, {WS_G}, 0x7FF00000' if False else f's_mov_b32 s83, {WS_G}')
        a('s_cselect_b32 s83, s83, 0x7FF00000')


def epilogue(a, name, Na, Nb, X=()):
    ST = ' sc1' if 'sc1' in X else (' nt' if 'nt' in X else (' sc0 sc1' if 'sc01' in X else ''))
    cnt = [0]

    def store_tile(tile):
        N = Na if tile < 2 else Nb
        sd = 80 if tile < 2 else (82 if tile == 2 else 81)
        hl = {0: 0, 1: 1, 2: 0, 3: 0, 4: 1, 5: 2, 6: 3}[tile]
        for G in range(2):
            X, Y = acc(2 * G, tile), acc(2 * G + 1, tile)
            t = 96 + (cnt[0] % 8) * 4
            cnt[0] += 1
            a(f'v_cvt_pk_bf16_f32 v{t}, v{X}, v{X+1}'); a(f'v_cvt_pk_bf16_f32 v{t+1}, v{X+2}, v{X+3}')
            a(f'v_cvt_pk_bf16_f32 v{t+2}, v{Y}, v{Y+1}'); a(f'v_cvt_pk_bf16_f32 v{t+3}, v{Y+2}, v{Y+3}')
            if N:
                voff = 25 if tile == 2 else 24
                a(f's_add_u32 s58, s{sd}, {hl * NIMG + G * 4 * 288}')
                a(f'buffer_store_dwordx4 {vr(t)}, v{voff}, s[24:27], s58 offen{ST}')
            elif tile == 2:
                a(f'buffer_store_dwordx2 {vr(t, 2)}, v23, s[24:27], s{sd} offen offset:{G * 256}{ST}')
                a(f'buffer_store_dwordx2 {vr(t + 2, 2)}, v23, s[24:27], s{sd} offen offset:{G * 256 + 32}{ST}')
            else:
                a(f's_add_u32 s58, s{sd}, {hl * 65536 + G * 1024}')
                a(f'v_permlane16_swap_b32 v{t}, v{t+2}')
                a(f'v_permlane16_swap_b32 v{t+1}, v{t+3}')
                a(f'buffer_store_dwordx4 {vr(t)}, v22, s[24:27], s58 offen{ST}')

    a.waitcnt(lg=0)
    if name == 'TT':
        for rt in range(4):
            a(f'v_mul_f32 v{50+rt}, 0xBFB8AA3B, v{acc(rt, 2)}')
        for rt in range(4):
            a(f'v_exp_f32 v{50+rt}, v{50+rt}')
        for rt in range(4):
            a(f'v_add_f32 v{50+rt}, 1.0, v{50+rt}')
        for rt in range(4):
            a(f'v_rcp_f32 v{50+rt}, v{50+rt}')
        for rt in range(4):
            a(f'buffer_store_dword v{50+rt}, v26, s[24:27], s83 offen offset:{(rt // 2) * 128 + (rt % 2) * 16}')
    for seg, tiles, sphi, ssc in (('a', (0, 1), 66, 30), ('b', (2, 3, 4, 5, 6), 67, 14)):
        N = Na if seg == 'a' else Nb
        lab = f'K1_{name}_{seg}'
        a(f's_cmp_eq_u32 s{sphi}, 0')
        a(f's_cbranch_scc1 {lab}_nophi')
        st = a.snapshot()
        c0 = cnt[0]
        for tile in tiles:
            T = 64
            rr = [ACC + tile * 16 + r for r in range(16)]
            for k in range(0, 16, 2):
                a(f'v_pk_fma_f32 v[{T+k}:{T+k+1}], v[{rr[k]}:{rr[k]+1}], s[74:75], v[60:61]')
            for k in range(16):
                a(f'v_exp_f32_e64 v{T+k}, v{T+k} clamp')
                a(f'v_max_f32 v{rr[k]}, s76, v{rr[k]}')
            for k in range(0, 16, 2):
                a(f'v_pk_add_f32 v[{rr[k]}:{rr[k]+1}], v[{rr[k]}:{rr[k]+1}], v[{T+k}:{T+k+1}]')
            store_tile(tile)
        a(f's_branch {lab}_done')
        st1 = a.snapshot()
        a.restore(st)
        cnt[0] = c0
        a.label(f'{lab}_nophi')
        for tile in tiles:
            if not N:
                for k in range(0, 16, 2):
                    r = ACC + tile * 16 + k
                    a(f'v_pk_mul_f32 v[{r}:{r+1}], v[{r}:{r+1}], s[{ssc}:{ssc+1}]')
            store_tile(tile)
        a.label(f'{lab}_done')
        a.nop(2)


DESC = """
.amdhsa_kernel qkv_kernel
  .amdhsa_next_free_vgpr 240
  .amdhsa_next_free_sgpr 102
  .amdhsa_accum_offset 240
  .amdhsa_group_segment_fixed_size 0
  .amdhsa_kernarg_size 80
  .amdhsa_user_sgpr_count 2
  .amdhsa_user_sgpr_kernarg_segment_ptr 1
  .amdhsa_system_sgpr_workgroup_id_x 1
.end_amdhsa_kernel
"""
BLOCK = 512
```

```python
from asmlib import Asm
from layout import *

KM_L = 0
KT_L = 65536
V_L = 73728
KVP_L = V_L + NIMG
FLAG_L = KVP_L + 4 * 1520
LDS2 = FLAG_L + 64
XB = KVP_L - 8 * 3072
VROW = 288
BLOCK = 768

SA, SB = 32, 64
O0, O1 = 96, 112
KM = 128
VF = 136
KT = 152
QM = (154, 160)
QT = (158, 164)
IDX = 166
G = 167
NV2 = 168
P3_OG = (32, 80)
P3_XW = (56, 104)


def vr(b, n=4):
    return f'v[{b}:{b+n-1}]'


def gen(prof=False, X=()):
    a = Asm()
    a.prof = prof
    a.raw('.p2align 8')
    a.raw('.globl attn_kernel')
    a.raw('.type attn_kernel,@function')
    a.label('attn_kernel')
    a('s_cmp_ge_u32 s2, 256')
    a('s_cbranch_scc1 K2_END')
    a.stamp(0, real=True); a.stamp(1)
    a('s_load_dwordx2 s[6:7], s[0:1], 72')
    a('s_load_dwordx2 s[4:5], s[0:1], 56')
    a('v_lshrrev_b32 v1, 6, v0')
    a('v_and_b32 v2, 63, v0')
    a('v_readfirstlane_b32 s36, v1')
    if 'qx' not in X:
        a('s_and_b32 s37, s2, 7'); a('s_lshl_b32 s37, s37, 2'); a('s_lshr_b32 s38, s2, 3'); a('s_and_b32 s39, s38, 3')
        a('s_add_u32 s37, s37, s39'); a('s_lshr_b32 s38, s38, 2')
    else:
        a('s_lshr_b32 s37, s2, 3')
        a('s_and_b32 s38, s2, 7')
    a('v_lshlrev_b32 v3, 4, v2')
    a('v_and_b32 v8, 31, v2')
    a('v_lshrrev_b32 v9, 5, v2')
    a('s_lshl_b32 s41, s37, 16')
    a('s_lshr_b32 s44, s37, 1'); a('s_lshl_b32 s44, s44, 14')
    a('s_and_b32 s45, s37, 1'); a('s_lshl_b32 s45, s45, 2'); a('s_add_u32 s44, s44, s45')
    a(f's_mul_i32 s48, s37, {NIMG}')
    a('s_and_b32 s39, s36, 3')
    a('s_lshl_b32 s42, s38, 3'); a('s_lshl_b32 s43, s39, 1'); a('s_add_u32 s42, s42, s43')
    a('s_lshl_b32 s43, s42, 10'); a('s_add_u32 s43, s43, s41')
    a('s_lshl_b32 s45, s42, 8'); a('s_add_u32 s45, s45, s44')
    a('v_lshlrev_b32 v10, 3, v8')
    a('v_min_u32 v14, 17, v8')
    a('v_mul_u32_u24 v16, 18, v9')
    a('v_add_u32 v17, v14, v16'); a('v_lshlrev_b32 v17, 4, v17')
    a('s_mov_b32 s34, 0x3FFFF'); a('s_mov_b32 s35, 0x3FFFF')
    a('s_cmp_ge_u32 s36, 8')
    a('s_cbranch_scc1 K2_HELPER')
    st_entry = a.snapshot()

    def srd():
        a.waitcnt(lg=0)
        a('s_mov_b32 s16, s6'); a('s_mov_b32 s17, s7'); a(f's_mov_b32 s18, {WS_END}'); a('s_mov_b32 s19, 0x00020000')

    def og_addr(tile_sgpr):
        a('v_lshrrev_b32 v20, 4, v8'); a('v_mul_u32_u24 v20, 36864, v20')
        a('v_and_b32 v21, 15, v8'); a('v_lshl_add_u32 v22, v21, 4, v20')
        a('v_lshl_add_u32 v21, v9, 8, v22')
        a(f's_mul_i32 s61, s{tile_sgpr}, 73728'); a(f's_add_u32 s61, s61, {WS_OG}')
        a('s_lshr_b32 s62, s37, 1'); a('s_lshl_b32 s62, s62, 10')
        a('s_and_b32 s63, s37, 1'); a('s_lshl_b32 s63, s63, 9'); a('s_add_u32 s62, s62, s63')
        a('s_add_u32 s62, s62, s61')
        a('s_lshr_b32 s64, s37, 4'); a('s_lshl_b32 s64, s64, 10')
        a('s_bfe_u32 s65, s37, 0x20002'); a('s_lshl_b32 s65, s65, 8'); a('s_add_u32 s64, s64, s65')
        a('s_and_b32 s65, s37, 3'); a('s_lshl_b32 s65, s65, 2'); a('s_add_u32 s64, s64, s65')
        a('s_add_u32 s64, s64, s61'); a('s_add_u32 s64, s64, 16384')

    def og_store(src, sc, T, smain, stail):
        for r in range(10):
            a(f'v_mul_f32 v{src+r}, v{src+r}, v{sc}')
        for k in range(4):
            a(f'v_cvt_pk_bf16_f32 v{T+k}, v{src+2*k}, v{src+2*k+1}')
        a(f'v_cvt_pk_bf16_f32 v{src+8}, v{src+8}, v{src+9}')
        a(f'v_permlane32_swap_b32 v{T}, v{T+2}')
        a(f'v_permlane32_swap_b32 v{T+1}, v{T+3}')
        a(f'buffer_store_dwordx4 {vr(T)}, v21, s[16:19], s{smain} offen' + (' sc1'))
        a('s_mov_b32 exec_hi, 0')
        a(f'buffer_store_dword v{src+8}, v22, s[16:19], s{stail} offen' + (' sc1'))
        a('s_mov_b32 exec_hi, -1')

    OGF, XW0 = P3_OG[0], P3_XW[0]

    def frag_src(f):
        half, r = divmod(f, 72); nt, k = divmod(r, 18)
        return (nt * 36 + (18 if half == 0 else 0) + k) * 1024

    def p3_setup():
        a('s_lshr_b32 s66, s36, 2'); a('s_mul_i32 s66, s66, 6144')
        a('s_and_b32 s52, s37, 7')
        a('s_lshr_b32 s53, s37, 3')
        a('s_mul_i32 s67, s52, 147456'); a(f's_add_u32 s67, s67, {WS_WOT}')
        a('s_and_b32 s54, s52, 3'); a('s_add_u32 s54, s54, 32')
        a('s_mul_i32 s68, s54, 36864'); a('s_add_u32 s68, s68, s66'); a(f's_add_u32 s68, s68, {WS_WOT}')
        a('s_lshl_b32 s71, s54, 5'); a('s_lshl_b32 s72, s52, 7')
        a('s_lshr_b32 s55, s39, 1'); a('s_lshr_b32 s56, s52, 2')
        a('s_cmp_eq_u32 s55, s56'); a('s_cselect_b32 s68, s68, 0x7FF00000'); a('s_cselect_b32 s71, s71, 0x7FF00000')
        a('s_lshl_b32 s70, s38, 2'); a('s_add_u32 s70, s70, s53')
        a('s_lshl_b32 s73, s70, 2'); a('s_add_u32 s73, s73, s39')
        a('s_mul_i32 s69, s73, 36864'); a('s_add_u32 s69, s69, s66'); a(f's_add_u32 s69, s69, {WS_OG}')
        a('s_lshl_b32 s74, s70, 12'); a(f's_add_u32 s74, s74, {WS_FLG + 2048 * 128}')
        a('s_lshl_b32 s70, s70, 13'); a(f's_add_u32 s70, s70, {WS_FLG}')

    def six(dst, sbase, add, fl, tag=None):
        a(f's_add_u32 s56, s{sbase}, {add}'); a(f's_add_u32 s57, s{sbase}, {add + 4096}')
        for k in range(6):
            a(f'buffer_load_dwordx4 {vr(dst + 4 * k)}, v3, s[16:19], s{56 if k < 4 else 57} offen offset:{(k % 4) * 1024}{fl}', tag=tag)

    a('s_lshr_b32 s40, s36, 2')
    a(f's_add_u32 s51, s45, {WS_QAT}')
    srd()
    for t in range(2):
        a(f'buffer_load_dwordx4 {vr(QM[t])}, v3, s[16:19], s43 offen offset:{t * 1024}')
        a(f'buffer_load_dword v{QT[t]}, v10, s[16:19], s51 offen offset:{t * 256}')
    a('s_add_u32 s46, s42, s40')
    a('v_lshlrev_b32 v12, 2, v8')
    a('s_lshl_b32 s51, s46, 7'); a(f's_add_u32 s51, s51, {WS_G}')
    a(f'buffer_load_dword v{G}, v12, s[16:19], s51 offen')
    a('v_lshlrev_b32 v4, 2, v2'); a(f'v_add_u32 v4, {KT_L}, v4')
    a(f'v_add_u32 v5, {V_L}, v17')
    a('s_lshl_b32 s52, s40, 15'); a('v_add_u32 v11, s52, v3')
    a('s_lshl_b32 s52, s40, 12'); a('v_add_u32 v12, s52, v4')
    a(f's_mul_i32 s52, s40, {128 * VROW}'); a('v_add_u32 v13, s52, v5')
    a(f'v_mov_b32 v{IDX}, 0xDDDD')
    a(f'v_mov_b32 v{KT+1}, 0x3F80')
    a(f'v_mov_b32 v{QT[0]+1}, 0'); a(f'v_mov_b32 v{QT[1]+1}, 0')
    a('v_mov_b32 v15, 0'); a('v_mov_b32 v14, 0x3F803F80')
    a('v_cmp_eq_u32 vcc, 18, v8'); a('v_cndmask_b32 v15, v15, v14, vcc')
    a('v_cmp_eq_u32 vcc, 28, v8'); a('v_cndmask_b32 v15, v15, v14, vcc')
    for r in range(16):
        a(f'v_mov_b32 v{VF+r}, v15')
    for r in range(32):
        a(f'v_mov_b32 v{O0+r}, 0')
    og_addr(46)
    p3_setup()
    a('s_mov_b32 s47, 0')
    a(f'v_mov_b32 v24, {FLAG_L}')

    def rd_kt(u): a(f'ds_read_b32 v{KT}, v12 offset:{u * 256}')
    def rd_km(u, i): a(f'ds_read_b128 {vr(KM + 4 * i)}, v11 offset:{(2 * u + i) * 1024}')

    def rd_v(u, i):
        a('s_mov_b64 exec, s[34:35]')
        a(f'ds_read_b128 {vr(VF + 4 * i)}, v13 offset:{(8 * u + 2 * i) * VROW}')
        a('s_mov_b64 exec, -1')

    def qk2b(S, t): a(f'v_mfma_f32_32x32x4_2b_bf16 {vr(S, 32)}, {vr(KT, 2)}, {vr(QT[t], 2)}, 0')
    def qk(S, i, t): a(f'v_mfma_f32_32x32x16_bf16 {vr(S + 16 * i, 16)}, {vr(KM + 4 * i)}, {vr(QM[t])}, {vr(S + 16 * i, 16)}')
    def pv(S, i, O): a(f'v_smfmac_f32_32x32x32_bf16 {vr(O, 16)}, {vr(VF + 4 * i)}, {vr(S + 8 * i, 8)}, v{IDX}')

    def rowmax(S, n, dst, tmp):
        a(f'v_max3_f32 v{dst}, v{S}, v{S+1}, v{S+2}')
        a(f'v_max3_f32 v{tmp}, v{S+3}, v{S+4}, v{S+5}')
        for k in range(6, n - 2, 4):
            a(f'v_max3_f32 v{dst}, v{S+k}, v{S+k+1}, v{dst}')
            a(f'v_max3_f32 v{tmp}, v{S+k+2}, v{S+k+3}, v{tmp}')
        a(f'v_max3_f32 v{dst}, v{S+n-2}, v{S+n-1}, v{dst}')
        a(f'v_max_f32 v{dst}, v{dst}, v{tmp}')
        a(f'v_mov_b32 v{tmp}, v{dst}')
        a(f'v_permlane32_swap_b32 v{dst}, v{tmp}')
        a(f'v_max_f32 v{dst}, v{dst}, v{tmp}')

    a.stamp(2)
    a.waitcnt(vm=0)
    a('s_barrier')
    a.stamp(3)
    a(f'ds_read_b32 v{KT}, v4'); a(f'ds_read_b128 {vr(KM)}, v3')
    for i in range(4):
        rd_v(0, i)
    qk2b(SA, 0); qk2b(SB, 1); qk(SA, 0, 0); qk(SB, 0, 1)
    rd_kt(0); rd_km(0, 0); rd_km(0, 1)
    for t, S in ((0, SA), (1, SB)):
        rowmax(S, 16, 18, 19)
        a('v_xor_b32 v18, 0x80000000, v18')
        a(f'v_lshrrev_b32 v{QT[t]+1}, 16, v18')
    qk2b(SA, 0); qk(SA, 0, 0); qk(SA, 1, 0)
    for r in range(24, 32):
        a(f'v_mov_b32 v{SB+r}, 0')
    a.waitcnt(lg=0)
    a.stamp(4)

    def phase(u, t):
        Sc, Sn = (SA, SB) if t == 0 else (SB, SA)
        Oc, Op = (O0, O1) if t == 0 else (O1, O0)
        e = [0]

        def ex(n):
            for r in range(e[0], e[0] + n):
                a(f'v_exp_f32 v{Sc+r}, v{Sc+r}')
            e[0] += n
        if 'noprio' not in X: a(f's_setprio {3 - (2 * u + t) % 4}')
        ex(2)
        pv(Sn, 3, Op)
        if t == 0: rd_v(u, 3)
        ex(4)
        qk2b(Sn, 1 - t)
        if t == 0: rd_kt(u + 1)
        ex(8)
        pv(Sc, 0, Oc)
        if t == 1: rd_v(u + 1, 0)
        ex(4)
        qk(Sn, 0, 1 - t)
        if t == 0: rd_km(u + 1, 0)
        ex(4)
        pv(Sc, 1, Oc)
        if t == 1: rd_v(u + 1, 1)
        ex(4)
        qk(Sn, 1, 1 - t)
        if t == 0: rd_km(u + 1, 1)
        ex(4)
        pv(Sc, 2, Oc)
        if t == 1: rd_v(u + 1, 2)
        ex(2)

    UN = 2

    def body():
        a('s_bitcmp1_b32 0xA, s47'); a('s_cbranch_scc0 K2_NOB1')
        a('s_barrier')
        a.label('K2_NOB1')
        if prof and 'it' in X:
            for k, st_ in ((1, 2), (2, 3), (5, 4)):
                a(f's_cmp_lg_u32 s47, {k}'); a(f's_cbranch_scc1 K2_NS{k}')
                a.raw(f'  s_memtime s[{84+2*st_}:{85+2*st_}]'); a.raw('  s_waitcnt lgkmcnt(0)')
                a.label(f'K2_NS{k}')
        for u in range(UN):
            phase(u, 0); phase(u, 1)

    def tail():
        a(f'v_add_u32 v11, {UN * 2048}, v11'); a(f'v_add_u32 v12, {UN * 256}, v12'); a(f'v_add_u32 v13, {UN * 8 * VROW}, v13')
        a('s_add_u32 s47, s47, 1'); a(f's_cmp_lg_u32 s47, {16 // UN}'); a('s_cbranch_scc1 K2_LOOP')
    n0 = len(a.lines); st = a.snapshot(); body(); tail(); back = a.snapshot(); del a.lines[n0:]; a.restore(st)
    a.lg = [set(x) for x in back[5]]
    a.raw('.p2align 6')
    a.loop('K2_LOOP', body, tail)
    a.stamp(5)
    a('s_setprio 3')
    pv(SB, 3, O1)

    a('v_cmp_eq_u32 vcc, 0, v9')
    a(f'v_cndmask_b32 v{O0+10}, v{O0+12}, v{O0+10}, vcc')
    a(f'v_cndmask_b32 v{O1+10}, v{O1+12}, v{O1+10}, vcc')
    a(f'v_max_f32 v19, v{O0+10}, v{O1+10}')
    a(f'v_fmac_f32 v19, 0, v{O0+10}'); a(f'v_fmac_f32 v19, 0, v{O1+10}')
    for r in range(10):
        a(f'v_fmac_f32 v19, 0, v{O0+r}'); a(f'v_fmac_f32 v19, 0, v{O1+r}')
    a('v_mov_b32 v20, 0x5F000000')
    a('v_cmp_nlt_f32 vcc, v19, v20')
    a('s_cmp_eq_u64 vcc, 0')
    a('s_cbranch_scc1 K2_OK')
    a('v_mov_b32 v19, 1')
    a('ds_write_b32 v24, v19')
    a.label('K2_OK')
    a.waitcnt(lg=0)
    a('s_barrier')
    a.stamp(6)
    a('ds_read_b32 v19, v24')
    a('s_mul_i32 s52, s36, 3072'); a(f's_add_u32 s52, s52, {XB}')
    a('s_xor_b32 s53, s36, 4'); a('s_mul_i32 s53, s53, 3072'); a(f's_add_u32 s53, s53, {XB}')
    a('v_add_u32 v25, s52, v3'); a('v_add_u32 v26, s53, v3')
    a('v_readfirstlane_b32 s52, v19')
    a('s_cmp_lg_u32 s52, 0')
    a('s_cbranch_scc1 K2_SLOW')
    a('s_cmp_eq_u32 s40, 0')
    a('s_cbranch_scc1 K2_X0')
    for r in range(11):
        a(f'v_swap_b32 v{O0+r}, v{O1+r}')
    a.label('K2_X0')
    a.nop(1)
    for k in range(3):
        a(f'ds_write_b128 v25, {vr(O1 + 4 * k)} offset:{k * 1024}')
    a.waitcnt(lg=0)
    if 'e2' in X: a.stamp(2)
    a('s_barrier')
    if 'e2' in X: a.stamp(3)
    for k in (2, 0, 1):
        a(f'ds_read_b128 {vr(O1 + 4 * k)}, v26 offset:{k * 1024}')
    for r in (10, 8, 0, 2, 4, 6):
        a(f'v_pk_add_f32 v[{O0+r}:{O0+r+1}], v[{O0+r}:{O0+r+1}], v[{O1+r}:{O1+r+1}]')
    a.label('K2_EPI')
    a.nop(2)
    if 'e2' in X: a.stamp(4)
    a(f'v_rcp_f32 v18, v{O0+10}')
    a(f'v_mul_f32 v18, v18, v{G}')
    og_store(O0, 18, 28, 62, 64)
    a('s_setprio 0')
    six(OGF, 69, 18432, '')
    if 'e2' in X: a.stamp(5)
    a('s_xor_b32 s45, s36, 4'); a('s_mul_i32 s45, s45, 3072')
    base = frag_src(120)
    assert all(frag_src(120 + i) == base + i * 1024 for i in range(6)) and all(frag_src(126 + i) == frag_src(126) + i * 1024 for i in range(18))
    a(f's_add_u32 s52, s45, {base}'); a(f's_add_u32 s55, s45, {frag_src(126) - 6 * 1024}')
    a('s_cmp_ge_u32 s45, 6144'); a('s_cselect_b32 s52, s55, s52'); a('s_add_u32 s52, s52, s67')
    a(f's_add_u32 m0, s45, {XB}')
    a.stamp(7)
    a('s_cmp_ge_u32 s68, 0x7FF00000'); a('s_cbranch_scc1 K2_NOXB')
    six(XW0, 68, 18432, '')
    a.label('K2_NOXB')
    a('s_barrier')
    for i in range(3):
        a(f'buffer_load_dwordx4 v3, s[16:19], s52 offen offset:{i * 1024} lds')
    st_p3c = a.snapshot()
    a('s_branch K2_P3')

    a.label('K2_SLOW')
    a.fence()
    a('s_cmp_eq_u32 s40, 0')
    a('s_cbranch_scc1 K2_S0')
    for r in range(5):
        a(f'v_mov_b32 v{QM[0]+r}, v{QM[1]+r}')
    a.label('K2_S0')
    a(f'v_mov_b32 v{QT[0]+1}, 0')
    a('v_mov_b32 v20, 0xFF800000')
    for r in range(16):
        a(f'v_mov_b32 v{O0+r}, 0')
    a('v_mov_b32 v11, v3'); a('v_mov_b32 v12, v4'); a('v_mov_b32 v13, v5')
    a('s_mov_b32 s47, 32')
    a.label('K2_SLOW_LOOP')
    a.fence()
    rd_kt(0); rd_km(0, 0); rd_km(0, 1)
    for i in range(4):
        rd_v(0, i)
    qk2b(SA, 0); qk(SA, 0, 0); qk(SA, 1, 0)
    rowmax(SA, 32, 18, 19)
    a('v_max_f32 v18, v18, v20')
    a('v_sub_f32 v19, v20, v18'); a('v_exp_f32 v19, v19')
    a('v_mov_b32 v20, v18')
    for r in range(32):
        a(f'v_sub_f32 v{SA+r}, v{SA+r}, v18')
    for r in range(32):
        a(f'v_exp_f32 v{SA+r}, v{SA+r}')
    for r in range(16):
        a(f'v_mul_f32 v{O0+r}, v{O0+r}, v19')
    for i in range(4):
        pv(SA, i, O0)
    a('v_add_u32 v11, 2048, v11'); a('v_add_u32 v12, 256, v12'); a(f'v_add_u32 v13, {8 * VROW}, v13')
    a('s_sub_u32 s47, s47, 1'); a('s_cmp_lg_u32 s47, 0'); a('s_cbranch_scc1 K2_SLOW_LOOP')
    a.fence()
    a('v_cmp_eq_u32 vcc, 0, v9')
    a(f'v_cndmask_b32 v{O0+10}, v{O0+12}, v{O0+10}, vcc')
    a.hazard_fence()
    a('s_barrier')
    a('s_branch K2_EPI')

    a.restore(st_entry)
    a.label('K2_HELPER')
    a('s_setprio 3')
    KVB, KVA = 32, 64
    QB = 96
    GB = 108
    a('v_lshlrev_b32 v7, 3, v2')
    a('s_lshl_b32 s40, s39, 10')
    a('s_add_u32 s46, s41, s40'); a(f's_add_u32 s46, s46, {WS_KAM}')
    a('s_lshl_b32 s47, s39, 9'); a('s_add_u32 s47, s47, s44'); a(f's_add_u32 s47, s47, {WS_KAT}')
    a('s_add_u32 s49, s48, s40'); a(f's_add_u32 s49, s49, {WS_VA}')
    a('s_lshl_b32 s50, s39, 8')
    srd()

    def dma(kind, n, tag):
        if kind == 'KM':
            a(f's_add_u32 m0, s40, {KM_L + n * 4096}'); a(f's_add_u32 s52, s46, {n * 4096}')
            a('buffer_load_dwordx4 v3, s[16:19], s52 offen lds', tag=tag)
        elif kind == 'V':
            a(f's_add_u32 m0, s40, {V_L + n * 4096}'); a(f's_add_u32 s52, s49, {n * 4096}')
            a('buffer_load_dwordx4 v3, s[16:19], s52 offen lds', tag=tag)
        else:
            a(f's_add_u32 m0, s50, {KT_L + n * 1024}'); a(f's_add_u32 s52, s47, {n * 2048}')
            a('buffer_load_dword v7, s[16:19], s52 offen lds', tag=tag)
    for hb in range(2):
        dma('KM', 8 * hb, 'b0'); dma('KT', 4 * hb, 'b0'); dma('V', 9 * hb, 'b0')
    for hb in range(2):
        dma('KM', 8 * hb + 1, 'b0'); dma('V', 9 * hb + 1, 'b0')
    a('v_mov_b32 v15, 0'); a(f'v_mov_b32 v24, {FLAG_L}'); a('ds_write_b32 v24, v15')
    a('v_mov_b32 v14, 0x3F803F80')
    a('v_cmp_eq_u32 vcc, 18, v8'); a('v_cndmask_b32 v13, v15, v14, vcc')
    for st in range(4):
        for r in range(4):
            a(f'v_mov_b32 v{KVB+8*st+r}, 0')
            a(f'v_mov_b32 v{KVB+8*st+4+r}, v13')
    for r in range(16):
        a(f'v_mov_b32 v{KVA+r}, 0')
    a.wait_vm_tag('b0')
    a.waitcnt(lg=0)
    a('s_barrier')
    a(f's_mul_i32 s61, s42, {4 * VROW}'); a('s_add_u32 s61, s61, s48')
    a(f's_add_u32 s62, s61, {WS_KB}'); a(f's_add_u32 s63, s61, {WS_VB}')
    order = []
    for n in range(2, 9):
        for hb in range(2):
            if n < 8: order.append(('KM', 8 * hb + n))
            order.append(('V', 9 * hb + n))
            if n in (2, 4, 6): order.append(('KT', 4 * hb + n // 2))
    first = [x for x in order if {'KM': x[1] % 8 < 4, 'V': x[1] % 9 < 4, 'KT': x[1] % 4 < 2}[x[0]]]
    rest = [x for x in order if x not in first]
    for (k, n) in first:
        dma(k, n, 'b1')
    a('s_mov_b64 exec, s[34:35]')
    for st in range(4):
        a(f'buffer_load_dwordx4 {vr(KVB + 8 * st)}, v17, s[16:19], s62 offen offset:{st * 2 * VROW}')
        a(f'buffer_load_dwordx4 {vr(KVB + 8 * st + 4)}, v17, s[16:19], s63 offen offset:{st * 2 * VROW}')
    a('s_mov_b64 exec, -1')
    for (k, n) in rest[:6]:
        dma(k, n, 'b2')
    for st in range(4):
        a(f'v_mfma_f32_32x32x16_bf16 {vr(KVA, 16)}, {vr(KVB + 8 * st)}, {vr(KVB + 8 * st + 4)}, {vr(KVA, 16)}')
    a('v_mul_u32_u24 v18, 80, v8'); a('v_lshl_add_u32 v18, v9, 4, v18')
    a('s_mul_i32 s61, s39, 1520'); a(f's_add_u32 s61, s61, {KVP_L}'); a('v_add_u32 v18, s61, v18')
    a('s_mov_b32 exec_lo, 0x7FFFF'); a('s_mov_b32 exec_hi, 0x7FFFF')
    a(f'ds_write_b128 v18, {vr(KVA)}')
    a(f'ds_write_b128 v18, {vr(KVA + 4)} offset:32')
    a('s_mov_b32 exec_hi, 0')
    a(f'ds_write_b64 v18, {vr(KVA + 8, 2)} offset:64')
    a('s_mov_b64 exec, -1')
    a.wait_vm_tag('b1')
    a.waitcnt(lg=0)
    a('s_barrier')
    a('s_mul_i32 s57, s37, 12288'); a(f's_add_u32 s57, s57, {WS_KVS}')
    a('s_cmp_lg_u32 s39, 0')
    a('s_cbranch_scc1 K2_HPUB')
    st_skip = a.snapshot()
    a('v_min_u32 v19, 30, v2'); a('v_lshlrev_b32 v19, 4, v19'); a('v_add_u32 v19, 1024, v19')
    a(f'v_add_u32 v18, {KVP_L}, v3'); a(f'v_add_u32 v20, {KVP_L}, v19')
    for k in range(4):
        a(f'ds_read_b128 {vr(KVB + 8 * k)}, v18 offset:{k * 1520}')
        a(f'ds_read_b128 {vr(KVB + 8 * k + 4)}, v20 offset:{k * 1520}')
    for k in range(1, 4):
        for r in range(0, 8, 2):
            a(f'v_pk_add_f32 v[{KVB+r}:{KVB+r+1}], v[{KVB+r}:{KVB+r+1}], v[{KVB+8*k+r}:{KVB+8*k+r+1}]')
    a('s_mul_i32 s58, s38, 1536'); a('s_add_u32 s58, s58, s57')
    a(f'buffer_store_dwordx4 {vr(KVB)}, v3, s[16:19], s58 offen sc1')
    a(f'buffer_store_dwordx4 {vr(KVB + 4)}, v19, s[16:19], s58 offen sc1')
    a.waitcnt(vm=0)
    a('v_mov_b32 v18, 1'); a('v_mov_b32 v19, 1520')
    a('s_mov_b64 exec, 1')
    a('buffer_store_dword v18, v19, s[16:19], s58 offen sc1')
    a('s_mov_b64 exec, -1')
    a.restore(st_skip)
    a.label('K2_HPUB')
    a.nop(2)
    for (k, n) in rest[6:]:
        dma(k, n, 'b2')
    og_addr(42)
    for r in range(4):
        a(f'v_mov_b32 v{28+r}, -1')
    for t in range(2):
        a(f's_add_u32 s52, s62, {t * 73728}'); a(f's_add_u32 s53, s64, {t * 73728}')
        a('buffer_store_dwordx4 v[28:31], v21, s[16:19], s52 offen sc1')
        a('s_mov_b32 exec_hi, 0')
        a('buffer_store_dword v28, v22, s[16:19], s53 offen sc1')
        a('s_mov_b32 exec_hi, -1')
    a.waitcnt(vm=0)
    a('s_barrier')
    if 'hst' in X: a.stamp(2)
    a('v_mov_b32 v11, 0x7FF00000'); a('v_cmp_eq_u32 vcc, 0, v9'); a('v_cndmask_b32 v11, v11, v10, vcc')
    a('v_lshlrev_b32 v12, 2, v8')
    a(f's_add_u32 s51, s43, {WS_QBM}'); a(f's_add_u32 s52, s45, {WS_QBT}')
    a('s_lshl_b32 s53, s42, 7'); a(f's_add_u32 s53, s53, {WS_G}')
    for t in range(2):
        a(f'buffer_load_dwordx4 {vr(QB + 6 * t)}, v3, s[16:19], s51 offen offset:{t * 1024}')
        a(f'buffer_load_dword v{QB + 6 * t + 4}, v11, s[16:19], s52 offen offset:{t * 256}')
        a(f'v_mov_b32 v{QB + 6 * t + 5}, 0')
        a(f'buffer_load_dword v{GB + t}, v12, s[16:19], s53 offen offset:{t * 128}')
    if 'nowo' not in X:
        a('s_lshr_b32 s53, s2, 3'); a('s_lshl_b32 s53, s53, 2'); a('s_add_u32 s53, s53, s39')
        a('s_mul_i32 s53, s53, 11264'); a(f's_add_u32 s53, s53, {WS_WOT}')
        for k in range(11):
            if k % 4 == 0 and k: a('s_add_u32 s53, s53, 4096')
            a(f'buffer_load_dwordx4 v[112:115], v3, s[16:19], s53 offen offset:{(k % 4) * 1024}', tag='untracked')
    a('v_min_u32 v18, 18, v8'); a('v_mul_u32_u24 v19, 80, v18'); a('v_lshl_add_u32 v18, v9, 5, v19')
    a('v_and_b32 v25, 7, v2'); a('v_mul_u32_u24 v25, 1536, v25'); a('v_add_u32 v25, 1520, v25'); a('s_mov_b32 s58, 0')
    a.label('K2_POLL')
    a('buffer_load_dword v26, v25, s[16:19], s57 offen sc1')
    a.waitcnt(vm=0)
    a('v_cmp_ne_u32 vcc, 1, v26')
    a('s_cmp_eq_u64 vcc, 0'); a('s_cbranch_scc1 K2_GOT')
    a('s_sleep 4')
    a('s_add_u32 s58, s58, 1'); a('s_cmp_lt_u32 s58, 0x40000'); a('s_cbranch_scc1 K2_POLL')
    a.label('K2_GOT')
    if 'hst' in X: a.stamp(3)
    TS = [32, 40, 48, 56, 64, 72, 80, 88]
    a('v_min_u32 v20, 30, v2'); a('v_lshlrev_b32 v20, 4, v20'); a('v_add_u32 v20, 1024, v20')
    for q in range(8):
        d = TS[q]
        if q % 2 == 0: a(f's_add_u32 s58, s57, {q * 1536}')
        o = (q % 2) * 1536
        a(f'buffer_load_dwordx4 {vr(d)}, v3, s[16:19], s58 offen offset:{o}')
        a(f'buffer_load_dwordx4 {vr(d + 4)}, v20, s[16:19], s58 offen offset:{o}')
    a('s_mul_i32 s58, s39, 1520'); a(f's_add_u32 s58, s58, {KVP_L}')
    a('v_add_u32 v25, s58, v3'); a('v_add_u32 v20, s58, v20'); a('v_add_u32 v18, s58, v18'); a('v_add_u32 v19, s58, v19')
    for q in range(1, 8):
        for r in range(0, 8, 2):
            a(f'v_pk_add_f32 v[{32+r}:{33+r}], v[{32+r}:{33+r}], v[{TS[q]+r}:{TS[q]+r+1}]')
    a('ds_write_b128 v25, v[32:35]'); a('ds_write_b128 v20, v[36:39]')
    a.waitcnt(lg=0)
    a('ds_read_b128 v[32:35], v18'); a('ds_read_b128 v[36:39], v18 offset:16'); a('ds_read_b64 v[40:41], v19 offset:64')
    if 'hst' in X: a.stamp(4)
    for k in range(5):
        a(f'v_cvt_pk_bf16_f32 v{44+k}, v{32+2*k}, v{33+2*k}')
    a('v_mov_b32 v49, 0')
    for t in range(2):
        D = 64 + 16 * t
        a(f'v_mfma_f32_32x32x16_bf16 {vr(D, 16)}, v[44:47], {vr(QB + 6 * t)}, 0')
        a(f'v_mfma_f32_32x32x8bf16_1k {vr(D, 16)}, v[48:49], {vr(QB + 6 * t + 4, 2)}, {vr(D, 16)}')
    a('s_add_u32 s62, s62, 18432'); a('s_add_u32 s64, s64, 18432')
    for t in range(2):
        D = 64 + 16 * t
        a('v_cmp_eq_u32 vcc, 0, v9')
        a(f'v_cndmask_b32 v19, v{D+12}, v{D+10}, vcc')
        a(f'v_add_f32 v19, {EPS_BITS}, v19')
        a('v_rcp_f32 v19, v19')
        a(f'v_sub_f32 v20, 1.0, v{GB+t}')
        a('v_mul_f32 v19, v19, v20')
        og_store(D, 19, 28 + 0 * t, 62, 64)
        if t == 0:
            a('s_add_u32 s62, s62, 73728'); a('s_add_u32 s64, s64, 73728')
    a('s_lshl_b32 s59, s38, 2'); a('s_add_u32 s59, s59, s39'); a('s_lshl_b32 s59, s59, 12'); a(f's_add_u32 s59, s59, {WS_FLG + 2048 * 128}')
    a('v_mov_b32 v4, 1'); a('v_mov_b32 v5, s37'); a('v_lshlrev_b32 v5, 7, v5')
    a.waitcnt(vm=0)
    a('s_mov_b64 exec, 1')
    a('buffer_store_dword v4, v5, s[16:19], s59 offen sc1')
    if 'hst' in X: a.stamp(5)
    a('s_mov_b64 exec, -1')
    p3_setup()
    six(XW0, 68, 18432, '')
    STG = (80, 104, 128)
    a('s_mul_i32 s45, s39, 36864'); a('s_add_u32 s45, s45, s67')
    for i in range(3):
        six(STG[i], 45, 18432 + i * 6144, '')
    def a_src(j):
        srcs = [frag_src(72 + 12 * l + j) for l in range(4)]
        a('s_cmp_eq_u32 s39, 1'); a(f's_mov_b32 s52, {srcs[0]}'); a(f's_cselect_b32 s52, {srcs[1]}, s52')
        a('s_cmp_eq_u32 s39, 2'); a(f's_cselect_b32 s52, {srcs[2]}, s52')
        a('s_cmp_eq_u32 s39, 3'); a(f's_cselect_b32 s52, {srcs[3]}, s52'); a('s_add_u32 s52, s52, s67')
    STA = [152, 156, 160, 164, 8, 12, 16, 20, 24]
    for j in range(4):
        a_src(j)
        a(f'buffer_load_dwordx4 {vr(STA[j])}, v3, s[16:19], s52 offen')
    a('v_lshlrev_b32 v30, 7, v8'); a('s_mov_b32 s60, 0')
    a.label('K2_PB')
    a('buffer_load_dword v31, v30, s[16:19], s74 offen sc1')
    a.waitcnt(vm=0)
    a('v_cmp_ne_u32 vcc, 1, v31')
    a('s_cmp_eq_u64 vcc, 0'); a('s_cbranch_scc1 K2_GB')
    a('s_sleep 4')
    a('s_add_u32 s60, s60, 1'); a('s_cmp_lt_u32 s60, 0x40000'); a('s_cbranch_scc1 K2_PB')
    a.label('K2_GB')
    if 'hst' in X: a.stamp(6)
    six(OGF, 69, 18432, '')
    for k in range(12):
        if k % 4 == 0: a(f's_add_u32 s56, s69, {18432 - 12288 + k * 1024}')
        a(f'buffer_load_dwordx4 v[4:7], v3, s[16:19], s56 offen offset:{(k % 4) * 1024}', tag='untracked')
    for j in range(4, 9):
        a_src(j)
        a(f'buffer_load_dwordx4 {vr(STA[j])}, v3, s[16:19], s52 offen')
    a('s_mul_i32 s45, s39, 18432'); a('v_add_u32 v29, s45, v3')
    a('s_mul_i32 s45, s39, 12288'); a('s_add_u32 s45, s45, 73728'); a('v_add_u32 v28, s45, v3')
    a.waitcnt(vm=0)
    if 'hst' in X: a.stamp(7)
    a('s_setprio 0')
    a('s_barrier')
    a('s_barrier')
    for i in range(18):
        a(f'ds_write_b128 v29, {vr(STG[i // 6] + 4 * (i % 6))} offset:{i * 1024}')
    a.waitcnt(lg=0)
    a('s_barrier')
    if 'hp2' in X: a('s_setprio 2')
    for j in range(9):
        a(f'ds_write_b128 v28, {vr(STA[j])} offset:{j * 1024}')
    for j in range(9, 12):
        a(f's_add_u32 m0, s45, {j * 1024}')
        a_src(j)
        a('buffer_load_dwordx4 v3, s[16:19], s52 offen lds')
    a.waitcnt(lg=0)
    a.restore(st_p3c)
    phase3(a, X, six)
    a.label('K2_END')
    a('s_endpgm')
    return a


def phase3(a, X, six):
    a.label('K2_P3')
    a.nop(2)
    a('s_cmp_ge_u32 s68, 0x7FF00000'); a('s_cbranch_scc1 K2_P3_4')
    st = a.snapshot()
    phase3v(a, X, six, 5)
    a('s_branch K2_FIN')
    a.restore(st)
    a.vm = [e for e in a.vm if not (e['d'] & {('v', r) for r in range(P3_XW[0], P3_XW[0] + 24)})]
    a.label('K2_P3_4')
    phase3v(a, X, six, 4)
    a.label('K2_FIN')
    if a.prof:
        if 'hst' in X:
            a('s_cmp_lt_u32 s36, 4'); a('s_cbranch_scc1 K2_END'); a('s_sub_u32 s36, s36, 4')
        else:
            a('s_cmp_ge_u32 s36, 8'); a('s_cbranch_scc1 K2_END')
        a.reset_state()
        a.stamp_flush(6, 1, 3, 36, 2, WS_PROF)


def phase3v(a, X, six, NT):
    WR, ACC = 128, 8
    OGF, XW = 32, 80
    a('v_add_u32 v6, s66, v3')
    a('v_add_u32 v7, 73728, v6')
    if 'p3' in X: a.stamp(5)

    def wrd(hf, k):
        for nt in range(4):
            a(f'ds_read_b128 {vr(WR + (k % 2) * 16 + 4 * nt)}, v{6 + hf} offset:{nt * 18432 + k * 1024}')

    def half(hf, extra=None):
        for k in range(6):
            for nt in range(NT):
                d = ACC + 4 * nt
                A = P3_XW[hf] + 4 * k if nt == 4 else WR + (k % 2) * 16 + 4 * nt
                a(f'v_mfma_f32_16x16x32_bf16 {vr(d)}, {vr(A)}, {vr(P3_OG[hf] + 4 * k)}, {"0" if k == 0 and hf == 0 else vr(d)}')
            if k + 2 < 6:
                wrd(hf, k + 2)
            if extra: extra(k)
    wrd(0, 0); wrd(0, 1)
    a('s_add_u32 s56, s68, 4096'); a('s_add_u32 s57, s69, 4096')

    def a_loads(k):
        for j in (((0, 1, 2), (3, 4, 5), (6, 7, 8), (9, 10, 11), (), ()) if 'ea' in X else ((0, 1, 2), (3, 4, 5), (), (6, 7), (8, 9), (10, 11)))[k]:
            i = j % 6
            if j < 6 and NT == 4:
                continue
            if j < 6:
                a(f'buffer_load_dwordx4 {vr(P3_XW[1] + 4 * i)}, v3, s[16:19], s{68 if i < 4 else 56} offen offset:{(i % 4) * 1024}')
            else:
                a(f'buffer_load_dwordx4 {vr(P3_OG[1] + 4 * i)}, v3, s[16:19], s{69 if i < 4 else 57} offen offset:{(i % 4) * 1024}')
    half(0, a_loads)
    if 'p3' in X: a.stamp(6)
    a('s_mov_b32 s20, s4'); a('s_mov_b32 s21, s5'); a(f's_mov_b32 s22, {2048*1152}'); a('s_mov_b32 s23, 0x00020000')
    a('v_and_b32 v5, 15, v2'); a('v_lshrrev_b32 v31, 4, v2')
    a('s_lshl_b32 s58, s73, 4'); a('v_add_u32 v5, s58, v5'); a('v_mul_u32_u24 v5, 1152, v5')
    a('v_lshl_add_u32 v28, v31, 3, v5')
    a('v_and_b32 v29, 1, v31'); a('v_lshl_add_u32 v5, v29, 5, v5')
    a('v_lshrrev_b32 v29, 1, v31'); a('v_lshl_add_u32 v29, v29, 4, v5')
    a('s_mov_b32 s60, 0')
    a.waitcnt(vm=0)
    if 'p3' in X: a.stamp(7)
    a('s_barrier')
    wrd(1, 0); wrd(1, 1)
    a(f's_branch K2_P3CHK{NT}')
    a.label(f'K2_P3RETRY{NT}')
    six(P3_OG[1], 69, 0, ' sc1')
    a.waitcnt(vm=0)
    a.label(f'K2_P3CHK{NT}')
    R = P3_OG[1]
    a(f'v_max3_u32 v31, v{R}, v{R+1}, v{R+2}'); a(f'v_max3_u32 v5, v{R+3}, v{R+4}, v{R+5}')
    for k in range(6, 22, 4):
        a(f'v_max3_u32 v31, v{R+k}, v{R+k+1}, v31'); a(f'v_max3_u32 v5, v{R+k+2}, v{R+k+3}, v5')
    a(f'v_max3_u32 v31, v{R+22}, v{R+23}, v31'); a('v_max_u32 v31, v31, v5')
    a('v_cmp_eq_u32 vcc, -1, v31')
    a('s_add_u32 s60, s60, 1'); a('s_cmp_lt_u32 s60, 0x2000'); a('s_cselect_b64 s[76:77], -1, 0')
    a('s_and_b64 vcc, vcc, s[76:77]')
    a(f's_cbranch_scc1 K2_P3RETRY{NT}')
    if 'p3' in X and a.prof:
        a.waitcnt(lg=0); a('s_mul_i32 s92, s60, 1000'); a('s_add_u32 s92, s92, s86')
    if 'hst' not in X and 'e2' not in X: a.stamp(2)
    a('s_mul_i32 s58, s36, 5120'); a('v_add_u32 v6, s58, v3')
    half(1)
    if 'hst' not in X and 'e2' not in X: a.stamp(3)
    a('s_cmp_eq_u32 s66, 0'); a(f's_cbranch_scc1 K2_P3R{NT}')
    st = a.snapshot()
    for nt in range(NT):
        a(f'ds_write_b128 v6, {vr(ACC + 4 * nt)} offset:{nt * 1024}')
    a.waitcnt(lg=0)
    a('s_barrier')
    a('s_branch K2_FIN')
    a.restore(st)
    a.label(f'K2_P3R{NT}')
    a('s_barrier')
    for j in range(2):
        for nt in range(NT):
            a(f'ds_read_b128 {vr(OGF + (j * 5 + nt) * 4)}, v6 offset:{(j + 1) * 20480 + nt * 1024}')
    for nt in range(NT):
        d = ACC + 4 * nt
        for j in range(2):
            s_ = OGF + (j * 5 + nt) * 4
            a(f'v_pk_add_f32 v[{d}:{d+1}], v[{d}:{d+1}], v[{s_}:{s_+1}]')
            a(f'v_pk_add_f32 v[{d+2}:{d+3}], v[{d+2}:{d+3}], v[{s_+2}:{s_+3}]')
        t = XW + nt * 2
        a(f'v_cvt_pk_bf16_f32 v{t}, v{d}, v{d+1}'); a(f'v_cvt_pk_bf16_f32 v{t+1}, v{d+2}, v{d+3}')
        if nt % 2 == 1:
            t0 = t - 2
            a(f'v_permlane16_swap_b32 v{t0}, v{t0+2}'); a(f'v_permlane16_swap_b32 v{t0+1}, v{t0+3}')
            a(f'buffer_store_dwordx4 {vr(t0)}, v29, s[20:23], s72 offen offset:{(nt - 1) * 32}')
        elif nt == 4:
            a(f'buffer_store_dwordx2 {vr(t, 2)}, v28, s[20:23], s71 offen')


DESC = f"""
.amdhsa_kernel attn_kernel
  .amdhsa_next_free_vgpr {NV2}
  .amdhsa_next_free_sgpr 102
  .amdhsa_accum_offset {NV2}
  .amdhsa_group_segment_fixed_size 0
  .amdhsa_kernarg_size 80
  .amdhsa_user_sgpr_count 2
  .amdhsa_user_sgpr_kernarg_segment_ptr 1
  .amdhsa_system_sgpr_workgroup_id_x 1
.end_amdhsa_kernel
"""
```

```python
import sys
src = sys.argv[1] if len(sys.argv) > 1 else 'gated_mix__mha_block__linear_attn_block__prompt.s'
s = open(src).read()
def entry(k):
    return "  s_memrealtime s[96:97]\n  s_load_dwordx2 s[98:99], s[0:1], 72\n  s_load_dwordx2 s[88:89], s[0:1], 64\n  s_waitcnt lgkmcnt(0)\n"
COPY = """  s_cmp_lg_u32 s2, 0
  s_cbranch_scc1 K2_END_X
  s_waitcnt vmcnt(0)
  v_lshlrev_b32 v4, 2, v0
  buffer_load_dword v5, v4, s[92:95], 0 offen sc1
  s_mov_b32 s92, s88
  s_mov_b32 s93, s89
  s_mov_b32 s94, 64
  s_waitcnt vmcnt(0)
  buffer_store_dword v5, v4, s[92:95], 0 offen
"""
def exit_(k, lab):
    return f"""{lab}:
  s_cmp_ge_u32 s2, 256
  s_cbranch_scc1 {lab}_X
  s_waitcnt vmcnt(0) lgkmcnt(0)
  s_memrealtime s[100:101]
  s_waitcnt lgkmcnt(0)
  s_add_u32 s92, s98, 0x3000000
  s_addc_u32 s93, s99, 0
  s_mov_b32 s94, 256
  s_mov_b32 s95, 0x00020000
  s_cmp_eq_u32 s2, 0
  s_cselect_b32 s90, {k*8}, 0x7FF00000
  s_cmp_eq_u32 s2, 255
  s_cselect_b32 s90, {k*8+24}, s90
  v_mov_b32 v2, s96
  v_mov_b32 v3, s100
  v_lshlrev_b32 v4, 20, v0
  s_nop 4
  buffer_store_dwordx2 v[2:3], v4, s[92:95], s90 offen
{COPY if k == 1 else ''}{lab}_X:
"""
for k, (kn, lab) in enumerate((('qkv_kernel', 'K1_END'), ('attn_kernel', 'K2_END'))):
    s = s.replace(f'{kn}:\n', f'{kn}:\n' + entry(k), 1)
    s = s.replace(f'{lab}:\n', exit_(k, lab), 1)
open('dbgt.s', 'w').write(s)
```

```python
from asmlib import Asm
from layout import *

WPART = 14400
SLOT = WPART
NS = 6
XBASE = NS * SLOT
XSLOT = 16384
NX = 4
LDS1 = XBASE + NX * XSLOT
assert XBASE % 128 == 0

ACC = 128
WF = 96
NWF = 6
XF = 64


PFS = [(2, 0), (0, 4), (6, 0), (0, 8)]
PF = {'pf1': ([(2, 2)], [(4, 6), (8, 8)]), 'pf2': ([(2, 4)], [(6, 8)]), 'pf3': ([(0, 2)], [(4, 6), (8, 8)]), 'pf4': ([(2, 4)], [])}


def acc(rt, tile):
    return ACC + (tile * 4 + rt) * 4


def vr(b, n=4):
    return f'v[{b}:{b+n-1}]'


def gen(prof=False, X=()):
    a = Asm()
    a.prof = prof
    a.raw('.p2align 8')
    a.raw('.globl qkv_kernel')
    a.raw('.type qkv_kernel,@function')
    a.label('qkv_kernel')
    a('s_cmp_ge_u32 s2, 256')
    a('s_cbranch_scc1 K1_END')
    a.stamp(0, real=True); a.stamp(1)
    a('s_load_dwordx4 s[4:7], s[0:1], 0')
    a('s_load_dwordx2 s[8:9], s[0:1], 32')
    a('s_load_dwordx2 s[10:11], s[0:1], 48')
    a('s_load_dwordx2 s[12:13], s[0:1], 72')
    a('s_load_dwordx2 s[14:15], s[0:1], 16')
    a('s_load_dwordx2 s[32:33], s[0:1], 40')
    a('v_lshrrev_b32 v1, 6, v0')
    a('v_and_b32 v2, 63, v0')
    a('v_readfirstlane_b32 s36, v1')
    a('s_and_b32 s37, s2, 7')
    a('s_lshr_b32 s38, s2, 3')
    a('s_and_b32 s39, s37, 1')
    a('s_lshl_b32 s39, s39, 3')
    a('s_and_b32 s40, s38, 7')
    a('s_add_u32 s39, s39, s40')
    a('s_lshr_b32 s40, s37, 1')
    a('s_lshl_b32 s40, s40, 2')
    a('s_lshr_b32 s41, s38, 3')
    a('s_add_u32 s40, s40, s41')
    a('s_lshr_b32 s41, s40, 3')
    a('s_and_b32 s42, s40, 7')
    a('s_and_b32 s43, s36, 1')
    a('s_bfe_u32 s44, s36, 0x10001')
    FILL = [('x', 1), ('w', 2), ('w', 3), ('x', 2), ('w', 4), ('w', 5), ('x', 3)]
    NC = [int(x[1:]) for x in X if x[0] == 'c' and x[1:].isdigit()]
    NC = NC[0] if NC else 0
    a('s_mov_b32 s34, 0xF7FFFFFF')
    a('s_mov_b32 s35, 0x007FFFFF')
    a('v_cmp_le_u32 vcc, 28, v2')
    a('v_mov_b32 v4, 0')
    a('v_mov_b32 v5, 3008')
    a('v_cndmask_b32 v4, v4, v5, vcc')
    a('v_lshl_add_u32 v3, v2, 4, v4')
    a('s_mul_i32 s58, s42, 432')
    a('v_add_u32 v3, s58, v3')
    a('v_lshrrev_b32 v5, 3, v2')
    a('v_and_b32 v6, 7, v2')
    a('v_and_b32 v7, 2, v5')
    a('v_lshlrev_b32 v7, 1, v7')
    a('s_lshl_b32 s58, s43, 1')
    a('v_or_b32 v7, s58, v7')
    a('v_xor_b32 v6, v6, v7')
    a('v_mul_u32_u24 v5, 1152, v5')
    a('v_lshl_add_u32 v4, v6, 4, v5')
    a('s_mul_i32 s60, s44, 7200')
    a('s_mul_i32 s58, s43, 3616')
    a('s_add_u32 s60, s60, s58')
    a('s_and_b32 s58, s36, 3')
    a('s_mul_i32 s61, s58, 27648')
    a('s_lshl_b32 s58, s43, 1'); a('s_lshl_b32 s59, s44, 3'); a('s_add_u32 s58, s58, s59')
    a('s_lshl_b32 s62, s58, 10'); a(f's_add_u32 s62, s62, {XBASE}')
    a('s_lshl_b32 s59, s39, 4'); a('s_add_u32 s58, s58, s59')
    a('s_mul_i32 s63, s58, 9216')
    a('s_and_b32 s58, s38, 7'); a('s_lshr_b32 s59, s38, 3'); a('s_lshl_b32 s59, s59, 1'); a('s_add_u32 s58, s58, s59')
    a('s_sub_u32 s59, s58, 9'); a('s_cmp_ge_u32 s58, 9'); a('s_cselect_b32 s66, s59, s58')
    if 'norot' in X: a('s_mov_b32 s66, 0')
    if 'h1' in X or 'h2' in X: a('s_min_u32 s66, s66, 7' if 'h1' in X else 's_min_u32 s66, s66, 6')
    if 'rot3' in X:
        a('s_mul_i32 s58, s66, 43'); a('s_lshr_b32 s58, s58, 7'); a('s_mul_i32 s66, s58, 3')
    if 'rot2' in X:
        a('s_and_b32 s66, s66, 1'); a('s_lshl_b32 s66, s66, 2')
    a.waitcnt(lg=0)
    a('s_mov_b32 s16, s4'); a('s_mov_b32 s17, s5'); a(f's_mov_b32 s18, {2048*1152}'); a('s_mov_b32 s19, 0x00020000')
    a('s_cmp_eq_u32 s41, 0')
    a('s_cselect_b32 s20, s6, s8'); a('s_cselect_b32 s21, s7, s9')
    a(f's_mov_b32 s22, {576*3456}'); a('s_mov_b32 s23, 0x00020000')
    a('s_mov_b32 s28, s10'); a('s_mov_b32 s29, s11'); a('s_mov_b32 s30, 1152'); a('s_mov_b32 s31, 0x00020000')

    def kblock(A):
        H = [int(x[1:]) for x in X if x[0] == 'h' and x[1:].isdigit()]
        if H:
            h = H[0]
            if A < h:
                a(f's_mov_b32 s67, {A}')
            else:
                n = 9 - h
                a(f's_add_u32 s67, s66, {A - h}')
                for _ in range(2 if n < 8 else 1):
                    a(f's_sub_u32 s58, s67, {n}'); a(f's_cmp_ge_u32 s67, {n}'); a('s_cselect_b32 s67, s58, s67')
                a(f's_add_u32 s67, s67, {h}')
            return
        a(f's_add_u32 s67, s66, {A}'); a('s_sub_u32 s58, s67, 9'); a('s_cmp_ge_u32 s67, 9'); a('s_cselect_b32 s67, s58, s67')

    def xhalf(A, h):
        if h == 0:
            kblock(A)
            a('s_lshl_b32 s69, s67, 7'); a('s_add_u32 s69, s69, s63')
        for n in (2 * h, 2 * h + 1):
            rg = (n & 1) + 4 * (n >> 1)
            a(f's_add_u32 m0, s62, {(A % NX) * XSLOT + rg * 1024}')
            a(f's_add_u32 s65, s69, {rg * 9216}')
            if 'noload' not in X and 'nox' not in X: a('buffer_load_dwordx4 v4, s[16:19], s65 offen lds', tag=('x', A))

    def xchunk(A):
        xhalf(A, 0); xhalf(A, 1)

    def wchunk(c):
        if c % 2 == 0:
            kblock(c // 2)
            a(f's_mul_i32 s68, s67, {64 * 3456}'); a('s_add_u32 s68, s68, s61')
        a('s_mov_b64 exec, s[34:35]')
        for n in range(4):
            a(f's_add_u32 m0, s60, {(c % NS) * SLOT + n * 896}')
            a(f's_add_u32 s64, s68, {((c % 2) * 32 + 2 * n) * 3456}')
            if 'noload' not in X and 'now' not in X: a('buffer_load_dwordx4 v3, s[20:23], s64 offen lds', tag=('w', c))
        a('s_mov_b64 exec, -1')

    a('s_cmp_ge_u32 s36, 4')
    a('s_cbranch_scc0 K1_COMPUTE')
    st_entry = a.snapshot()

    PF2 = 'pf2' in X
    if PF2:
        a('v_lshrrev_b32 v20, 3, v2'); a('s_and_b32 s58, s37, 1'); a('s_lshl_b32 s58, s58, 5'); a('s_add_u32 s58, s58, s38')
        a('s_lshl_b32 s58, s58, 2'); a('s_and_b32 s59, s36, 3'); a('s_add_u32 s58, s58, s59'); a('s_lshl_b32 s58, s58, 3')
        a('v_add_u32 v20, s58, v20'); a('v_mul_u32_u24 v20, 1152, v20'); a('v_and_b32 v21, 7, v2'); a('v_lshl_add_u32 v20, v21, 4, v20')
        a('s_lshl_b32 s59, s59, 10'); a('v_lshlrev_b32 v21, 4, v2'); a('v_add_u32 v21, s59, v21')
        a('v_mov_b32 v22, 0'); a('v_mov_b32 v23, 1664'); a('v_cmp_le_u32 vcc, 0x700, v21'); a('v_cndmask_b32 v22, v22, v23, vcc')
        a('v_min_u32 v21, 3568, v21'); a('v_add_u32 v21, v21, v22')
        a('s_bfe_u32 s58, s37, 0x10001'); a('s_mul_i32 s58, s58, 1664'); a('s_mul_i32 s59, s38, 6912'); a('s_add_u32 s58, s58, s59')
        a('v_add_u32 v21, s58, v21')

    def pfx(b):
        if PF2 and b < 9:
            a(f's_mov_b32 s58, {b * 128}'); a('buffer_load_dwordx4 v[24:27], v20, s[16:19], s58 offen', tag='pf')

    def pfw(b):
        if PF2 and b < 9:
            a(f's_mov_b32 s58, {b * 64 * 3456}'); a('buffer_load_dwordx4 v[28:31], v21, s[20:23], s58 offen', tag='pf')
    xchunk(0); wchunk(0)
    a('v_lshlrev_b32 v19, 1, v2')
    for g in range(9):
        kblock(g); a('s_lshl_b32 s58, s67, 7')
        a(f'buffer_load_ushort v{41+g}, v19, s[28:31], s58 offen', tag=('w', 0))
    wchunk(1)
    for b in (1, 2, 3):
        pfx(b); pfw(b)
    a('v_bfe_u32 v6, v2, 4, 1')
    a('v_mul_u32_u24 v18, 7200, v6')
    a('v_and_b32 v6, 15, v2')
    a('v_mul_u32_u24 v6, 448, v6')
    a('v_add_u32 v18, v18, v6')
    a('v_bfe_u32 v6, v2, 3, 1')
    a('v_lshl_add_u32 v18, v6, 5, v18')
    a('v_lshrrev_b32 v6, 5, v2')
    a(f'v_mul_u32_u24 v6, {SLOT}, v6')
    a('v_add_u32 v18, v18, v6')
    a('v_add_u32 v18, 432, v18')
    a(f'v_add_u32 v17, {4*SLOT}, v18')

    a('s_lshl_b32 s72, s40, 3'); a('s_or_b32 s72, s72, s36')

    def gate_write(g):
        sl = (2 * g) % NS
        a('s_cmp_lg_u32 s72, 4'); a(f's_cbranch_scc1 K1_NG{g}')
        if sl == 4:
            a(f'ds_write_b16 v17, v{41+g}')
        else:
            a(f'ds_write_b16 v18, v{41+g} offset:{sl * SLOT}')
        a.label(f'K1_NG{g}')
    if 'free' in X:
        win = [int(x[1:]) for x in X if x[0] == 'n' and x[1:].isdigit()][0]
        a.stamp(2)
        for s in range(4, 18):
            if s % 2 == 0:
                xchunk(s // 2)
            wchunk(s)
            a.waitcnt(vm=min(win, 63))
            if s in (8, 12): a.stamp({8: 3, 12: 4}[s])
        a.stamp(5); a.stamp(6); a.stamp(7)
        a('s_sub_u32 s36, s36, 4')
        a('s_branch K1_FIN')
    a.wait_vm_tag(('w', 0))
    for g in range(3):
        gate_write(g)
    a.waitcnt(lg=0)
    a('s_barrier')
    rest = FILL[NC:]
    pre_n = max(0, 3 - NC)
    for k, i in rest[:pre_n]:
        xchunk(i) if k == 'x' else wchunk(i)
    rest = rest[pre_n:]
    plan = {}
    for s in range(0, 18):
        p = []
        A, h = ((s + 7) // 2, 0) if s % 2 else ((s + 6) // 2, 1)
        if 4 <= A < 9: p.append(('x', A, h))
        if s + 6 < 18: p.append(('w', s + 6))
        if s < 2:
            q = []
            for k, i in (rest[:3] if s == 0 else rest[3:]):
                q += [('x', i, 0), ('x', i, 1)] if k == 'x' else [('w', i)]
            if s == 0 and rest:
                held = p; p = q
            else:
                p = q + (held if rest and s == 1 else []) + p
                p.sort(key=lambda z: z[1] if z[0] == 'w' else 2 * z[1] - 0.5)
        plan[s] = p
    L = 'lst' in X
    PFD = 4
    for s in range(18):
        if L and s in (7, 8): a.stamp(2 + 3 * (s - 7))
        a.wait_vm_tag(('w', s + 1))
        a.wait_vm_tag(('x', (s + 1) // 2))
        a.waitcnt(lg=0)
        if L and s in (7, 8): a.stamp(3 + 3 * (s - 7))
        a('s_barrier')
        if L and s in (7, 8): a.stamp(4 + 3 * (s - 7))
        for p in plan[s]:
            if p[0] == 'x': xhalf(p[1], p[2])
            else: wchunk(p[1])
        if s + 6 < 18 and (s + 6) % 2 == 1:
            gate_write((s + 6) // 2)
        if s % 2 == 0: pfx(s // 2 + PFD); pfw(s // 2 + PFD)
        if s == 17:
            wo_gather(a, 0); wo_gather(a, 1)
            wo_store(a, 0); wo_store(a, 1)
    if L:
        a('s_sub_u32 s36, s36, 4')
        a('s_branch K1_FIN')
    a('s_branch K1_END')

    a.restore(st_entry)
    a.label('K1_COMPUTE')
    for k, i in FILL[:NC]:
        xchunk(i) if k == 'x' else wchunk(i)
    CW = [4 * (NC - max([j + 1 for j, (k, i) in enumerate(FILL[:NC]) if i <= (s_ + 1 if k == 'w' else (s_ + 1) // 2)] + [0])) for s_ in range(6)]
    a.vm = []
    if 'lp3' not in X: a('s_setprio 3')
    if 'free' in X: a('s_branch K1_END')
    if 'pf' in X:
        a('s_cmp_eq_u32 s43, 1'); a('s_cbranch_scc1 K1_PFW')
        a('v_and_b32 v6, 31, v2'); a('s_and_b32 s58, s37, 1'); a('s_lshl_b32 s58, s58, 5'); a('s_add_u32 s58, s58, s38'); a('s_lshl_b32 s58, s58, 5')
        a('v_add_u32 v6, s58, v6'); a('v_mul_u32_u24 v6, 1152, v6'); a('v_lshrrev_b32 v7, 5, v2'); a('v_lshl_add_u32 v6, v7, 7, v6')
        a('s_mov_b32 s78, 128')
        stp = a.snapshot()
        a.waitcnt(lg=0)
        a('s_mov_b32 s16, s4'); a('s_mov_b32 s17, s5'); a(f's_mov_b32 s18, {2048*1152}'); a('s_mov_b32 s19, 0x00020000')
        a('s_branch K1_PFGO')
        a.restore(stp)
        a.label('K1_PFW')
        a('v_min_u32 v6, 55, v2')
        a('v_cmp_le_u32 vcc, 28, v6'); a('v_mov_b32 v7, 0'); a(f'v_mov_b32 v8, {64 * 3456 - 28 * 128}'); a('v_cndmask_b32 v7, v7, v8, vcc')
        a('v_subrev_u32 v8, 28, v6'); a('v_cndmask_b32 v8, v6, v8, vcc')
        a('v_lshl_add_u32 v6, v6, 7, v7')
        a('v_cmp_le_u32 vcc, 14, v8'); a('v_mov_b32 v7, 0'); a(f'v_mov_b32 v8, {3456 - 14 * 128}'); a('v_cndmask_b32 v7, v7, v8, vcc')
        a('v_add_u32 v6, v6, v7')
        a('s_bfe_u32 s58, s37, 0x10001'); a('s_mul_i32 s58, s58, 1664'); a('s_mul_i32 s59, s38, 6912'); a('s_add_u32 s58, s58, s59')
        a('v_add_u32 v6, s58, v6')
        a(f's_mov_b32 s78, {64 * 3456}')
        a.waitcnt(lg=0)
        a('s_cmp_eq_u32 s41, 0')
        a('s_cselect_b32 s16, s6, s8'); a('s_cselect_b32 s17, s7, s9')
        a(f's_mov_b32 s18, {576*3456}'); a('s_mov_b32 s19, 0x00020000')
        a.label('K1_PFGO')
        a('v_mov_b32 v27, v6')
        OOB = 0x7FF00000 // 1
        for sd, (b0, b1) in zip((58, 88 if False else 28, 29, 34), PFS):
            a('s_cmp_eq_u32 s44, 0'); a(f's_cselect_b32 s{sd}, {b0}, {b1}'); a(f's_mul_i32 s{sd}, s{sd}, s78')
            a(f's_cmp_eq_u32 s{sd}, 0'); a(f's_cselect_b32 s{sd}, {OOB}, s{sd}')
        a('buffer_load_dword v28, v27, s[16:19], s58 offen', tag='untracked')
    a('s_cmp_eq_u32 s42, 5')
    a('s_cselect_b32 s45, 2, 0')
    a('s_cselect_b32 s46, 0, 4')
    a('s_add_u32 s47, s45, 3')
    a('s_add_u32 s48, s45, 1')
    a('s_cmp_eq_u32 s44, 0')
    a('s_cselect_b32 s47, s45, s47')
    a('s_cselect_b32 s48, s48, s46')
    a('s_cselect_b32 s49, s45, s46')
    a('s_cselect_b32 s50, 4, 2')
    a('s_mul_i32 s51, s42, 6')
    a('s_mul_i32 s52, s41, 3')
    a('s_add_u32 s53, s51, s47')
    a('s_add_u32 s54, s51, s48')
    a('s_add_u32 s55, s51, s49')
    a('s_lshr_b32 s56, s53, 4')
    a('s_add_u32 s56, s56, s52')
    a('s_lshr_b32 s57, s54, 4')
    a('s_add_u32 s57, s57, s52')
    a('s_and_b32 s53, s53, 15')
    a('s_and_b32 s54, s54, 15')
    a('s_and_b32 s55, s55, 15')
    a('v_lshrrev_b32 v6, 5, v2')
    a('v_mul_u32_u24 v5, 7200, v6')
    a('v_bfe_u32 v6, v2, 4, 1')
    a('v_mul_u32_u24 v6, 3616, v6')
    a('v_add_u32 v5, v5, v6')
    a('v_bfe_u32 v6, v2, 2, 2')
    a('v_mul_u32_u24 v6, 448, v6')
    a('v_add_u32 v5, v5, v6')
    a('v_and_b32 v6, 3, v2')
    a('v_lshl_add_u32 v7, v6, 3, v5')
    a('s_mul_i32 s58, s47, 72')
    a('v_add_u32 v10, s58, v7')
    a('s_mul_i32 s58, s48, 72')
    a('v_add_u32 v12, s58, v7')
    a('v_add_u32 v8, s49, v6')
    a('v_mul_u32_u24 v8, 72, v8')
    a('v_add_u32 v8, 32, v8')
    a('v_lshlrev_b32 v9, 3, v6')
    a('v_add_u32 v9, 416, v9')
    a('v_cmp_gt_u32 vcc, s50, v6')
    a('v_cndmask_b32 v8, v9, v8, vcc')
    a('v_add_u32 v11, v5, v8')
    a('v_and_b32 v6, 15, v2')
    a('v_lshrrev_b32 v7, 2, v6')
    a('v_and_b32 v8, 3, v6')
    a('v_lshl_add_u32 v20, v7, 3, v8')
    a('s_lshl_b32 s58, s43, 6')
    a('v_add_u32 v9, s58, v20')
    a('v_lshlrev_b32 v9, 7, v9')
    a('v_and_b32 v8, 2, v8')
    a('v_lshlrev_b32 v8, 1, v8')
    a('v_and_b32 v7, 2, v7')
    a('v_or_b32 v7, v7, v8')
    a('v_lshrrev_b32 v21, 4, v2')
    a('v_xor_b32 v8, v21, v7')
    a('v_lshl_add_u32 v13, v8, 4, v9')
    a(f'v_add_u32 v13, {XBASE}, v13')
    a('v_xor_b32 v17, 64, v13')
    a('v_mov_b32 v18, v13')
    a('s_mov_b32 s79, 0')
    for r in (10, 11, 12):
        a(f'v_add_u32 v{r+4}, {3*SLOT}, v{r}')
    a('s_lshr_b32 s58, 0x18, s56'); a('s_and_b32 s66, s58, 1')
    a('s_lshr_b32 s58, 0x18, s57'); a('s_and_b32 s67, s58, 1')
    a(f's_mul_i32 s68, s66, {EPS_BITS}')
    a(f's_mul_i32 s69, s67, {EPS_BITS}')
    for tile in range(7):
        for r in range(16):
            a(f'v_mov_b32 v{ACC + tile*16 + r}, s{68 if tile < 2 else 69}')
    a('s_lshr_b32 s58, 0x34, s56'); a('s_and_b32 s70, s58, 1')
    a('s_lshr_b32 s58, 0x34, s57'); a('s_and_b32 s71, s58, 1')
    a('s_lshl_b32 s58, s70, 1'); a('s_or_b32 s72, s58, s71')
    a.waitcnt(lg=0)
    a('s_mov_b32 s24, s12'); a('s_mov_b32 s25, s13'); a(f's_mov_b32 s26, {WS_END}'); a('s_mov_b32 s27, 0x00020000')
    a('s_lshl_b32 s77, s39, 7'); a('s_lshl_b32 s58, s43, 6'); a('s_add_u32 s77, s77, s58')
    if 'nokvst' in X:
        a('s_cmp_ge_u32 s57, 4'); a('s_cselect_b32 s26, 0, s26')
    if 'nost' in X:
        a('s_mov_b32 s26, 0')
    a('s_mov_b32 s73, 3')
    if 'steps' in X:
        a('s_mov_b32 s98, 1'); a.waitcnt(lg=0); a('v_mov_b32 v30, s86')
    a.stamp(2)
    a('s_cmp_eq_u32 s72, 1'); a('s_cbranch_scc1 K1_TN')
    a('s_cmp_eq_u32 s72, 2'); a('s_cbranch_scc1 K1_NT')
    a('s_cmp_eq_u32 s72, 3'); a('s_cbranch_scc1 K1_NN')
    state = a.snapshot()

    def tile_addr(tile, slot):
        base = {0: 10, 1: 10, 2: 11}.get(tile, 12)
        imm = {0: 0, 1: 40, 2: 0, 3: 0, 4: 40, 5: 72, 6: 112}[tile]
        if slot >= 3:
            base += 4
            slot -= 3
        return base, imm + slot * SLOT

    for (name, Na, Nb) in (('TT', 0, 0), ('TN', 0, 1), ('NT', 1, 0), ('NN', 1, 1)):
        a.restore(state)
        a.label(f'K1_{name}')
        epi_setup(a, name, Na, Nb)

        def wread(idx):
            s, t = (idx // 7) % NS, idx % 7
            b, imm = tile_addr(t, s)
            d = WF + (idx % NWF) * 4
            a(f'ds_read_b64_tr_b16 {vr(d, 2)}, v{b} offset:{imm}')
            a(f'ds_read_b64_tr_b16 {vr(d + 2, 2)}, v{b} offset:{imm + 1792}')

        def xread(s, rt):
            d = XF + (s % 2) * 16 + rt * 4
            off = (rt // 2) * 4096 + (rt % 2) * 512
            a(f'ds_read_b128 {vr(d)}, v{13 if s % 2 == 0 else 17} offset:{off}')

        DIST = 4
        a('s_barrier')
        a.stamp(3)
        if 'pf' in X: a('buffer_load_dword v28, v27, s[16:19], s28 offen', tag='untracked')
        pre = []

        def body():
            for s in range(NS):
                for t in range(7):
                    idx = s * 7 + t
                    wf = WF + (idx % NWF) * 4
                    N = Na if t < 2 else Nb
                    if t == 3:
                        a.waitcnt(vm=CW[s], lg=0)
                        if 'steps' in X:
                            a('s_memtime s[96:97]'); a.waitcnt(lg=0); a('s_mov_b32 m0, s98'); a('s_add_u32 s98, s98, 1'); a('v_writelane_b32 v30, s96, m0')
                        a('s_barrier')
                        if 'steps' in X:
                            a('s_memtime s[96:97]'); a.waitcnt(lg=0); a('s_mov_b32 m0, s98'); a('s_add_u32 s98, s98, 1'); a('v_writelane_b32 v30, s96, m0')
                    for rt in range(4):
                        xf = XF + (s % 2) * 16 + rt * 4
                        d = acc(rt, t)
                        if N:
                            a(f'v_mfma_f32_16x16x32_bf16 {vr(d)}, {vr(xf)}, {vr(wf)}, {vr(d)}')
                        else:
                            a(f'v_mfma_f32_16x16x32_bf16 {vr(d)}, {vr(wf)}, {vr(xf)}, {vr(d)}')
                        if rt == 0 and t != 2:
                            wread(idx + DIST)
                        if rt == 2 and t == 1:
                            wread(idx + DIST + 1)
                        if rt in (1, 2) and t in (3, 4):
                            xread(s + 1, 2 * (t - 3) + rt - 1)
                        if rt == 1 and t == 6 and s % 2 == 0:
                            a(f's_add_u32 s79, s79, {XSLOT}'); a(f's_and_b32 s79, s79, {NX * XSLOT - 1}')
                            a('v_add_u32 v13, s79, v18'); a('v_xor_b32 v17, 64, v13')

        def tail():
            a('s_sub_u32 s73, s73, 1'); a('s_cmp_lg_u32 s73, 0'); a(f's_cbranch_scc1 K1_{name}_LOOP')
        wread(0); xread(0, 0); xread(0, 1); wread(1); xread(0, 2); xread(0, 3); wread(2); wread(3)
        n0 = len(a.lines); st = a.snapshot(); body(); tail(); back = a.snapshot(); del a.lines[n0:]; a.restore(st)
        a.waitcnt(lg=0 if ('nocomp' in X or 'nowr' in X) else len(back[5]))
        a.loop(f'K1_{name}_LOOP', body, tail)
        if 'steps' not in X: a.stamp(7)
        if 'noepi' not in X: epilogue(a, name, Na, Nb, X)
        a.stamp(4); a.stamp(5)
        a('s_branch K1_END' if 'lst' in X else 's_branch K1_FIN')
    a.label('K1_FIN')
    a.reset_state()
    if 'steps' in X and prof:
        a('s_mov_b32 s76, s12'); a('s_mov_b32 s77, s13'); a('s_mov_b32 s78, 0x10000000'); a('s_mov_b32 s79, 0x00020000')
        a('s_lshl_b32 s74, s2, 2'); a('s_add_u32 s74, s74, s36'); a('s_lshl_b32 s74, s74, 8'); a(f's_add_u32 s74, s74, {WS_PROF + 0x100000}')
        a('v_lshlrev_b32 v0, 2, v2'); a('buffer_store_dword v30, v0, s[76:79], s74 offen')
    a.stamp_flush(12, 0, 3, 36, 2, WS_PROF)
    a.label('K1_END')
    a('s_endpgm')
    return a


def wo_gather(a, r):
    V = 64 + 16 * r
    sf = 70 + r
    a('s_lshl_b32 s53, s2, 2'); a('s_and_b32 s58, s36, 3'); a('s_add_u32 s53, s53, s58')
    if r: a('s_add_u32 s53, s53, 1024')
    a(f's_mul_hi_u32 s54, s53, {-(-(1 << 32) // 36)}')
    a('s_mul_i32 s55, s54, 36'); a('s_sub_u32 s55, s53, s55')
    a('s_cmp_ge_u32 s55, 18')
    a('s_cselect_b32 s28, s32, s14'); a('s_cselect_b32 s29, s33, s15')
    a('s_cselect_b32 s56, 18, 0'); a('s_sub_u32 s55, s55, s56')
    a(f's_mov_b32 s30, {576*1152}'); a('s_mov_b32 s31, 0x00020000')
    a('s_mul_i32 s56, s55, 36')
    a('s_mul_i32 s57, s55, 288'); a(f's_sub_u32 s57, s57, {288*16-16}')
    a('s_cmp_ge_u32 s55, 16')
    a('s_cselect_b32 s56, s57, s56')
    a('s_cselect_b32 s57, 144, 20')
    a('s_cselect_b32 s58, 72, 8')
    a('s_cselect_b32 s59, 36, 4')
    a('s_mul_i32 s59, s59, 1152')
    a('v_lshrrev_b32 v13, 5, v2')
    a('v_mul_lo_u32 v13, v13, s57')
    a('v_bfe_u32 v14, v2, 4, 1')
    a('v_mul_lo_u32 v14, v14, s58')
    a('v_add3_u32 v13, v13, v14, s56')
    a('v_mul_u32_u24 v13, 1152, v13')
    a('v_and_b32 v14, 15, v2')
    a('v_lshl_add_u32 v13, v14, 1, v13')
    a('s_lshl_b32 s56, s54, 5')
    a('s_cmp_lt_u32 s53, 1296')
    a('s_cselect_b32 s56, s56, 0x7FF00000')
    a('v_add_u32 v13, s56, v13')
    a(f's_lshl_b32 s{sf}, s53, 10'); a(f's_add_u32 s{sf}, s{sf}, {WS_WOT}')
    a('s_cmp_lt_u32 s53, 1296')
    a(f's_cselect_b32 s{sf}, s{sf}, 0x7FF00000')
    for j in range(8):
        so = '0' if j < 4 else 's59'
        a(f'buffer_load_ushort v{V+j}, v13, s[28:31], {so} offen offset:{(j % 4) * 1152}')


def wo_store(a, r):
    V = 64 + 16 * r
    if r == 0:
        a('s_mov_b32 s24, s12'); a('s_mov_b32 s25, s13'); a(f's_mov_b32 s26, {WS_END}'); a('s_mov_b32 s27, 0x00020000')
        a('v_lshlrev_b32 v15, 4, v2')
        a('s_mul_i32 s58, s2, 1536'); a(f's_add_u32 s58, s58, {WS_KVS + 1520}')
        a('v_mov_b32 v16, 0')
        a('s_mov_b64 exec, 1')
        a('buffer_store_dword v16, v16, s[24:27], s58 offen')
        a('s_mul_i32 s58, s2, 1536'); a(f's_add_u32 s58, s58, {WS_FLG}')
        a('s_mov_b64 exec, 0xFFF')
        a('v_lshlrev_b32 v14, 7, v2')
        a('buffer_store_dword v16, v14, s[24:27], s58 offen')
        a('s_mov_b64 exec, -1')
    for j in range(4):
        a(f'v_lshl_or_b32 v{V+8+j}, v{V+1+2*j}, 16, v{V+2*j}')
    a(f'buffer_store_dwordx4 v[{V+8}:{V+11}], v15, s[24:27], s{70+r} offen')


def epi_setup(a, name, Na, Nb):
    def dest_scalars(stype, shp, N, sd, tail):
        if N:
            a(f's_sub_u32 s58, s{stype}, 3'); a(f's_cmp_eq_u32 s{stype}, 2'); a('s_cselect_b32 s58, 0, s58')
            a(f's_mul_i32 s58, s58, {NIMG * 32}')
            a(f's_mul_i32 s59, s{shp}, {NIMG * 2}')
            a(f's_add_u32 s{sd}, s58, s59'); a(f's_add_u32 s{sd}, s{sd}, {WS_VA}')
        else:
            a(f's_cmp_eq_u32 s{stype}, 3'); a(f's_cselect_b32 s58, 2, s{stype}')
            if tail:
                a('s_lshl_b32 s58, s58, 18'); a(f's_lshl_b32 s59, s{shp}, 14')
                a(f's_add_u32 s{sd}, s58, s59'); a(f's_add_u32 s{sd}, s{sd}, {WS_QAT}')
            else:
                a('s_lshl_b32 s58, s58, 21'); a(f's_lshl_b32 s59, s{shp}, 17')
                a(f's_add_u32 s{sd}, s58, s59')
                assert WS_QAM == 0
    dest_scalars(56, 53, Na, 80, False)
    dest_scalars(57, 54, Nb, 81, False)
    dest_scalars(57, 55, Nb, 82, True)
    for st, sd in ((56, 30), (57, 14)):
        a(f's_cmp_eq_u32 s{st}, 0'); a(f's_cselect_b32 s{sd}, {QSCALE_BITS}, 1.0'); a(f's_mov_b32 s{sd+1}, s{sd}')
    a(f's_mov_b32 s74, {LOG2E_BITS}'); a(f's_mov_b32 s75, {LOG2E_BITS}'); a(f's_mov_b32 s76, {EPS_BITS}')
    a(f'v_mov_b32 v60, {NEG_EPS_LOG2E_BITS}'); a(f'v_mov_b32 v61, {NEG_EPS_LOG2E_BITS}')
    if (not Na) or (not Nb):
        a('v_and_b32 v6, 1, v21'); a('v_lshl_add_u32 v6, v6, 2, v20'); a('v_lshlrev_b32 v6, 4, v6')
        a('v_lshrrev_b32 v7, 1, v21'); a('v_lshl_add_u32 v22, v7, 9, v6')
        a('s_lshl_b32 s58, s77, 5'); a('v_add_u32 v22, s58, v22')
    if not Nb:
        a('v_add_u32 v6, s77, v20'); a('v_lshlrev_b32 v6, 3, v6'); a('v_lshl_add_u32 v23, v21, 14, v6')
        a('v_mov_b32 v7, 0x7FF00000'); a('v_cmp_gt_u32 vcc, s50, v21'); a('v_cndmask_b32 v23, v7, v23, vcc')
    if Na or Nb:
        a('s_lshr_b32 s58, s77, 3'); a('v_add_u32 v6, s58, v21'); a('v_mul_u32_u24 v6, 18, v6')
        a('v_and_b32 v7, 15, v2'); a('v_add_u32 v24, v6, v7'); a('v_lshlrev_b32 v24, 4, v24')
    if Nb:
        a('v_and_b32 v8, 1, v7'); a('v_add3_u32 v8, v6, v8, 16'); a('v_lshlrev_b32 v8, 4, v8')
        a('v_lshrrev_b32 v9, 1, v7'); a(f's_mov_b32 s58, {NIMG}'); a('v_mul_lo_u32 v9, v9, s58'); a('v_add_u32 v25, v8, v9')
        a('v_mov_b32 v8, 0x7FF00000'); a('v_lshrrev_b32 v9, 2, v7'); a('v_cmp_gt_u32 vcc, s50, v9')
        a('v_cndmask_b32 v25, v8, v25, vcc')
    if name == 'TT':
        a('v_add_u32 v6, s77, v20'); a('v_lshlrev_b32 v6, 2, v6')
        a('v_mov_b32 v7, 0x7FF00000'); a('v_cmp_eq_u32 vcc, 2, v21'); a('v_cndmask_b32 v26, v7, v6, vcc')
        a('s_lshl_b32 s58, s40, 1'); a('s_or_b32 s58, s58, s44')
        a('s_cmp_eq_u32 s58, 1'); a(f's_cselect_b32 s83, {WS_G}, 0x7FF00000' if False else f's_mov_b32 s83, {WS_G}')
        a('s_cselect_b32 s83, s83, 0x7FF00000')


def epilogue(a, name, Na, Nb, X=()):
    ST = ' sc1' if 'sc1' in X else (' nt' if 'nt' in X else (' sc0 sc1' if 'sc01' in X else ''))
    cnt = [0]

    def store_tile(tile):
        N = Na if tile < 2 else Nb
        sd = 80 if tile < 2 else (82 if tile == 2 else 81)
        hl = {0: 0, 1: 1, 2: 0, 3: 0, 4: 1, 5: 2, 6: 3}[tile]
        for G in range(2):
            X, Y = acc(2 * G, tile), acc(2 * G + 1, tile)
            t = 96 + (cnt[0] % 8) * 4
            cnt[0] += 1
            a(f'v_cvt_pk_bf16_f32 v{t}, v{X}, v{X+1}'); a(f'v_cvt_pk_bf16_f32 v{t+1}, v{X+2}, v{X+3}')
            a(f'v_cvt_pk_bf16_f32 v{t+2}, v{Y}, v{Y+1}'); a(f'v_cvt_pk_bf16_f32 v{t+3}, v{Y+2}, v{Y+3}')
            if N:
                voff = 25 if tile == 2 else 24
                a(f's_add_u32 s58, s{sd}, {hl * NIMG + G * 4 * 288}')
                a(f'buffer_store_dwordx4 {vr(t)}, v{voff}, s[24:27], s58 offen{ST}')
            elif tile == 2:
                a(f'buffer_store_dwordx2 {vr(t, 2)}, v23, s[24:27], s{sd} offen offset:{G * 256}{ST}')
                a(f'buffer_store_dwordx2 {vr(t + 2, 2)}, v23, s[24:27], s{sd} offen offset:{G * 256 + 32}{ST}')
            else:
                a(f's_add_u32 s58, s{sd}, {hl * 65536 + G * 1024}')
                a(f'v_permlane16_swap_b32 v{t}, v{t+2}')
                a(f'v_permlane16_swap_b32 v{t+1}, v{t+3}')
                a(f'buffer_store_dwordx4 {vr(t)}, v22, s[24:27], s58 offen{ST}')

    a.waitcnt(lg=0)
    if name == 'TT':
        for rt in range(4):
            a(f'v_mul_f32 v{50+rt}, 0xBFB8AA3B, v{acc(rt, 2)}')
        for rt in range(4):
            a(f'v_exp_f32 v{50+rt}, v{50+rt}')
        for rt in range(4):
            a(f'v_add_f32 v{50+rt}, 1.0, v{50+rt}')
        for rt in range(4):
            a(f'v_rcp_f32 v{50+rt}, v{50+rt}')
        for rt in range(4):
            a(f'buffer_store_dword v{50+rt}, v26, s[24:27], s83 offen offset:{(rt // 2) * 128 + (rt % 2) * 16}')
    for seg, tiles, sphi, ssc in (('a', (0, 1), 66, 30), ('b', (2, 3, 4, 5, 6), 67, 14)):
        N = Na if seg == 'a' else Nb
        lab = f'K1_{name}_{seg}'
        a(f's_cmp_eq_u32 s{sphi}, 0')
        a(f's_cbranch_scc1 {lab}_nophi')
        st = a.snapshot()
        c0 = cnt[0]
        for tile in tiles:
            T = 64
            rr = [ACC + tile * 16 + r for r in range(16)]
            for k in range(0, 16, 2):
                a(f'v_pk_fma_f32 v[{T+k}:{T+k+1}], v[{rr[k]}:{rr[k]+1}], s[74:75], v[60:61]')
            for k in range(16):
                a(f'v_exp_f32_e64 v{T+k}, v{T+k} clamp')
                a(f'v_max_f32 v{rr[k]}, s76, v{rr[k]}')
            for k in range(0, 16, 2):
                a(f'v_pk_add_f32 v[{rr[k]}:{rr[k]+1}], v[{rr[k]}:{rr[k]+1}], v[{T+k}:{T+k+1}]')
            store_tile(tile)
        a(f's_branch {lab}_done')
        st1 = a.snapshot()
        a.restore(st)
        cnt[0] = c0
        a.label(f'{lab}_nophi')
        for tile in tiles:
            if not N:
                for k in range(0, 16, 2):
                    r = ACC + tile * 16 + k
                    a(f'v_pk_mul_f32 v[{r}:{r+1}], v[{r}:{r+1}], s[{ssc}:{ssc+1}]')
            store_tile(tile)
        a.label(f'{lab}_done')
        a.nop(2)


DESC = """
.amdhsa_kernel qkv_kernel
  .amdhsa_next_free_vgpr 240
  .amdhsa_next_free_sgpr 102
  .amdhsa_accum_offset 240
  .amdhsa_group_segment_fixed_size 0
  .amdhsa_kernarg_size 80
  .amdhsa_user_sgpr_count 2
  .amdhsa_user_sgpr_kernarg_segment_ptr 1
  .amdhsa_system_sgpr_workgroup_id_x 1
.end_amdhsa_kernel
"""
BLOCK = 512
```

```python
from asmlib import Asm
from layout import *

WPART = 14400
SLOT = WPART
NS = 6
XBASE = NS * SLOT
XSLOT = 16384
NX = 4
LDS1 = XBASE + NX * XSLOT
assert XBASE % 128 == 0

ACC = 56
WF = 12
NWF = 3
XF = 24
TOK_L = 153600 - 32


PFS = [(2, 0), (0, 4), (6, 0), (0, 8)]
PF = {'pf1': ([(2, 2)], [(4, 6), (8, 8)]), 'pf2': ([(2, 4)], [(6, 8)]), 'pf3': ([(0, 2)], [(4, 6), (8, 8)]), 'pf4': ([(2, 4)], [])}


def acc(rt, tile):
    return ACC + (tile * 4 + rt) * 4


def vr(b, n=4):
    return f'v[{b}:{b+n-1}]'


def gen(a, X=()):
    prof = a.prof
    a.raw('.p2align 8')
    a.raw('.globl gated_mix__mha_block__linear_attn_block__prompt_kernel')
    a.raw('.type gated_mix__mha_block__linear_attn_block__prompt_kernel,@function')
    a.label('gated_mix__mha_block__linear_attn_block__prompt_kernel')
    a('s_cmp_ge_u32 s2, 256')
    a('s_cbranch_scc1 K2_END')
    a.stamp(0, real=True); a.stamp(1)
    a('s_load_dwordx4 s[4:7], s[0:1], 0')
    a('s_load_dwordx2 s[8:9], s[0:1], 32')
    a('s_load_dwordx2 s[10:11], s[0:1], 48')
    a('s_load_dwordx2 s[12:13], s[0:1], 72')
    a('s_load_dwordx2 s[14:15], s[0:1], 16')
    a('s_load_dwordx2 s[32:33], s[0:1], 40')
    a('s_load_dwordx2 s[82:83], s[0:1], 64')
    a('v_lshrrev_b32 v1, 6, v0')
    a('v_and_b32 v2, 63, v0')
    a('v_readfirstlane_b32 s36, v1')
    a('s_and_b32 s37, s2, 7')
    a('s_lshr_b32 s38, s2, 3')
    a('s_and_b32 s39, s37, 1')
    a('s_lshl_b32 s39, s39, 3')
    a('s_and_b32 s40, s38, 7')
    a('s_add_u32 s39, s39, s40')
    a('s_lshr_b32 s40, s37, 1')
    a('s_lshl_b32 s40, s40, 2')
    a('s_lshr_b32 s41, s38, 3')
    a('s_add_u32 s40, s40, s41')
    a('s_lshr_b32 s41, s40, 3')
    a('s_and_b32 s42, s40, 7')
    a('s_and_b32 s43, s36, 1')
    a('s_bfe_u32 s44, s36, 0x10001')
    a('s_cmp_ge_u32 s36, 8')
    a('s_cbranch_scc1 K1_HELPER')
    a('s_cmp_lt_u32 s36, 4')
    a('s_cbranch_scc1 K1_COMPUTE')
    st_entry = a.snapshot()
    FILL = [('x', 1), ('w', 2), ('w', 3), ('x', 2), ('w', 4), ('w', 5), ('x', 3)]
    NC = [int(x[1:]) for x in X if x[0] == 'c' and x[1:].isdigit()]
    NC = NC[0] if NC else 0
    a('s_mov_b32 s34, 0xF7FFFFFF')
    a('s_mov_b32 s35, 0x007FFFFF')
    a('v_cmp_le_u32 vcc, 28, v2')
    a('v_mov_b32 v4, 0')
    a('v_mov_b32 v5, 3008')
    a('v_cndmask_b32 v4, v4, v5, vcc')
    a('v_lshl_add_u32 v3, v2, 4, v4')
    a('s_mul_i32 s58, s42, 432')
    a('v_add_u32 v3, s58, v3')
    a('v_lshrrev_b32 v5, 3, v2')
    a('v_and_b32 v6, 7, v2')
    a('v_and_b32 v7, 2, v5')
    a('v_lshlrev_b32 v7, 1, v7')
    a('s_lshl_b32 s58, s43, 1')
    a('v_or_b32 v7, s58, v7')
    a('v_xor_b32 v6, v6, v7')
    a('v_mul_u32_u24 v5, 1152, v5')
    a('v_lshl_add_u32 v4, v6, 4, v5')
    a('s_mul_i32 s60, s44, 7200')
    a('s_mul_i32 s58, s43, 3616')
    a('s_add_u32 s60, s60, s58')
    a('s_and_b32 s58, s36, 3')
    a('s_mul_i32 s61, s58, 27648')
    a('s_lshl_b32 s58, s43, 1'); a('s_lshl_b32 s59, s44, 3'); a('s_add_u32 s58, s58, s59')
    a('s_lshl_b32 s62, s58, 10'); a(f's_add_u32 s62, s62, {XBASE}')
    a('s_lshl_b32 s59, s39, 4'); a('s_add_u32 s58, s58, s59')
    a('s_mul_i32 s63, s58, 9216')
    a('s_and_b32 s58, s38, 7'); a('s_lshr_b32 s59, s38, 3'); a('s_lshl_b32 s59, s59, 1'); a('s_add_u32 s58, s58, s59')
    a('s_sub_u32 s59, s58, 9'); a('s_cmp_ge_u32 s58, 9'); a('s_cselect_b32 s66, s59, s58')
    if 'norot' in X: a('s_mov_b32 s66, 0')
    if 'h1' in X or 'h2' in X: a('s_min_u32 s66, s66, 7' if 'h1' in X else 's_min_u32 s66, s66, 6')
    if 'rot3' in X:
        a('s_mul_i32 s58, s66, 43'); a('s_lshr_b32 s58, s58, 7'); a('s_mul_i32 s66, s58, 3')
    if 'rot2' in X:
        a('s_and_b32 s66, s66, 1'); a('s_lshl_b32 s66, s66, 2')
    a.waitcnt(lg=0)
    a('s_mov_b32 s16, s4'); a('s_mov_b32 s17, s5'); a(f's_mov_b32 s18, {2048*1152}'); a('s_mov_b32 s19, 0x00020000')
    a('s_cmp_eq_u32 s41, 0')
    a('s_cselect_b32 s20, s6, s8'); a('s_cselect_b32 s21, s7, s9')
    a(f's_mov_b32 s22, {576*3456}'); a('s_mov_b32 s23, 0x00020000')
    a('s_mov_b32 s28, s10'); a('s_mov_b32 s29, s11'); a('s_mov_b32 s30, 1152'); a('s_mov_b32 s31, 0x00020000')

    def kblock(A):
        H = [int(x[1:]) for x in X if x[0] == 'h' and x[1:].isdigit()]
        if H:
            h = H[0]
            if A < h:
                a(f's_mov_b32 s67, {A}')
            else:
                n = 9 - h
                a(f's_add_u32 s67, s66, {A - h}')
                for _ in range(2 if n < 8 else 1):
                    a(f's_sub_u32 s58, s67, {n}'); a(f's_cmp_ge_u32 s67, {n}'); a('s_cselect_b32 s67, s58, s67')
                a(f's_add_u32 s67, s67, {h}')
            return
        a(f's_add_u32 s67, s66, {A}'); a('s_sub_u32 s58, s67, 9'); a('s_cmp_ge_u32 s67, 9'); a('s_cselect_b32 s67, s58, s67')

    def xhalf(A, h):
        if h == 0:
            kblock(A)
            a('s_lshl_b32 s69, s67, 7'); a('s_add_u32 s69, s69, s63')
        for n in (2 * h, 2 * h + 1):
            rg = (n & 1) + 4 * (n >> 1)
            a(f's_add_u32 m0, s62, {(A % NX) * XSLOT + rg * 1024}')
            a(f's_add_u32 s65, s69, {rg * 9216}')
            if 'noload' not in X and 'nox' not in X: a('buffer_load_dwordx4 v4, s[16:19], s65 offen lds', tag=('x', A))

    def xchunk(A):
        xhalf(A, 0); xhalf(A, 1)

    def wchunk(c):
        if c % 2 == 0:
            kblock(c // 2)
            a(f's_mul_i32 s68, s67, {64 * 3456}'); a('s_add_u32 s68, s68, s61')
        a('s_mov_b64 exec, s[34:35]')
        for n in range(4):
            a(f's_add_u32 m0, s60, {(c % NS) * SLOT + n * 896}')
            a(f's_add_u32 s64, s68, {((c % 2) * 32 + 2 * n) * 3456}')
            if 'noload' not in X and 'now' not in X: a('buffer_load_dwordx4 v3, s[20:23], s64 offen lds', tag=('w', c))
        a('s_mov_b64 exec, -1')

    PF2 = 'pf2' in X
    if PF2:
        a('v_lshrrev_b32 v20, 3, v2'); a('s_and_b32 s58, s37, 1'); a('s_lshl_b32 s58, s58, 5'); a('s_add_u32 s58, s58, s38')
        a('s_lshl_b32 s58, s58, 2'); a('s_and_b32 s59, s36, 3'); a('s_add_u32 s58, s58, s59'); a('s_lshl_b32 s58, s58, 3')
        a('v_add_u32 v20, s58, v20'); a('v_mul_u32_u24 v20, 1152, v20'); a('v_and_b32 v21, 7, v2'); a('v_lshl_add_u32 v20, v21, 4, v20')
        a('s_lshl_b32 s59, s59, 10'); a('v_lshlrev_b32 v21, 4, v2'); a('v_add_u32 v21, s59, v21')
        a('v_mov_b32 v22, 0'); a('v_mov_b32 v23, 1664'); a('v_cmp_le_u32 vcc, 0x700, v21'); a('v_cndmask_b32 v22, v22, v23, vcc')
        a('v_min_u32 v21, 3568, v21'); a('v_add_u32 v21, v21, v22')
        a('s_bfe_u32 s58, s37, 0x10001'); a('s_mul_i32 s58, s58, 1664'); a('s_mul_i32 s59, s38, 6912'); a('s_add_u32 s58, s58, s59')
        a('v_add_u32 v21, s58, v21')

    def pfx(b):
        if PF2 and b < 9:
            a(f's_mov_b32 s58, {b * 128}'); a('buffer_load_dwordx4 v[24:27], v20, s[16:19], s58 offen', tag='pf')

    def pfw(b):
        if PF2 and b < 9:
            a(f's_mov_b32 s58, {b * 64 * 3456}'); a('buffer_load_dwordx4 v[28:31], v21, s[20:23], s58 offen', tag='pf')
    xchunk(0); wchunk(0)
    a('v_lshlrev_b32 v19, 1, v2')
    for g in range(9):
        kblock(g); a('s_lshl_b32 s58, s67, 7')
        a(f'buffer_load_ushort v{41+g}, v19, s[28:31], s58 offen', tag=('w', 0))
    wchunk(1)
    for b in (1, 2, 3):
        pfx(b); pfw(b)
    a('v_bfe_u32 v6, v2, 4, 1')
    a('v_mul_u32_u24 v18, 7200, v6')
    a('v_and_b32 v6, 15, v2')
    a('v_mul_u32_u24 v6, 448, v6')
    a('v_add_u32 v18, v18, v6')
    a('v_bfe_u32 v6, v2, 3, 1')
    a('v_lshl_add_u32 v18, v6, 5, v18')
    a('v_lshrrev_b32 v6, 5, v2')
    a(f'v_mul_u32_u24 v6, {SLOT}, v6')
    a('v_add_u32 v18, v18, v6')
    a('v_add_u32 v18, 432, v18')
    a(f'v_add_u32 v17, {4*SLOT}, v18')

    a('s_lshl_b32 s72, s40, 3'); a('s_or_b32 s72, s72, s36')

    def gate_write(g):
        sl = (2 * g) % NS
        a('s_cmp_lg_u32 s72, 4'); a(f's_cbranch_scc1 K1_NG{g}')
        if sl == 4:
            a(f'ds_write_b16 v17, v{41+g}')
        else:
            a(f'ds_write_b16 v18, v{41+g} offset:{sl * SLOT}')
        a.label(f'K1_NG{g}')
    if 'free' in X:
        win = [int(x[1:]) for x in X if x[0] == 'n' and x[1:].isdigit()][0]
        a.stamp(2)
        for s in range(4, 18):
            if s % 2 == 0:
                xchunk(s // 2)
            wchunk(s)
            a.waitcnt(vm=min(win, 63))
            if s in (8, 12): a.stamp({8: 3, 12: 4}[s])
        a.stamp(5); a.stamp(6); a.stamp(7)
        a('s_sub_u32 s36, s36, 4')
        a('s_branch K1_FIN')
    a.wait_vm_tag(('w', 0))
    for g in range(3):
        gate_write(g)
    a.waitcnt(lg=0)
    a('s_barrier')
    rest = FILL[NC:]
    pre_n = max(0, 3 - NC)
    for k, i in rest[:pre_n]:
        xchunk(i) if k == 'x' else wchunk(i)
    rest = rest[pre_n:]
    plan = {}
    for s in range(0, 18):
        p = []
        A, h = ((s + 7) // 2, 0) if s % 2 else ((s + 6) // 2, 1)
        if 4 <= A < 9: p.append(('x', A, h))
        if s + 6 < 18: p.append(('w', s + 6))
        if s < 2:
            q = []
            for k, i in (rest[:3] if s == 0 else rest[3:]):
                q += [('x', i, 0), ('x', i, 1)] if k == 'x' else [('w', i)]
            if s == 0 and rest:
                held = p; p = q
            else:
                p = q + (held if rest and s == 1 else []) + p
                p.sort(key=lambda z: z[1] if z[0] == 'w' else 2 * z[1] - 0.5)
        plan[s] = p
    L = 'lst' in X
    PFD = 4
    for s in range(18):
        if L and s in (7, 8): a.stamp(2 + 3 * (s - 7))
        a.wait_vm_tag(('w', s + 1))
        a.wait_vm_tag(('x', (s + 1) // 2))
        a.waitcnt(lg=0)
        if L and s in (7, 8): a.stamp(3 + 3 * (s - 7))
        a('s_barrier')
        if L and s in (7, 8): a.stamp(4 + 3 * (s - 7))
        for p in plan[s]:
            if p[0] == 'x': xhalf(p[1], p[2])
            else: wchunk(p[1])
        if s + 6 < 18 and (s + 6) % 2 == 1:
            gate_write((s + 6) // 2)
        if s % 2 == 0: pfx(s // 2 + PFD); pfw(s // 2 + PFD)
    a('s_barrier')
    a('s_branch K2_ENTRY')

    a.restore(st_entry)
    a.label('K1_HELPER')
    a.waitcnt(lg=0)
    a('s_mov_b32 s20, s82'); a('s_mov_b32 s21, s83'); a('s_mov_b32 s22, 256'); a('s_mov_b32 s23, 0x00020000')
    a('s_cmp_lg_u32 s36, 8'); a('s_cbranch_scc1 K1_HT0')
    a('s_memrealtime s[78:79]'); a.waitcnt(lg=0)
    a('s_or_b32 s79, s79, 0x80000000')
    a('v_mov_b32 v4, s78'); a('v_mov_b32 v5, s79'); a('v_mov_b32 v6, 0'); a('v_mov_b32 v7, 0'); a('v_mov_b32 v8, 0')
    a('s_mov_b64 exec, 1')
    a('buffer_atomic_cmpswap_x2 v[4:7], v8, s[20:23], 0 offen sc0', tag='untracked')
    a('s_mov_b64 exec, -1')
    a.label('K1_HT0')
    a(f'v_mov_b32 v9, {TOK_L}')
    for b in range(11):
        a('s_barrier')
    a.waitcnt(vm=0)
    a('s_cmp_lg_u32 s36, 8'); a('s_cbranch_scc1 K1_HT1')
    a('v_readfirstlane_b32 s76, v4'); a('v_readfirstlane_b32 s77, v5')
    a('s_cmp_eq_u64 s[76:77], 0'); a('s_cselect_b64 s[78:79], s[78:79], s[76:77]')
    a('v_mov_b32 v4, s78'); a('v_mov_b32 v5, s79')
    a('ds_write_b64 v9, v[4:5]')
    a.waitcnt(lg=0)
    a.label('K1_HT1')
    a('s_barrier')
    a('ds_read_b64 v[4:5], v9')
    a('v_readfirstlane_b32 s78, v4'); a('v_readfirstlane_b32 s79, v5')
    a('s_barrier')
    wo_gather(a, 0); wo_gather(a, 1)
    for b in range(4):
        a('s_barrier')
    wo_store(a, 0); wo_store(a, 1)
    for b in range(2):
        a('s_barrier')
    a('s_lshl_b32 s58, s39, 4'); a('s_add_u32 s58, s58, s40'); a('s_lshl_b32 s58, s58, 7'); a(f's_add_u32 s58, s58, {WS_FL1}')
    a('v_mov_b32 v6, 0'); a('v_mov_b32 v7, 1'); a('v_mov_b32 v8, 8')
    a.waitcnt(vm=0)
    a('s_barrier')
    a('s_cmp_lg_u32 s36, 8'); a('s_cbranch_scc1 K2_ENTRY')
    if 'wb' in X:
        a.raw('  buffer_wbl2 sc1'); a.raw('  s_waitcnt vmcnt(0)')
    a('s_mov_b64 exec, 1')
    a('buffer_store_dwordx2 v[4:5], v6, s[24:27], s58 offen sc1')
    a('buffer_atomic_add v7, v8, s[20:23], 0 offen')
    a('s_mov_b64 exec, -1')
    a('s_branch K2_ENTRY')

    a.restore(st_entry)
    a.label('K1_COMPUTE')
    a('s_setprio 3')
    a('s_cmp_eq_u32 s42, 5')
    a('s_cselect_b32 s45, 2, 0')
    a('s_cselect_b32 s46, 0, 4')
    a('s_add_u32 s47, s45, 3')
    a('s_add_u32 s48, s45, 1')
    a('s_cmp_eq_u32 s44, 0')
    a('s_cselect_b32 s47, s45, s47')
    a('s_cselect_b32 s48, s48, s46')
    a('s_cselect_b32 s49, s45, s46')
    a('s_cselect_b32 s50, 4, 2')
    a('s_mul_i32 s51, s42, 6')
    a('s_mul_i32 s52, s41, 3')
    a('s_add_u32 s53, s51, s47')
    a('s_add_u32 s54, s51, s48')
    a('s_add_u32 s55, s51, s49')
    a('s_lshr_b32 s56, s53, 4')
    a('s_add_u32 s56, s56, s52')
    a('s_lshr_b32 s57, s54, 4')
    a('s_add_u32 s57, s57, s52')
    a('s_and_b32 s53, s53, 15')
    a('s_and_b32 s54, s54, 15')
    a('s_and_b32 s55, s55, 15')
    a('v_lshrrev_b32 v25, 5, v2')
    a('v_mul_u32_u24 v24, 7200, v25')
    a('v_bfe_u32 v25, v2, 4, 1')
    a('v_mul_u32_u24 v25, 3616, v25')
    a('v_add_u32 v24, v24, v25')
    a('v_bfe_u32 v25, v2, 2, 2')
    a('v_mul_u32_u24 v25, 448, v25')
    a('v_add_u32 v24, v24, v25')
    a('v_and_b32 v25, 3, v2')
    a('v_lshl_add_u32 v26, v25, 3, v24')
    a('s_mul_i32 s58, s47, 72')
    a('v_add_u32 v3, s58, v26')
    a('s_mul_i32 s58, s48, 72')
    a('v_add_u32 v5, s58, v26')
    a('v_add_u32 v27, s49, v25')
    a('v_mul_u32_u24 v27, 72, v27')
    a('v_add_u32 v27, 32, v27')
    a('v_lshlrev_b32 v28, 3, v25')
    a('v_add_u32 v28, 416, v28')
    a('v_cmp_gt_u32 vcc, s50, v25')
    a('v_cndmask_b32 v27, v28, v27, vcc')
    a('v_add_u32 v4, v24, v27')
    a('v_and_b32 v25, 15, v2')
    a('v_lshrrev_b32 v26, 2, v25')
    a('v_and_b32 v27, 3, v25')
    a('v_lshl_add_u32 v29, v26, 3, v27')
    a('s_lshl_b32 s58, s43, 6')
    a('v_add_u32 v28, s58, v29')
    a('v_lshlrev_b32 v28, 7, v28')
    a('v_and_b32 v27, 2, v27')
    a('v_lshlrev_b32 v27, 1, v27')
    a('v_and_b32 v26, 2, v26')
    a('v_or_b32 v26, v26, v27')
    a('v_lshrrev_b32 v30, 4, v2')
    a('v_xor_b32 v27, v30, v26')
    a('v_lshl_add_u32 v9, v27, 4, v28')
    a(f'v_add_u32 v9, {XBASE}, v9')
    a('v_xor_b32 v10, 64, v9')
    a('v_mov_b32 v11, v9')
    a('s_mov_b32 s79, 0')
    for r in (3, 4, 5):
        a(f'v_add_u32 v{r+3}, {3*SLOT}, v{r}')
    a('s_lshr_b32 s58, 0x18, s56'); a('s_and_b32 s66, s58, 1')
    a('s_lshr_b32 s58, 0x18, s57'); a('s_and_b32 s67, s58, 1')
    a(f's_mul_i32 s68, s66, {EPS_BITS}')
    a(f's_mul_i32 s69, s67, {EPS_BITS}')
    for tile in range(7):
        for r in range(16):
            a(f'v_mov_b32 v{ACC + tile*16 + r}, s{68 if tile < 2 else 69}')
    a('s_lshr_b32 s58, 0x34, s56'); a('s_and_b32 s70, s58, 1')
    a('s_lshr_b32 s58, 0x34, s57'); a('s_and_b32 s71, s58, 1')
    a('s_lshl_b32 s58, s70, 1'); a('s_or_b32 s72, s58, s71')
    a.waitcnt(lg=0)
    a('s_mov_b32 s24, s12'); a('s_mov_b32 s25, s13'); a(f's_mov_b32 s26, {WS_END}'); a('s_mov_b32 s27, 0x00020000')
    a('s_lshl_b32 s77, s39, 7'); a('s_lshl_b32 s58, s43, 6'); a('s_add_u32 s77, s77, s58')
    a('s_mov_b32 s73, 3')
    if 'nob' in X:
        a('s_cmp_eq_u32 s41, 1'); a('s_cselect_b32 s26, 0, s26')
    a('s_cmp_eq_u32 s72, 1'); a('s_cbranch_scc1 K1_TN')
    a('s_cmp_eq_u32 s72, 2'); a('s_cbranch_scc1 K1_NT')
    a('s_cmp_eq_u32 s72, 3'); a('s_cbranch_scc1 K1_NN')
    state = a.snapshot()

    def tile_addr(tile, slot):
        base = {0: 3, 1: 3, 2: 4}.get(tile, 5)
        imm = {0: 0, 1: 40, 2: 0, 3: 0, 4: 40, 5: 72, 6: 112}[tile]
        if slot >= 3:
            base += 3
            slot -= 3
        return base, imm + slot * SLOT

    for (name, Na, Nb) in (('TT', 0, 0), ('TN', 0, 1), ('NT', 1, 0), ('NN', 1, 1)):
        a.restore(state)
        a.label(f'K1_{name}')
        epi_setup(a, name, Na, Nb)

        def wread(idx):
            s, t = (idx // 7) % NS, idx % 7
            b, imm = tile_addr(t, s)
            d = WF + (idx % NWF) * 4
            a(f'ds_read_b64_tr_b16 {vr(d, 2)}, v{b} offset:{imm}')
            a(f'ds_read_b64_tr_b16 {vr(d + 2, 2)}, v{b} offset:{imm + 1792}')

        def xread(s, rt):
            d = XF + (s % 2) * 16 + rt * 4
            off = (rt // 2) * 4096 + (rt % 2) * 512
            a(f'ds_read_b128 {vr(d)}, v{9 if s % 2 == 0 else 10} offset:{off}')

        a('s_barrier')
        a.stamp(2)

        def body():
            for s in range(NS):
                for t in range(7):
                    idx = s * 7 + t
                    wf = WF + (idx % NWF) * 4
                    N = Na if t < 2 else Nb
                    for rt in range(4):
                        xf = XF + (s % 2) * 16 + rt * 4
                        d = acc(rt, t)
                        if N:
                            a(f'v_mfma_f32_16x16x32_bf16 {vr(d)}, {vr(xf)}, {vr(wf)}, {vr(d)}')
                        else:
                            a(f'v_mfma_f32_16x16x32_bf16 {vr(d)}, {vr(wf)}, {vr(xf)}, {vr(d)}')
                        if t == 5:
                            xread(s + 1, rt)
                        if rt == 1 and t == 6 and s % 2 == 0:
                            a(f's_add_u32 s79, s79, {XSLOT}'); a(f's_and_b32 s79, s79, {NX * XSLOT - 1}')
                            a('v_add_u32 v9, s79, v11'); a('v_xor_b32 v10, 64, v9')
                    if t == 4:
                        a.waitcnt(lg=0)
                        a('s_barrier')
                    wread(idx + NWF)

        def tail():
            a('s_sub_u32 s73, s73, 1'); a('s_cmp_lg_u32 s73, 0'); a(f's_cbranch_scc1 K1_{name}_LOOP')
        wread(0)
        for rt in range(4):
            xread(0, rt)
        wread(1); wread(2)
        n0 = len(a.lines); st = a.snapshot(); body(); tail(); back = a.snapshot(); del a.lines[n0:]; a.restore(st)
        a.waitcnt(lg=len(back[5]))
        a.loop(f'K1_{name}_LOOP', body, tail)
        a.stamp(3)
        epi_lanes(a, name, Na, Nb)
        epilogue(a, name, Na, Nb, X)
        a('s_branch K1_FIN')
    a.label('K1_FIN')
    a.reset_state()
    a('s_setprio 0')
    a.waitcnt(vm=0)
    a('s_barrier')
    a.stamp(4)


def wo_gather(a, r):
    V = 64 + 16 * r
    sf = 70 + r
    a('s_lshl_b32 s53, s2, 2'); a('s_and_b32 s58, s36, 3'); a('s_add_u32 s53, s53, s58')
    if r: a('s_add_u32 s53, s53, 1024')
    a(f's_mul_hi_u32 s54, s53, {-(-(1 << 32) // 36)}')
    a('s_mul_i32 s55, s54, 36'); a('s_sub_u32 s55, s53, s55')
    a('s_cmp_ge_u32 s55, 18')
    a('s_cselect_b32 s28, s32, s14'); a('s_cselect_b32 s29, s33, s15')
    a('s_cselect_b32 s56, 18, 0'); a('s_sub_u32 s55, s55, s56')
    a(f's_mov_b32 s30, {576*1152}'); a('s_mov_b32 s31, 0x00020000')
    a('s_mul_i32 s56, s55, 36')
    a('s_mul_i32 s57, s55, 288'); a(f's_sub_u32 s57, s57, {288*16-16}')
    a('s_cmp_ge_u32 s55, 16')
    a('s_cselect_b32 s56, s57, s56')
    a('s_cselect_b32 s57, 144, 20')
    a('s_cselect_b32 s58, 72, 8')
    a('s_cselect_b32 s59, 36, 4')
    a('s_mul_i32 s59, s59, 1152')
    a('v_lshrrev_b32 v13, 5, v2')
    a('v_mul_lo_u32 v13, v13, s57')
    a('v_bfe_u32 v14, v2, 4, 1')
    a('v_mul_lo_u32 v14, v14, s58')
    a('v_add3_u32 v13, v13, v14, s56')
    a('v_mul_u32_u24 v13, 1152, v13')
    a('v_and_b32 v14, 15, v2')
    a('v_lshl_add_u32 v13, v14, 1, v13')
    a('s_lshl_b32 s56, s54, 5')
    a('s_cmp_lt_u32 s53, 1296')
    a('s_cselect_b32 s56, s56, 0x7FF00000')
    a('v_add_u32 v13, s56, v13')
    a(f's_lshl_b32 s{sf}, s53, 10'); a(f's_add_u32 s{sf}, s{sf}, {WS_WOT}')
    a('s_cmp_lt_u32 s53, 1296')
    a(f's_cselect_b32 s{sf}, s{sf}, 0x7FF00000')
    for j in range(8):
        so = '0' if j < 4 else 's59'
        a(f'buffer_load_ushort v{V+j}, v13, s[28:31], {so} offen offset:{(j % 4) * 1152}')


def wo_store(a, r):
    V = 64 + 16 * r
    if r == 0:
        a('s_mov_b32 s24, s12'); a('s_mov_b32 s25, s13'); a(f's_mov_b32 s26, {WS_END}'); a('s_mov_b32 s27, 0x00020000')
        a('v_lshlrev_b32 v15, 4, v2')
    for j in range(4):
        a(f'v_lshl_or_b32 v{V+8+j}, v{V+1+2*j}, 16, v{V+2*j}')
    a(f'buffer_store_dwordx4 v[{V+8}:{V+11}], v15, s[24:27], s{70+r} offen sc1')


def epi_setup(a, name, Na, Nb):
    def dest_scalars(stype, shp, N, sd, tail):
        if N:
            a(f's_sub_u32 s58, s{stype}, 3'); a(f's_cmp_eq_u32 s{stype}, 2'); a('s_cselect_b32 s58, 0, s58')
            a(f's_mul_i32 s58, s58, {NIMG * 32}')
            a(f's_mul_i32 s59, s{shp}, {NIMG * 2}')
            a(f's_add_u32 s{sd}, s58, s59'); a(f's_add_u32 s{sd}, s{sd}, {WS_VA}')
        else:
            a(f's_cmp_eq_u32 s{stype}, 3'); a(f's_cselect_b32 s58, 2, s{stype}')
            if tail:
                a('s_lshl_b32 s58, s58, 18'); a(f's_lshl_b32 s59, s{shp}, 14')
                a(f's_add_u32 s{sd}, s58, s59'); a(f's_add_u32 s{sd}, s{sd}, {WS_QAT}')
            else:
                a('s_lshl_b32 s58, s58, 21'); a(f's_lshl_b32 s59, s{shp}, 17')
                a(f's_add_u32 s{sd}, s58, s59')
                assert WS_QAM == 0
    dest_scalars(56, 53, Na, 80, False)
    dest_scalars(57, 54, Nb, 81, False)
    dest_scalars(57, 55, Nb, 82, True)
    for st, sd in ((56, 30), (57, 14)):
        a(f's_cmp_eq_u32 s{st}, 0'); a(f's_cselect_b32 s{sd}, {QSCALE_BITS}, 1.0'); a(f's_mov_b32 s{sd+1}, s{sd}')
    a(f's_mov_b32 s74, {LOG2E_BITS}'); a(f's_mov_b32 s75, {LOG2E_BITS}'); a(f's_mov_b32 s76, {EPS_BITS}')


def epi_lanes(a, name, Na, Nb):
    a.waitcnt(lg=0)
    a('v_and_b32 v19, 15, v2'); a('v_lshrrev_b32 v20, 2, v19'); a('v_and_b32 v19, 3, v19'); a('v_lshl_add_u32 v12, v20, 3, v19')
    a('v_lshrrev_b32 v13, 4, v2')
    a(f'v_mov_b32 v22, {NEG_EPS_LOG2E_BITS}'); a(f'v_mov_b32 v23, {NEG_EPS_LOG2E_BITS}')
    if (not Na) or (not Nb):
        a('v_and_b32 v19, 1, v13'); a('v_lshl_add_u32 v19, v19, 2, v12'); a('v_lshlrev_b32 v19, 4, v19')
        a('v_lshrrev_b32 v20, 1, v13'); a('v_lshl_add_u32 v14, v20, 9, v19')
        a('s_lshl_b32 s58, s77, 5'); a('v_add_u32 v14, s58, v14')
    if not Nb:
        a('v_add_u32 v19, s77, v12'); a('v_lshlrev_b32 v19, 3, v19'); a('v_lshl_add_u32 v15, v13, 14, v19')
        a('v_mov_b32 v20, 0x7FF00000'); a('v_cmp_gt_u32 vcc, s50, v13'); a('v_cndmask_b32 v15, v20, v15, vcc')
    if Na or Nb:
        a('s_lshr_b32 s58, s77, 3'); a('v_add_u32 v19, s58, v13'); a('v_mul_u32_u24 v19, 18, v19')
        a('v_and_b32 v20, 15, v2'); a('v_add_u32 v16, v19, v20'); a('v_lshlrev_b32 v16, 4, v16')
    if Nb:
        a('v_and_b32 v21, 1, v20'); a('v_add3_u32 v21, v19, v21, 16'); a('v_lshlrev_b32 v21, 4, v21')
        a('v_lshrrev_b32 v1, 1, v20'); a(f's_mov_b32 s58, {NIMG}'); a('v_mul_lo_u32 v1, v1, s58'); a('v_add_u32 v17, v21, v1')
        a('v_mov_b32 v21, 0x7FF00000'); a('v_lshrrev_b32 v1, 2, v20'); a('v_cmp_gt_u32 vcc, s50, v1')
        a('v_cndmask_b32 v17, v21, v17, vcc')
    if name == 'TT':
        a('v_add_u32 v19, s77, v12'); a('v_lshlrev_b32 v19, 2, v19')
        a('v_mov_b32 v20, 0x7FF00000'); a('v_cmp_eq_u32 vcc, 2, v13'); a('v_cndmask_b32 v18, v20, v19, vcc')
        a('s_lshl_b32 s58, s40, 1'); a('s_or_b32 s58, s58, s44')
        a('s_cmp_eq_u32 s58, 1'); a(f's_cselect_b32 s83, {WS_G}, 0x7FF00000' if False else f's_mov_b32 s83, {WS_G}')
        a('s_cselect_b32 s83, s83, 0x7FF00000')


def epilogue(a, name, Na, Nb, X=()):
    ST = '' if 'wb' in X else ' sc1'
    cnt = [0]

    def store_tile(tile):
        N = Na if tile < 2 else Nb
        sd = 80 if tile < 2 else (82 if tile == 2 else 81)
        hl = {0: 0, 1: 1, 2: 0, 3: 0, 4: 1, 5: 2, 6: 3}[tile]
        for G in range(2):
            X, Y = acc(2 * G, tile), acc(2 * G + 1, tile)
            t = 40 + (cnt[0] % 4) * 4
            cnt[0] += 1
            a(f'v_cvt_pk_bf16_f32 v{t}, v{X}, v{X+1}'); a(f'v_cvt_pk_bf16_f32 v{t+1}, v{X+2}, v{X+3}')
            a(f'v_cvt_pk_bf16_f32 v{t+2}, v{Y}, v{Y+1}'); a(f'v_cvt_pk_bf16_f32 v{t+3}, v{Y+2}, v{Y+3}')
            if N:
                voff = 17 if tile == 2 else 16
                a(f's_add_u32 s58, s{sd}, {hl * NIMG + G * 4 * 288}')
                a(f'buffer_store_dwordx4 {vr(t)}, v{voff}, s[24:27], s58 offen{ST}')
            elif tile == 2:
                a(f'buffer_store_dwordx2 {vr(t, 2)}, v15, s[24:27], s{sd} offen offset:{G * 256}{ST}')
                a(f'buffer_store_dwordx2 {vr(t + 2, 2)}, v15, s[24:27], s{sd} offen offset:{G * 256 + 32}{ST}')
            else:
                a(f's_add_u32 s58, s{sd}, {hl * 65536 + G * 1024}')
                a(f'v_permlane16_swap_b32 v{t}, v{t+2}')
                a(f'v_permlane16_swap_b32 v{t+1}, v{t+3}')
                a(f'buffer_store_dwordx4 {vr(t)}, v14, s[24:27], s58 offen{ST}')

    if name == 'TT':
        for rt in range(4):
            a(f'v_mul_f32 v{3+rt}, 0xBFB8AA3B, v{acc(rt, 2)}')
        for rt in range(4):
            a(f'v_exp_f32 v{3+rt}, v{3+rt}')
        for rt in range(4):
            a(f'v_add_f32 v{3+rt}, 1.0, v{3+rt}')
        for rt in range(4):
            a(f'v_rcp_f32 v{3+rt}, v{3+rt}')
        for rt in range(4):
            a(f'buffer_store_dword v{3+rt}, v18, s[24:27], s83 offen offset:{(rt // 2) * 128 + (rt % 2) * 16} sc1')
    for seg, tiles, sphi, ssc in (('a', (0, 1), 66, 30), ('b', (2, 3, 4, 5, 6), 67, 14)):
        N = Na if seg == 'a' else Nb
        lab = f'K1_{name}_{seg}'
        a(f's_cmp_eq_u32 s{sphi}, 0')
        a(f's_cbranch_scc1 {lab}_nophi')
        st = a.snapshot()
        c0 = cnt[0]
        for tile in tiles:
            T = 24
            rr = [ACC + tile * 16 + r for r in range(16)]
            for k in range(0, 16, 2):
                a(f'v_pk_fma_f32 v[{T+k}:{T+k+1}], v[{rr[k]}:{rr[k]+1}], s[74:75], v[22:23]')
            for k in range(16):
                a(f'v_exp_f32_e64 v{T+k}, v{T+k} clamp')
                a(f'v_max_f32 v{rr[k]}, s76, v{rr[k]}')
            for k in range(0, 16, 2):
                a(f'v_pk_add_f32 v[{rr[k]}:{rr[k]+1}], v[{rr[k]}:{rr[k]+1}], v[{T+k}:{T+k+1}]')
            store_tile(tile)
        a(f's_branch {lab}_done')
        st1 = a.snapshot()
        a.restore(st)
        cnt[0] = c0
        a.label(f'{lab}_nophi')
        for tile in tiles:
            if not N:
                for k in range(0, 16, 2):
                    r = ACC + tile * 16 + k
                    a(f'v_pk_mul_f32 v[{r}:{r+1}], v[{r}:{r+1}], s[{ssc}:{ssc+1}]')
            store_tile(tile)
        a.label(f'{lab}_done')
        a.nop(2)
```

```python
from asmlib import Asm
from layout import *

KM_L = 0
KT_L = 65536
V_L = 73728
KVP_L = V_L + NIMG
FLAG_L = KVP_L + 4 * 1520
LDS2 = FLAG_L + 64
XB = KVP_L - 8 * 3072
VROW = 288
BLOCK = 768

SA, SB = 32, 64
O0, O1 = 96, 112
KM = 128
VF = 136
KT = 152
QM = (154, 160)
QT = (158, 164)
IDX = 166
G = 167
NV2 = 168
P3_OG = (32, 80)
P3_XW = (56, 104)


def vr(b, n=4):
    return f'v[{b}:{b+n-1}]'


def gen(a, X=()):
    prof = a.prof
    a.label('K2_ENTRY')
    a.reset_state()
    a.nop(2)
    a('s_load_dwordx2 s[6:7], s[0:1], 72')
    a('s_load_dwordx2 s[4:5], s[0:1], 56')
    a('v_and_b32 v2, 63, v0')
    if 'qx' not in X:
        a('s_and_b32 s37, s2, 7'); a('s_lshl_b32 s37, s37, 2'); a('s_lshr_b32 s38, s2, 3'); a('s_and_b32 s39, s38, 3')
        a('s_add_u32 s37, s37, s39'); a('s_lshr_b32 s38, s38, 2')
    else:
        a('s_lshr_b32 s37, s2, 3')
        a('s_and_b32 s38, s2, 7')
    a('v_lshlrev_b32 v3, 4, v2')
    a('v_and_b32 v8, 31, v2')
    a('v_lshrrev_b32 v9, 5, v2')
    a('s_lshl_b32 s41, s37, 16')
    a('s_lshr_b32 s44, s37, 1'); a('s_lshl_b32 s44, s44, 14')
    a('s_and_b32 s45, s37, 1'); a('s_lshl_b32 s45, s45, 2'); a('s_add_u32 s44, s44, s45')
    a(f's_mul_i32 s48, s37, {NIMG}')
    a('s_and_b32 s39, s36, 3')
    a('s_lshl_b32 s42, s38, 3'); a('s_lshl_b32 s43, s39, 1'); a('s_add_u32 s42, s42, s43')
    a('s_lshl_b32 s43, s42, 10'); a('s_add_u32 s43, s43, s41')
    a('s_lshl_b32 s45, s42, 8'); a('s_add_u32 s45, s45, s44')
    a('v_lshlrev_b32 v10, 3, v8')
    a('v_min_u32 v14, 17, v8')
    a('v_mul_u32_u24 v16, 18, v9')
    a('v_add_u32 v17, v14, v16'); a('v_lshlrev_b32 v17, 4, v17')
    a('s_mov_b32 s34, 0x3FFFF'); a('s_mov_b32 s35, 0x3FFFF')
    a('s_cmp_ge_u32 s36, 8')
    a('s_cbranch_scc1 K2_HELPER')
    st_entry = a.snapshot()

    def srd():
        a.waitcnt(lg=0)
        a('s_mov_b32 s16, s6'); a('s_mov_b32 s17, s7'); a(f's_mov_b32 s18, {WS_END}'); a('s_mov_b32 s19, 0x00020000')

    def og_addr(tile_sgpr):
        a('v_lshrrev_b32 v20, 4, v8'); a('v_mul_u32_u24 v20, 36864, v20')
        a('v_and_b32 v21, 15, v8'); a('v_lshl_add_u32 v22, v21, 4, v20')
        a('v_lshl_add_u32 v21, v9, 8, v22')
        a(f's_mul_i32 s61, s{tile_sgpr}, 73728'); a(f's_add_u32 s61, s61, {WS_OG}')
        a('s_lshr_b32 s62, s37, 1'); a('s_lshl_b32 s62, s62, 10')
        a('s_and_b32 s63, s37, 1'); a('s_lshl_b32 s63, s63, 9'); a('s_add_u32 s62, s62, s63')
        a('s_add_u32 s62, s62, s61')
        a('s_lshr_b32 s64, s37, 4'); a('s_lshl_b32 s64, s64, 10')
        a('s_bfe_u32 s65, s37, 0x20002'); a('s_lshl_b32 s65, s65, 8'); a('s_add_u32 s64, s64, s65')
        a('s_and_b32 s65, s37, 3'); a('s_lshl_b32 s65, s65, 2'); a('s_add_u32 s64, s64, s65')
        a('s_add_u32 s64, s64, s61'); a('s_add_u32 s64, s64, 16384')

    def og_store(src, sc, T, smain, stail):
        for r in range(10):
            a(f'v_mul_f32 v{src+r}, v{src+r}, v{sc}')
        for k in range(4):
            a(f'v_cvt_pk_bf16_f32 v{T+k}, v{src+2*k}, v{src+2*k+1}')
        a(f'v_cvt_pk_bf16_f32 v{src+8}, v{src+8}, v{src+9}')
        a(f'v_permlane32_swap_b32 v{T}, v{T+2}')
        a(f'v_permlane32_swap_b32 v{T+1}, v{T+3}')
        a(f'buffer_store_dwordx4 {vr(T)}, v21, s[16:19], s{smain} offen' + (' sc1'))
        a('s_mov_b32 exec_hi, 0')
        a(f'buffer_store_dword v{src+8}, v22, s[16:19], s{stail} offen' + (' sc1'))
        a('s_mov_b32 exec_hi, -1')

    OGF, XW0 = P3_OG[0], P3_XW[0]

    def frag_src(f):
        half, r = divmod(f, 72); nt, k = divmod(r, 18)
        return (nt * 36 + (18 if half == 0 else 0) + k) * 1024

    def p3_setup():
        a('s_lshr_b32 s66, s36, 2'); a('s_mul_i32 s66, s66, 6144')
        a('s_and_b32 s52, s37, 7')
        a('s_lshr_b32 s53, s37, 3')
        a('s_mul_i32 s67, s52, 147456'); a(f's_add_u32 s67, s67, {WS_WOT}')
        a('s_and_b32 s54, s52, 3'); a('s_add_u32 s54, s54, 32')
        a('s_mul_i32 s68, s54, 36864'); a('s_add_u32 s68, s68, s66'); a(f's_add_u32 s68, s68, {WS_WOT}')
        a('s_lshl_b32 s71, s54, 5'); a('s_lshl_b32 s72, s52, 7')
        a('s_lshr_b32 s55, s39, 1'); a('s_lshr_b32 s56, s52, 2')
        a('s_cmp_eq_u32 s55, s56'); a('s_cselect_b32 s68, s68, 0x7FF00000'); a('s_cselect_b32 s71, s71, 0x7FF00000')
        a('s_lshl_b32 s70, s38, 2'); a('s_add_u32 s70, s70, s53')
        a('s_lshl_b32 s73, s70, 2'); a('s_add_u32 s73, s73, s39')
        a('s_mul_i32 s69, s73, 36864'); a('s_add_u32 s69, s69, s66'); a(f's_add_u32 s69, s69, {WS_OG}')
        a('s_lshl_b32 s74, s70, 12'); a(f's_add_u32 s74, s74, {WS_FLG + 2048 * 128}')
        a('s_lshl_b32 s70, s70, 13'); a(f's_add_u32 s70, s70, {WS_FLG}')

    def six(dst, sbase, add, fl, tag=None):
        a(f's_add_u32 s56, s{sbase}, {add}'); a(f's_add_u32 s57, s{sbase}, {add + 4096}')
        for k in range(6):
            a(f'buffer_load_dwordx4 {vr(dst + 4 * k)}, v3, s[16:19], s{56 if k < 4 else 57} offen offset:{(k % 4) * 1024}{fl}', tag=tag)

    a('s_lshr_b32 s40, s36, 2')
    a(f's_add_u32 s51, s45, {WS_QAT}')
    srd()
    a('s_add_u32 s46, s42, s40')
    a('s_lshl_b32 s75, s46, 7'); a(f's_add_u32 s75, s75, {WS_G}')
    a('v_lshlrev_b32 v4, 2, v2'); a(f'v_add_u32 v4, {KT_L}, v4')
    a(f'v_add_u32 v5, {V_L}, v17')
    a('s_lshl_b32 s52, s40, 15'); a('v_add_u32 v11, s52, v3')
    a('s_lshl_b32 s52, s40, 12'); a('v_add_u32 v12, s52, v4')
    a(f's_mul_i32 s52, s40, {128 * VROW}'); a('v_add_u32 v13, s52, v5')
    a(f'v_mov_b32 v{IDX}, 0xDDDD')
    a(f'v_mov_b32 v{KT+1}, 0x3F80')
    a(f'v_mov_b32 v{QT[0]+1}, 0'); a(f'v_mov_b32 v{QT[1]+1}, 0')
    a('v_mov_b32 v15, 0'); a('v_mov_b32 v14, 0x3F803F80')
    a('v_cmp_eq_u32 vcc, 18, v8'); a('v_cndmask_b32 v15, v15, v14, vcc')
    a('v_cmp_eq_u32 vcc, 28, v8'); a('v_cndmask_b32 v15, v15, v14, vcc')
    for r in range(16):
        a(f'v_mov_b32 v{VF+r}, v15')
    for r in range(32):
        a(f'v_mov_b32 v{O0+r}, 0')
    og_addr(46)
    p3_setup()
    a('s_mov_b32 s47, 0')
    a(f'v_mov_b32 v24, {FLAG_L}')

    def rd_kt(u): a(f'ds_read_b32 v{KT}, v12 offset:{u * 256}')
    def rd_km(u, i): a(f'ds_read_b128 {vr(KM + 4 * i)}, v11 offset:{(2 * u + i) * 1024}')

    def rd_v(u, i):
        a('s_mov_b64 exec, s[34:35]')
        a(f'ds_read_b128 {vr(VF + 4 * i)}, v13 offset:{(8 * u + 2 * i) * VROW}')
        a('s_mov_b64 exec, -1')

    def qk2b(S, t): a(f'v_mfma_f32_32x32x4_2b_bf16 {vr(S, 32)}, {vr(KT, 2)}, {vr(QT[t], 2)}, 0')
    def qk(S, i, t): a(f'v_mfma_f32_32x32x16_bf16 {vr(S + 16 * i, 16)}, {vr(KM + 4 * i)}, {vr(QM[t])}, {vr(S + 16 * i, 16)}')
    def pv(S, i, O): a(f'v_smfmac_f32_32x32x32_bf16 {vr(O, 16)}, {vr(VF + 4 * i)}, {vr(S + 8 * i, 8)}, v{IDX}')

    def rowmax(S, n, dst, tmp):
        a(f'v_max3_f32 v{dst}, v{S}, v{S+1}, v{S+2}')
        a(f'v_max3_f32 v{tmp}, v{S+3}, v{S+4}, v{S+5}')
        for k in range(6, n - 2, 4):
            a(f'v_max3_f32 v{dst}, v{S+k}, v{S+k+1}, v{dst}')
            a(f'v_max3_f32 v{tmp}, v{S+k+2}, v{S+k+3}, v{tmp}')
        a(f'v_max3_f32 v{dst}, v{S+n-2}, v{S+n-1}, v{dst}')
        a(f'v_max_f32 v{dst}, v{dst}, v{tmp}')
        a(f'v_mov_b32 v{tmp}, v{dst}')
        a(f'v_permlane32_swap_b32 v{dst}, v{tmp}')
        a(f'v_max_f32 v{dst}, v{dst}, v{tmp}')

    a('s_barrier')
    a.stamp(5)
    for t in range(2):
        a(f'buffer_load_dwordx4 {vr(QM[t])}, v3, s[16:19], s43 offen offset:{t * 1024}')
        a(f'buffer_load_dword v{QT[t]}, v10, s[16:19], s51 offen offset:{t * 256}')
    a.waitcnt(vm=0)
    a('s_barrier')
    a.stamp(6)
    a(f'ds_read_b32 v{KT}, v4'); a(f'ds_read_b128 {vr(KM)}, v3')
    for i in range(4):
        rd_v(0, i)
    qk2b(SA, 0); qk2b(SB, 1); qk(SA, 0, 0); qk(SB, 0, 1)
    rd_kt(0); rd_km(0, 0); rd_km(0, 1)
    for t, S in ((0, SA), (1, SB)):
        rowmax(S, 16, 18, 19)
        a('v_xor_b32 v18, 0x80000000, v18')
        a(f'v_lshrrev_b32 v{QT[t]+1}, 16, v18')
    qk2b(SA, 0); qk(SA, 0, 0); qk(SA, 1, 0)
    for r in range(24, 32):
        a(f'v_mov_b32 v{SB+r}, 0')
    a.waitcnt(lg=0)

    def phase(u, t):
        Sc, Sn = (SA, SB) if t == 0 else (SB, SA)
        Oc, Op = (O0, O1) if t == 0 else (O1, O0)
        e = [0]

        def ex(n):
            for r in range(e[0], e[0] + n):
                a(f'v_exp_f32 v{Sc+r}, v{Sc+r}')
            e[0] += n
        if 'noprio' not in X: a(f's_setprio {3 - (2 * u + t) % 4}')
        ex(2)
        pv(Sn, 3, Op)
        if t == 0: rd_v(u, 3)
        ex(4)
        qk2b(Sn, 1 - t)
        if t == 0: rd_kt(u + 1)
        ex(8)
        pv(Sc, 0, Oc)
        if t == 1: rd_v(u + 1, 0)
        ex(4)
        qk(Sn, 0, 1 - t)
        if t == 0: rd_km(u + 1, 0)
        ex(4)
        pv(Sc, 1, Oc)
        if t == 1: rd_v(u + 1, 1)
        ex(4)
        qk(Sn, 1, 1 - t)
        if t == 0: rd_km(u + 1, 1)
        ex(4)
        pv(Sc, 2, Oc)
        if t == 1: rd_v(u + 1, 2)
        ex(2)

    UN = 2

    def body():
        a('s_bitcmp1_b32 0xA, s47'); a('s_cbranch_scc0 K2_NOB1')
        a('s_barrier')
        a.label('K2_NOB1')
        if prof and 'it' in X:
            for k, st_ in ((1, 2), (2, 3), (5, 4)):
                a(f's_cmp_lg_u32 s47, {k}'); a(f's_cbranch_scc1 K2_NS{k}')
                a.raw(f'  s_memtime s[{84+2*st_}:{85+2*st_}]'); a.raw('  s_waitcnt lgkmcnt(0)')
                a.label(f'K2_NS{k}')
        for u in range(UN):
            phase(u, 0); phase(u, 1)

    def tail():
        a(f'v_add_u32 v11, {UN * 2048}, v11'); a(f'v_add_u32 v12, {UN * 256}, v12'); a(f'v_add_u32 v13, {UN * 8 * VROW}, v13')
        a('s_add_u32 s47, s47, 1'); a(f's_cmp_lg_u32 s47, {16 // UN}'); a('s_cbranch_scc1 K2_LOOP')
    n0 = len(a.lines); st = a.snapshot(); body(); tail(); back = a.snapshot(); del a.lines[n0:]; a.restore(st)
    a.lg = [set(x) for x in back[5]]
    a.raw('.p2align 6')
    a.loop('K2_LOOP', body, tail)
    a.stamp(7)
    a('s_setprio 3')
    pv(SB, 3, O1)
    a('v_lshlrev_b32 v12, 2, v8')
    a(f'buffer_load_dword v{G}, v12, s[16:19], s75 offen')

    a('v_cmp_eq_u32 vcc, 0, v9')
    a(f'v_cndmask_b32 v{O0+10}, v{O0+12}, v{O0+10}, vcc')
    a(f'v_cndmask_b32 v{O1+10}, v{O1+12}, v{O1+10}, vcc')
    a(f'v_max_f32 v19, v{O0+10}, v{O1+10}')
    a(f'v_fmac_f32 v19, 0, v{O0+10}'); a(f'v_fmac_f32 v19, 0, v{O1+10}')
    for r in range(10):
        a(f'v_fmac_f32 v19, 0, v{O0+r}'); a(f'v_fmac_f32 v19, 0, v{O1+r}')
    a('v_mov_b32 v20, 0x5F000000')
    a('v_cmp_nlt_f32 vcc, v19, v20')
    a('s_cmp_eq_u64 vcc, 0')
    a('s_cbranch_scc1 K2_OK')
    a('v_mov_b32 v19, 1')
    a('ds_write_b32 v24, v19')
    a.label('K2_OK')
    a.waitcnt(lg=0)
    a('s_barrier')
    a('ds_read_b32 v19, v24')
    a('s_mul_i32 s52, s36, 3072'); a(f's_add_u32 s52, s52, {XB}')
    a('s_xor_b32 s53, s36, 4'); a('s_mul_i32 s53, s53, 3072'); a(f's_add_u32 s53, s53, {XB}')
    a('v_add_u32 v25, s52, v3'); a('v_add_u32 v26, s53, v3')
    a('v_readfirstlane_b32 s52, v19')
    a('s_cmp_lg_u32 s52, 0')
    a('s_cbranch_scc1 K2_SLOW')
    a('s_cmp_eq_u32 s40, 0')
    a('s_cbranch_scc1 K2_X0')
    for r in range(11):
        a(f'v_swap_b32 v{O0+r}, v{O1+r}')
    a.label('K2_X0')
    a.nop(1)
    for k in range(3):
        a(f'ds_write_b128 v25, {vr(O1 + 4 * k)} offset:{k * 1024}')
    a.waitcnt(lg=0)
    a('s_barrier')
    for k in (2, 0, 1):
        a(f'ds_read_b128 {vr(O1 + 4 * k)}, v26 offset:{k * 1024}')
    for r in (10, 8, 0, 2, 4, 6):
        a(f'v_pk_add_f32 v[{O0+r}:{O0+r+1}], v[{O0+r}:{O0+r+1}], v[{O1+r}:{O1+r+1}]')
    a.label('K2_EPI')
    a.nop(2)
    a(f'v_rcp_f32 v18, v{O0+10}')
    a(f'v_mul_f32 v18, v18, v{G}')
    og_store(O0, 18, 28, 62, 64)
    a('s_setprio 0')
    six(OGF, 69, 18432, '')
    a('s_xor_b32 s45, s36, 4'); a('s_mul_i32 s45, s45, 3072')
    base = frag_src(120)
    assert all(frag_src(120 + i) == base + i * 1024 for i in range(6)) and all(frag_src(126 + i) == frag_src(126) + i * 1024 for i in range(18))
    a(f's_add_u32 s52, s45, {base}'); a(f's_add_u32 s55, s45, {frag_src(126) - 6 * 1024}')
    a('s_cmp_ge_u32 s45, 6144'); a('s_cselect_b32 s52, s55, s52'); a('s_add_u32 s52, s52, s67')
    a(f's_add_u32 m0, s45, {XB}')
    a('s_cmp_ge_u32 s68, 0x7FF00000'); a('s_cbranch_scc1 K2_NOXB')
    six(XW0, 68, 18432, '')
    a.label('K2_NOXB')
    a('s_barrier')
    for i in range(3):
        a(f'buffer_load_dwordx4 v3, s[16:19], s52 offen offset:{i * 1024} lds')
    st_p3c = a.snapshot()
    a('s_branch K2_P3')

    a.label('K2_SLOW')
    a.fence()
    a('s_cmp_eq_u32 s40, 0')
    a('s_cbranch_scc1 K2_S0')
    for r in range(5):
        a(f'v_mov_b32 v{QM[0]+r}, v{QM[1]+r}')
    a.label('K2_S0')
    a(f'v_mov_b32 v{QT[0]+1}, 0')
    a('v_mov_b32 v20, 0xFF800000')
    for r in range(16):
        a(f'v_mov_b32 v{O0+r}, 0')
    a('v_mov_b32 v11, v3'); a('v_mov_b32 v12, v4'); a('v_mov_b32 v13, v5')
    a('s_mov_b32 s47, 32')
    a.label('K2_SLOW_LOOP')
    a.fence()
    rd_kt(0); rd_km(0, 0); rd_km(0, 1)
    for i in range(4):
        rd_v(0, i)
    qk2b(SA, 0); qk(SA, 0, 0); qk(SA, 1, 0)
    rowmax(SA, 32, 18, 19)
    a('v_max_f32 v18, v18, v20')
    a('v_sub_f32 v19, v20, v18'); a('v_exp_f32 v19, v19')
    a('v_mov_b32 v20, v18')
    for r in range(32):
        a(f'v_sub_f32 v{SA+r}, v{SA+r}, v18')
    for r in range(32):
        a(f'v_exp_f32 v{SA+r}, v{SA+r}')
    for r in range(16):
        a(f'v_mul_f32 v{O0+r}, v{O0+r}, v19')
    for i in range(4):
        pv(SA, i, O0)
    a('v_add_u32 v11, 2048, v11'); a('v_add_u32 v12, 256, v12'); a(f'v_add_u32 v13, {8 * VROW}, v13')
    a('s_sub_u32 s47, s47, 1'); a('s_cmp_lg_u32 s47, 0'); a('s_cbranch_scc1 K2_SLOW_LOOP')
    a.fence()
    a('v_cmp_eq_u32 vcc, 0, v9')
    a(f'v_cndmask_b32 v{O0+10}, v{O0+12}, v{O0+10}, vcc')
    a.hazard_fence()
    a('s_barrier')
    a('s_branch K2_EPI')

    a.restore(st_entry)
    a.label('K2_HELPER')
    a('s_setprio 3')
    KVB, KVA = 32, 64
    QB = 96
    GB = 108
    a('v_lshlrev_b32 v7, 3, v2')
    a('s_lshl_b32 s40, s39, 10')
    a('s_add_u32 s46, s41, s40'); a(f's_add_u32 s46, s46, {WS_KAM}')
    a('s_lshl_b32 s47, s39, 9'); a('s_add_u32 s47, s47, s44'); a(f's_add_u32 s47, s47, {WS_KAT}')
    a('s_add_u32 s49, s48, s40'); a(f's_add_u32 s49, s49, {WS_VA}')
    a('s_lshl_b32 s50, s39, 8')
    srd()
    a('s_lshr_b32 s52, s37, 1')
    for i, add in enumerate((16, 32, 0)):
        a(f's_add_u32 s53, s52, {add}'); a('s_mul_i32 s53, s53, 43'); a(f's_lshr_b32 s{54+i}, s53, 8')
    a('v_and_b32 v25, 15, v2'); a('v_lshlrev_b32 v25, 4, v25')
    a('v_mov_b32 v26, s54'); a('v_mov_b32 v27, s55'); a('v_cmp_le_u32 vcc, 16, v2'); a('v_cndmask_b32 v26, v26, v27, vcc')
    a('v_add_u32 v25, v25, v26')
    a('v_and_b32 v26, 1, v2'); a('s_lshl_b32 s53, s38, 1'); a('v_add_u32 v26, s53, v26'); a('v_lshlrev_b32 v26, 4, v26')
    a('s_add_u32 s57, s56, 8'); a('s_add_u32 s58, s54, 8'); a('s_add_u32 s59, s55, 8')
    a('v_mov_b32 v27, s56')
    for lane, sg in ((34, 57), (36, 58), (38, 59)):
        a(f'v_mov_b32 v28, s{sg}'); a(f'v_cmp_le_u32 vcc, {lane}, v2'); a('v_cndmask_b32 v27, v27, v28, vcc')
    a('v_mov_b32 v28, 0'); a('v_cmp_le_u32 vcc, 40, v2'); a('v_cndmask_b32 v27, v27, v28, vcc')
    a('v_add_u32 v26, v26, v27')
    a('v_cmp_le_u32 vcc, 32, v2'); a('v_cndmask_b32 v25, v25, v26, vcc')
    a('v_lshlrev_b32 v6, 7, v25')
    a(f's_mov_b32 s75, {WS_FL1}')

    def poll(name, voff, soff, mask_hi=None, sleep=4):
        a('s_mov_b32 s60, 0')
        a.label(name)
        a(f'buffer_load_dwordx2 v[26:27], v{voff}, s[16:19], s{soff} offen sc1')
        a.waitcnt(vm=0)
        a('v_cmp_ne_u64 vcc, s[78:79], v[26:27]')
        if mask_hi is not None:
            a('s_mov_b32 s80, vcc_hi'); a(f's_and_b32 vcc_hi, vcc_hi, {mask_hi}')
        a('s_cmp_eq_u64 vcc, 0'); a(f's_cbranch_scc1 {name}_OK')
        a(f's_sleep {sleep}')
        a('s_add_u32 s60, s60, 1'); a('s_cmp_lt_u32 s60, 0x40000'); a(f's_cbranch_scc1 {name}')
        a.label(f'{name}_OK')
    poll('K2_PF1', 6, 75, 3, 1)
    a('s_barrier')

    def dma(kind, n, tag):
        if kind == 'KM':
            a(f's_add_u32 m0, s40, {KM_L + n * 4096}'); a(f's_add_u32 s52, s46, {n * 4096}')
            a('buffer_load_dwordx4 v3, s[16:19], s52 offen lds', tag=tag)
        elif kind == 'V':
            a(f's_add_u32 m0, s40, {V_L + n * 4096}'); a(f's_add_u32 s52, s49, {n * 4096}')
            a('buffer_load_dwordx4 v3, s[16:19], s52 offen lds', tag=tag)
        else:
            a(f's_add_u32 m0, s50, {KT_L + n * 1024}'); a(f's_add_u32 s52, s47, {n * 2048}')
            a('buffer_load_dword v7, s[16:19], s52 offen lds', tag=tag)
    for hb in range(2):
        dma('KM', 8 * hb, 'b0'); dma('KT', 4 * hb, 'b0'); dma('V', 9 * hb, 'b0')
    for hb in range(2):
        dma('KM', 8 * hb + 1, 'b0'); dma('V', 9 * hb + 1, 'b0')
    a('v_mov_b32 v15, 0'); a(f'v_mov_b32 v24, {FLAG_L}'); a('ds_write_b32 v24, v15')
    a('v_mov_b32 v14, 0x3F803F80')
    a('v_cmp_eq_u32 vcc, 18, v8'); a('v_cndmask_b32 v13, v15, v14, vcc')
    for st in range(4):
        for r in range(4):
            a(f'v_mov_b32 v{KVB+8*st+r}, 0')
            a(f'v_mov_b32 v{KVB+8*st+4+r}, v13')
    for r in range(16):
        a(f'v_mov_b32 v{KVA+r}, 0')
    a.wait_vm_tag('b0')
    a.waitcnt(lg=0)
    a('s_barrier')
    a(f's_mul_i32 s61, s42, {4 * VROW}'); a('s_add_u32 s61, s61, s48')
    a(f's_add_u32 s62, s61, {WS_KB}'); a(f's_add_u32 s63, s61, {WS_VB}')
    order = []
    for n in range(2, 9):
        for hb in range(2):
            if n < 8: order.append(('KM', 8 * hb + n))
            order.append(('V', 9 * hb + n))
            if n in (2, 4, 6): order.append(('KT', 4 * hb + n // 2))
    first = [x for x in order if {'KM': x[1] % 8 < 4, 'V': x[1] % 9 < 4, 'KT': x[1] % 4 < 2}[x[0]]]
    rest = [x for x in order if x not in first]
    a('s_cmp_eq_u32 s80, 0'); a('s_cbranch_scc1 K2_PF2_OK')
    poll('K2_PF2', 6, 75)
    for (k, n) in first:
        dma(k, n, 'b1')
    a('s_mov_b64 exec, s[34:35]')
    for st in range(4):
        a(f'buffer_load_dwordx4 {vr(KVB + 8 * st)}, v17, s[16:19], s62 offen offset:{st * 2 * VROW}')
        a(f'buffer_load_dwordx4 {vr(KVB + 8 * st + 4)}, v17, s[16:19], s63 offen offset:{st * 2 * VROW}')
    a('s_mov_b64 exec, -1')
    for (k, n) in rest[:6]:
        dma(k, n, 'b2')
    for st in range(4):
        a(f'v_mfma_f32_32x32x16_bf16 {vr(KVA, 16)}, {vr(KVB + 8 * st)}, {vr(KVB + 8 * st + 4)}, {vr(KVA, 16)}')
    a('v_mul_u32_u24 v18, 80, v8'); a('v_lshl_add_u32 v18, v9, 4, v18')
    a('s_mul_i32 s61, s39, 1520'); a(f's_add_u32 s61, s61, {KVP_L}'); a('v_add_u32 v18, s61, v18')
    a('s_mov_b32 exec_lo, 0x7FFFF'); a('s_mov_b32 exec_hi, 0x7FFFF')
    a(f'ds_write_b128 v18, {vr(KVA)}')
    a(f'ds_write_b128 v18, {vr(KVA + 4)} offset:32')
    a('s_mov_b32 exec_hi, 0')
    a(f'ds_write_b64 v18, {vr(KVA + 8, 2)} offset:64')
    a('s_mov_b64 exec, -1')
    a.wait_vm_tag('b1')
    a.waitcnt(lg=0)
    a('s_barrier')
    a('s_mul_i32 s57, s37, 12288'); a(f's_add_u32 s57, s57, {WS_KVS}')
    a('s_cmp_lg_u32 s39, 0')
    a('s_cbranch_scc1 K2_HPUB')
    st_skip = a.snapshot()
    a('v_min_u32 v19, 30, v2'); a('v_lshlrev_b32 v19, 4, v19'); a('v_add_u32 v19, 1024, v19')
    a(f'v_add_u32 v18, {KVP_L}, v3'); a(f'v_add_u32 v20, {KVP_L}, v19')
    for k in range(4):
        a(f'ds_read_b128 {vr(KVB + 8 * k)}, v18 offset:{k * 1520}')
        a(f'ds_read_b128 {vr(KVB + 8 * k + 4)}, v20 offset:{k * 1520}')
    for k in range(1, 4):
        for r in range(0, 8, 2):
            a(f'v_pk_add_f32 v[{KVB+r}:{KVB+r+1}], v[{KVB+r}:{KVB+r+1}], v[{KVB+8*k+r}:{KVB+8*k+r+1}]')
    a('s_mul_i32 s58, s38, 1536'); a('s_add_u32 s58, s58, s57')
    a(f'buffer_store_dwordx4 {vr(KVB)}, v3, s[16:19], s58 offen sc1')
    a(f'buffer_store_dwordx4 {vr(KVB + 4)}, v19, s[16:19], s58 offen sc1')
    a.waitcnt(vm=0)
    a('v_mov_b32 v18, s78'); a('v_mov_b32 v19, s79'); a('v_mov_b32 v20, 1520')
    a('s_mov_b64 exec, 1')
    a('buffer_store_dwordx2 v[18:19], v20, s[16:19], s58 offen sc1')
    a('s_mov_b64 exec, -1')
    a.restore(st_skip)
    a.label('K2_HPUB')
    a.nop(2)
    for (k, n) in rest[6:]:
        dma(k, n, 'b2')
    og_addr(42)
    for r in range(4):
        a(f'v_mov_b32 v{28+r}, -1')
    for t in range(2):
        a(f's_add_u32 s52, s62, {t * 73728}'); a(f's_add_u32 s53, s64, {t * 73728}')
        a('buffer_store_dwordx4 v[28:31], v21, s[16:19], s52 offen sc1')
        a('s_mov_b32 exec_hi, 0')
        a('buffer_store_dword v28, v22, s[16:19], s53 offen sc1')
        a('s_mov_b32 exec_hi, -1')
    a.waitcnt(vm=0)
    a('s_barrier')
    a('v_mov_b32 v11, 0x7FF00000'); a('v_cmp_eq_u32 vcc, 0, v9'); a('v_cndmask_b32 v11, v11, v10, vcc')
    a('v_lshlrev_b32 v12, 2, v8')
    a(f's_add_u32 s51, s43, {WS_QBM}'); a(f's_add_u32 s52, s45, {WS_QBT}')
    a('s_lshl_b32 s53, s42, 7'); a(f's_add_u32 s53, s53, {WS_G}')
    for t in range(2):
        a(f'buffer_load_dwordx4 {vr(QB + 6 * t)}, v3, s[16:19], s51 offen offset:{t * 1024}')
        a(f'buffer_load_dword v{QB + 6 * t + 4}, v11, s[16:19], s52 offen offset:{t * 256}')
        a(f'v_mov_b32 v{QB + 6 * t + 5}, 0')
        a(f'buffer_load_dword v{GB + t}, v12, s[16:19], s53 offen offset:{t * 128}')
    if True:
        a('s_mov_b32 s20, s82'); a('s_mov_b32 s21, s83'); a('s_mov_b32 s22, 256'); a('s_mov_b32 s23, 0x00020000')
        a('v_mov_b32 v25, 8'); a('s_mov_b32 s60, 0')
        a.label('K2_PW')
        a('buffer_load_dword v26, v25, s[20:23], 0 offen sc1')
        a.waitcnt(vm=0)
        a('v_readfirstlane_b32 s58, v26')
        a('s_cmp_ge_u32 s58, 256'); a('s_cbranch_scc1 K2_PW_OK')
        a('s_sleep 8')
        a('s_add_u32 s60, s60, 1'); a('s_cmp_lt_u32 s60, 0x40000'); a('s_cbranch_scc1 K2_PW')
        a.label('K2_PW_OK')
        a('s_lshr_b32 s53, s2, 3'); a('s_lshl_b32 s53, s53, 2'); a('s_add_u32 s53, s53, s39')
        a('s_mul_i32 s53, s53, 11264'); a(f's_add_u32 s53, s53, {WS_WOT}')
        for k in range(11):
            if k % 4 == 0 and k: a('s_add_u32 s53, s53, 4096')
            a(f'buffer_load_dwordx4 v[112:115], v3, s[16:19], s53 offen offset:{(k % 4) * 1024}', tag='untracked')
    a('v_min_u32 v18, 18, v8'); a('v_mul_u32_u24 v19, 80, v18'); a('v_lshl_add_u32 v18, v9, 5, v19')
    a('v_and_b32 v25, 7, v2'); a('v_mul_u32_u24 v25, 1536, v25'); a('v_add_u32 v25, 1520, v25')
    poll('K2_POLL', 25, 57)
    TS = [32, 40, 48, 56, 64, 72, 80, 88]
    a('v_min_u32 v20, 30, v2'); a('v_lshlrev_b32 v20, 4, v20'); a('v_add_u32 v20, 1024, v20')
    for q in range(8):
        d = TS[q]
        if q % 2 == 0: a(f's_add_u32 s58, s57, {q * 1536}')
        o = (q % 2) * 1536
        a(f'buffer_load_dwordx4 {vr(d)}, v3, s[16:19], s58 offen offset:{o}')
        a(f'buffer_load_dwordx4 {vr(d + 4)}, v20, s[16:19], s58 offen offset:{o}')
    a('s_mul_i32 s58, s39, 1520'); a(f's_add_u32 s58, s58, {KVP_L}')
    a('v_add_u32 v25, s58, v3'); a('v_add_u32 v20, s58, v20'); a('v_add_u32 v18, s58, v18'); a('v_add_u32 v19, s58, v19')
    for q in range(1, 8):
        for r in range(0, 8, 2):
            a(f'v_pk_add_f32 v[{32+r}:{33+r}], v[{32+r}:{33+r}], v[{TS[q]+r}:{TS[q]+r+1}]')
    a('ds_write_b128 v25, v[32:35]'); a('ds_write_b128 v20, v[36:39]')
    a.waitcnt(lg=0)
    a('ds_read_b128 v[32:35], v18'); a('ds_read_b128 v[36:39], v18 offset:16'); a('ds_read_b64 v[40:41], v19 offset:64')
    for k in range(5):
        a(f'v_cvt_pk_bf16_f32 v{44+k}, v{32+2*k}, v{33+2*k}')
    a('v_mov_b32 v49, 0')
    for t in range(2):
        D = 64 + 16 * t
        a(f'v_mfma_f32_32x32x16_bf16 {vr(D, 16)}, v[44:47], {vr(QB + 6 * t)}, 0')
        a(f'v_mfma_f32_32x32x8bf16_1k {vr(D, 16)}, v[48:49], {vr(QB + 6 * t + 4, 2)}, {vr(D, 16)}')
    a('s_add_u32 s62, s62, 18432'); a('s_add_u32 s64, s64, 18432')
    for t in range(2):
        D = 64 + 16 * t
        a('v_cmp_eq_u32 vcc, 0, v9')
        a(f'v_cndmask_b32 v19, v{D+12}, v{D+10}, vcc')
        a(f'v_add_f32 v19, {EPS_BITS}, v19')
        a('v_rcp_f32 v19, v19')
        a(f'v_sub_f32 v20, 1.0, v{GB+t}')
        a('v_mul_f32 v19, v19, v20')
        og_store(D, 19, 28 + 0 * t, 62, 64)
        if t == 0:
            a('s_add_u32 s62, s62, 73728'); a('s_add_u32 s64, s64, 73728')
    a('s_lshl_b32 s59, s38, 2'); a('s_add_u32 s59, s59, s39'); a('s_lshl_b32 s59, s59, 12'); a(f's_add_u32 s59, s59, {WS_FLG + 2048 * 128}')
    a('v_mov_b32 v4, s78'); a('v_mov_b32 v5, s79'); a('v_mov_b32 v6, s37'); a('v_lshlrev_b32 v6, 7, v6')
    a.waitcnt(vm=0)
    a('s_mov_b64 exec, 1')
    a('buffer_store_dwordx2 v[4:5], v6, s[16:19], s59 offen sc1')
    a('s_mov_b64 exec, -1')
    p3_setup()
    six(XW0, 68, 18432, '')
    STG = (80, 104, 128)
    a('s_mul_i32 s45, s39, 36864'); a('s_add_u32 s45, s45, s67')
    for i in range(3):
        six(STG[i], 45, 18432 + i * 6144, '')
    def a_src(j):
        srcs = [frag_src(72 + 12 * l + j) for l in range(4)]
        a('s_cmp_eq_u32 s39, 1'); a(f's_mov_b32 s52, {srcs[0]}'); a(f's_cselect_b32 s52, {srcs[1]}, s52')
        a('s_cmp_eq_u32 s39, 2'); a(f's_cselect_b32 s52, {srcs[2]}, s52')
        a('s_cmp_eq_u32 s39, 3'); a(f's_cselect_b32 s52, {srcs[3]}, s52'); a('s_add_u32 s52, s52, s67')
    STA = [152, 156, 160, 164, 8, 12, 16, 20, 24]
    for j in range(4):
        a_src(j)
        a(f'buffer_load_dwordx4 {vr(STA[j])}, v3, s[16:19], s52 offen')
    a('v_lshlrev_b32 v30, 7, v8')
    poll('K2_PB', 30, 74)
    six(OGF, 69, 18432, '')
    for k in range(12):
        if k % 4 == 0: a(f's_add_u32 s56, s69, {18432 - 12288 + k * 1024}')
        a(f'buffer_load_dwordx4 v[4:7], v3, s[16:19], s56 offen offset:{(k % 4) * 1024}', tag='untracked')
    for j in range(4, 9):
        a_src(j)
        a(f'buffer_load_dwordx4 {vr(STA[j])}, v3, s[16:19], s52 offen')
    a('s_mul_i32 s45, s39, 18432'); a('v_add_u32 v29, s45, v3')
    a('s_mul_i32 s45, s39, 12288'); a('s_add_u32 s45, s45, 73728'); a('v_add_u32 v28, s45, v3')
    a.waitcnt(vm=0)
    a('s_setprio 0')
    a('s_barrier')
    a('s_barrier')
    for i in range(18):
        a(f'ds_write_b128 v29, {vr(STG[i // 6] + 4 * (i % 6))} offset:{i * 1024}')
    a.waitcnt(lg=0)
    a('s_barrier')
    if 'hp2' in X: a('s_setprio 2')
    for j in range(9):
        a(f'ds_write_b128 v28, {vr(STA[j])} offset:{j * 1024}')
    for j in range(9, 12):
        a(f's_add_u32 m0, s45, {j * 1024}')
        a_src(j)
        a('buffer_load_dwordx4 v3, s[16:19], s52 offen lds')
    a.waitcnt(lg=0)
    a.restore(st_p3c)
    phase3(a, X, six)
    a.label('K2_END')
    a('s_endpgm')


def phase3(a, X, six):
    a.label('K2_P3')
    a.nop(2)
    a('s_cmp_ge_u32 s68, 0x7FF00000'); a('s_cbranch_scc1 K2_P3_4')
    st = a.snapshot()
    phase3v(a, X, six, 5)
    a('s_branch K2_FIN')
    a.restore(st)
    a.vm = [e for e in a.vm if not (e['d'] & {('v', r) for r in range(P3_XW[0], P3_XW[0] + 24)})]
    a.label('K2_P3_4')
    phase3v(a, X, six, 4)
    a.label('K2_FIN')
    if a.prof:
        if 'hst' in X:
            a('s_cmp_lt_u32 s36, 4'); a('s_cbranch_scc1 K2_END'); a('s_sub_u32 s36, s36, 4')
        else:
            a('s_cmp_ge_u32 s36, 8'); a('s_cbranch_scc1 K2_END')
        a.reset_state()
        a.stamp_flush(6, 0, 3, 36, 2, WS_PROF)


def phase3v(a, X, six, NT):
    WR, ACC = 128, 8
    OGF, XW = 32, 80
    a('v_add_u32 v6, s66, v3')
    a('v_add_u32 v7, 73728, v6')

    def wrd(hf, k):
        for nt in range(4):
            a(f'ds_read_b128 {vr(WR + (k % 2) * 16 + 4 * nt)}, v{6 + hf} offset:{nt * 18432 + k * 1024}')

    def half(hf, extra=None):
        for k in range(6):
            for nt in range(NT):
                d = ACC + 4 * nt
                A = P3_XW[hf] + 4 * k if nt == 4 else WR + (k % 2) * 16 + 4 * nt
                a(f'v_mfma_f32_16x16x32_bf16 {vr(d)}, {vr(A)}, {vr(P3_OG[hf] + 4 * k)}, {"0" if k == 0 and hf == 0 else vr(d)}')
            if k + 2 < 6:
                wrd(hf, k + 2)
            if extra: extra(k)
    wrd(0, 0); wrd(0, 1)
    a('s_add_u32 s56, s68, 4096'); a('s_add_u32 s57, s69, 4096')

    def a_loads(k):
        for j in (((0, 1, 2), (3, 4, 5), (6, 7, 8), (9, 10, 11), (), ()) if 'ea' in X else ((0, 1, 2), (3, 4, 5), (), (6, 7), (8, 9), (10, 11)))[k]:
            i = j % 6
            if j < 6 and NT == 4:
                continue
            if j < 6:
                a(f'buffer_load_dwordx4 {vr(P3_XW[1] + 4 * i)}, v3, s[16:19], s{68 if i < 4 else 56} offen offset:{(i % 4) * 1024}')
            else:
                a(f'buffer_load_dwordx4 {vr(P3_OG[1] + 4 * i)}, v3, s[16:19], s{69 if i < 4 else 57} offen offset:{(i % 4) * 1024}')
    half(0, a_loads)
    a('s_mov_b32 s20, s4'); a('s_mov_b32 s21, s5'); a(f's_mov_b32 s22, {2048*1152}'); a('s_mov_b32 s23, 0x00020000')
    a('v_and_b32 v5, 15, v2'); a('v_lshrrev_b32 v31, 4, v2')
    a('s_lshl_b32 s58, s73, 4'); a('v_add_u32 v5, s58, v5'); a('v_mul_u32_u24 v5, 1152, v5')
    a('v_lshl_add_u32 v28, v31, 3, v5')
    a('v_and_b32 v29, 1, v31'); a('v_lshl_add_u32 v5, v29, 5, v5')
    a('v_lshrrev_b32 v29, 1, v31'); a('v_lshl_add_u32 v29, v29, 4, v5')
    a('s_mov_b32 s60, 0')
    a.waitcnt(vm=0)
    a('s_barrier')
    wrd(1, 0); wrd(1, 1)
    a(f's_branch K2_P3CHK{NT}')
    a.label(f'K2_P3RETRY{NT}')
    six(P3_OG[1], 69, 0, ' sc1')
    a.waitcnt(vm=0)
    a.label(f'K2_P3CHK{NT}')
    R = P3_OG[1]
    a(f'v_max3_u32 v31, v{R}, v{R+1}, v{R+2}'); a(f'v_max3_u32 v5, v{R+3}, v{R+4}, v{R+5}')
    for k in range(6, 22, 4):
        a(f'v_max3_u32 v31, v{R+k}, v{R+k+1}, v31'); a(f'v_max3_u32 v5, v{R+k+2}, v{R+k+3}, v5')
    a(f'v_max3_u32 v31, v{R+22}, v{R+23}, v31'); a('v_max_u32 v31, v31, v5')
    a('v_cmp_eq_u32 vcc, -1, v31')
    a('s_add_u32 s60, s60, 1'); a('s_cmp_lt_u32 s60, 0x2000'); a('s_cselect_b64 s[76:77], -1, 0')
    a('s_and_b64 vcc, vcc, s[76:77]')
    a(f's_cbranch_scc1 K2_P3RETRY{NT}')
    a('s_mul_i32 s58, s36, 5120'); a('v_add_u32 v6, s58, v3')
    half(1)
    a('s_cmp_eq_u32 s66, 0'); a(f's_cbranch_scc1 K2_P3R{NT}')
    st = a.snapshot()
    for nt in range(NT):
        a(f'ds_write_b128 v6, {vr(ACC + 4 * nt)} offset:{nt * 1024}')
    a.waitcnt(lg=0)
    a('s_barrier')
    a('s_branch K2_FIN')
    a.restore(st)
    a.label(f'K2_P3R{NT}')
    a('s_barrier')
    for j in range(2):
        for nt in range(NT):
            a(f'ds_read_b128 {vr(OGF + (j * 5 + nt) * 4)}, v6 offset:{(j + 1) * 20480 + nt * 1024}')
    for nt in range(NT):
        d = ACC + 4 * nt
        for j in range(2):
            s_ = OGF + (j * 5 + nt) * 4
            a(f'v_pk_add_f32 v[{d}:{d+1}], v[{d}:{d+1}], v[{s_}:{s_+1}]')
            a(f'v_pk_add_f32 v[{d+2}:{d+3}], v[{d+2}:{d+3}], v[{s_+2}:{s_+3}]')
        t = XW + nt * 2
        a(f'v_cvt_pk_bf16_f32 v{t}, v{d}, v{d+1}'); a(f'v_cvt_pk_bf16_f32 v{t+1}, v{d+2}, v{d+3}')
        if nt % 2 == 1:
            t0 = t - 2
            a(f'v_permlane16_swap_b32 v{t0}, v{t0+2}'); a(f'v_permlane16_swap_b32 v{t0+1}, v{t0+3}')
            a(f'buffer_store_dwordx4 {vr(t0)}, v29, s[20:23], s72 offen offset:{(nt - 1) * 32}')
        elif nt == 4:
            a(f'buffer_store_dwordx2 {vr(t, 2)}, v28, s[20:23], s71 offen')


DESC = f"""
.amdhsa_kernel gated_mix__mha_block__linear_attn_block__prompt_kernel
  .amdhsa_next_free_vgpr {NV2}
  .amdhsa_next_free_sgpr 102
  .amdhsa_accum_offset {NV2}
  .amdhsa_group_segment_fixed_size 0
  .amdhsa_kernarg_size 80
  .amdhsa_user_sgpr_count 2
  .amdhsa_user_sgpr_kernarg_segment_ptr 1
  .amdhsa_system_sgpr_workgroup_id_x 1
.end_amdhsa_kernel
"""
```

```python
import sys, os
sys.path.insert(0, os.path.dirname(os.path.abspath(__file__)))
from asmlib import Asm
import f1, f2
NAME = 'gated_mix__mha_block__linear_attn_block__prompt'
ref = open(f'cdna_kernels/{NAME}.s.ref').read().splitlines()
head = [l for l in ref[:12] if l.startswith(';') and '@launch' not in l][:11]
def build(path, prof=False, X=()):
    out = '\n'.join(head) + '\n'
    out += f'; @launch grid=(256,1,1) block=({f2.BLOCK},1,1) lds={f2.LDS2}\n'
    out += '.amdgcn_target "amdgcn-amd-amdhsa--gfx950"\n.text\n'
    a = Asm(); a.prof = prof
    f1.gen(a, X); f2.gen(a, X)
    out += a.text()
    print('lines', len(a.lines), 'nops', a.n_nops)
    out += '.section .rodata,"a"\n.p2align 6' + f2.DESC
    open(path, 'w').write(out)
if __name__ == '__main__':
    assert f1.LDS1 <= f1.TOK_L and f1.TOK_L + 8 <= f2.LDS2 and f2.FLAG_L + 4 <= f1.TOK_L
    build(f'cdna_kernels/{NAME}.s')
    build('prof.s', True)
    for v in sys.argv[1:]:
        build(f'prof_{v}.s', True, tuple(v.split('+')))
        build(f't_{v}.s', False, tuple(v.split('+')))
```

```python
from asmlib import Asm
from layout import *

KM_L = 0
KT_L = 65536
V_L = 73728
KVP_L = V_L + NIMG
FLAG_L = KVP_L + 4 * 1520
LDS2 = FLAG_L + 64
XB = KVP_L - 8 * 3072
VROW = 288
BLOCK = 768

SA, SB = 32, 64
O0, O1 = 96, 112
KM = 128
VF = 136
KT = 152
QM = (154, 160)
QT = (158, 164)
IDX = 166
G = 167
NV2 = 168
P3_OG = (32, 80)
P3_XW = (56, 104)


def vr(b, n=4):
    return f'v[{b}:{b+n-1}]'


def gen(a, X=()):
    prof = a.prof
    a.label('K2_ENTRY')
    a.reset_state()
    a.nop(2)
    a('s_load_dwordx2 s[6:7], s[0:1], 72')
    a('s_load_dwordx2 s[4:5], s[0:1], 56')
    a('v_and_b32 v2, 63, v0')
    if 'qx' not in X:
        a('s_and_b32 s37, s2, 7'); a('s_lshl_b32 s37, s37, 2'); a('s_lshr_b32 s38, s2, 3'); a('s_and_b32 s39, s38, 3')
        a('s_add_u32 s37, s37, s39'); a('s_lshr_b32 s38, s38, 2')
    else:
        a('s_lshr_b32 s37, s2, 3')
        a('s_and_b32 s38, s2, 7')
    a('v_lshlrev_b32 v3, 4, v2')
    a('v_and_b32 v8, 31, v2')
    a('v_lshrrev_b32 v9, 5, v2')
    a('s_lshl_b32 s41, s37, 16')
    a('s_lshr_b32 s44, s37, 1'); a('s_lshl_b32 s44, s44, 14')
    a('s_and_b32 s45, s37, 1'); a('s_lshl_b32 s45, s45, 2'); a('s_add_u32 s44, s44, s45')
    a(f's_mul_i32 s48, s37, {NIMG}')
    a('s_and_b32 s39, s36, 3')
    a('s_lshl_b32 s42, s38, 3'); a('s_lshl_b32 s43, s39, 1'); a('s_add_u32 s42, s42, s43')
    a('s_lshl_b32 s43, s42, 10'); a('s_add_u32 s43, s43, s41')
    a('s_lshl_b32 s45, s42, 8'); a('s_add_u32 s45, s45, s44')
    a('v_lshlrev_b32 v10, 3, v8')
    a('v_min_u32 v14, 17, v8')
    a('v_mul_u32_u24 v16, 18, v9')
    a('v_add_u32 v17, v14, v16'); a('v_lshlrev_b32 v17, 4, v17')
    a('s_mov_b32 s34, 0x3FFFF'); a('s_mov_b32 s35, 0x3FFFF')
    a('s_cmp_ge_u32 s36, 8')
    a('s_cbranch_scc1 K2_HELPER')
    st_entry = a.snapshot()

    def srd():
        a.waitcnt(lg=0)
        a('s_mov_b32 s16, s6'); a('s_mov_b32 s17, s7'); a(f's_mov_b32 s18, {WS_END}'); a('s_mov_b32 s19, 0x00020000')

    def og_addr(tile_sgpr):
        a('v_lshrrev_b32 v20, 4, v8'); a('v_mul_u32_u24 v20, 36864, v20')
        a('v_and_b32 v21, 15, v8'); a('v_lshl_add_u32 v22, v21, 4, v20')
        a('v_lshl_add_u32 v21, v9, 8, v22')
        a(f's_mul_i32 s61, s{tile_sgpr}, 73728'); a(f's_add_u32 s61, s61, {WS_OG}')
        a('s_lshr_b32 s62, s37, 1'); a('s_lshl_b32 s62, s62, 10')
        a('s_and_b32 s63, s37, 1'); a('s_lshl_b32 s63, s63, 9'); a('s_add_u32 s62, s62, s63')
        a('s_add_u32 s62, s62, s61')
        a('s_lshr_b32 s64, s37, 4'); a('s_lshl_b32 s64, s64, 10')
        a('s_bfe_u32 s65, s37, 0x20002'); a('s_lshl_b32 s65, s65, 8'); a('s_add_u32 s64, s64, s65')
        a('s_and_b32 s65, s37, 3'); a('s_lshl_b32 s65, s65, 2'); a('s_add_u32 s64, s64, s65')
        a('s_add_u32 s64, s64, s61'); a('s_add_u32 s64, s64, 16384')

    def og_store(src, sc, T, smain, stail):
        for r in range(10):
            a(f'v_mul_f32 v{src+r}, v{src+r}, v{sc}')
        for k in range(4):
            a(f'v_cvt_pk_bf16_f32 v{T+k}, v{src+2*k}, v{src+2*k+1}')
        a(f'v_cvt_pk_bf16_f32 v{src+8}, v{src+8}, v{src+9}')
        a(f'v_permlane32_swap_b32 v{T}, v{T+2}')
        a(f'v_permlane32_swap_b32 v{T+1}, v{T+3}')
        a(f'buffer_store_dwordx4 {vr(T)}, v21, s[16:19], s{smain} offen' + (' sc1'))
        a('s_mov_b32 exec_hi, 0')
        a(f'buffer_store_dword v{src+8}, v22, s[16:19], s{stail} offen' + (' sc1'))
        a('s_mov_b32 exec_hi, -1')

    OGF, XW0 = P3_OG[0], P3_XW[0]

    def frag_src(f):
        half, r = divmod(f, 72); nt, k = divmod(r, 18)
        return (nt * 36 + (18 if half == 0 else 0) + k) * 1024

    def p3_setup():
        a('s_lshr_b32 s66, s36, 2'); a('s_mul_i32 s66, s66, 6144')
        a('s_and_b32 s52, s37, 7')
        a('s_lshr_b32 s53, s37, 3')
        a('s_mul_i32 s67, s52, 147456'); a(f's_add_u32 s67, s67, {WS_WOT}')
        a('s_and_b32 s54, s52, 3'); a('s_add_u32 s54, s54, 32')
        a('s_mul_i32 s68, s54, 36864'); a('s_add_u32 s68, s68, s66'); a(f's_add_u32 s68, s68, {WS_WOT}')
        a('s_lshl_b32 s71, s54, 5'); a('s_lshl_b32 s72, s52, 7')
        a('s_lshr_b32 s55, s39, 1'); a('s_lshr_b32 s56, s52, 2')
        a('s_cmp_eq_u32 s55, s56'); a('s_cselect_b32 s68, s68, 0x7FF00000'); a('s_cselect_b32 s71, s71, 0x7FF00000')
        a('s_lshl_b32 s70, s38, 2'); a('s_add_u32 s70, s70, s53')
        a('s_lshl_b32 s73, s70, 2'); a('s_add_u32 s73, s73, s39')
        a('s_mul_i32 s69, s73, 36864'); a('s_add_u32 s69, s69, s66'); a(f's_add_u32 s69, s69, {WS_OG}')
        a('s_lshl_b32 s74, s70, 12'); a(f's_add_u32 s74, s74, {WS_FLG + 2048 * 128}')
        a('s_lshl_b32 s70, s70, 13'); a(f's_add_u32 s70, s70, {WS_FLG}')

    def six(dst, sbase, add, fl, tag=None):
        a(f's_add_u32 s56, s{sbase}, {add}'); a(f's_add_u32 s57, s{sbase}, {add + 4096}')
        for k in range(6):
            a(f'buffer_load_dwordx4 {vr(dst + 4 * k)}, v3, s[16:19], s{56 if k < 4 else 57} offen offset:{(k % 4) * 1024}{fl}', tag=tag)

    a('s_lshr_b32 s40, s36, 2')
    a(f's_add_u32 s51, s45, {WS_QAT}')
    srd()
    a('s_add_u32 s46, s42, s40')
    a('s_lshl_b32 s75, s46, 7'); a(f's_add_u32 s75, s75, {WS_G}')
    a('v_lshlrev_b32 v4, 2, v2'); a(f'v_add_u32 v4, {KT_L}, v4')
    a(f'v_add_u32 v5, {V_L}, v17')
    a('s_lshl_b32 s52, s40, 15'); a('v_add_u32 v11, s52, v3')
    a('s_lshl_b32 s52, s40, 12'); a('v_add_u32 v12, s52, v4')
    a(f's_mul_i32 s52, s40, {128 * VROW}'); a('v_add_u32 v13, s52, v5')
    a(f'v_mov_b32 v{IDX}, 0xDDDD')
    a(f'v_mov_b32 v{KT+1}, 0x3F80')
    a(f'v_mov_b32 v{QT[0]+1}, 0'); a(f'v_mov_b32 v{QT[1]+1}, 0')
    a('v_mov_b32 v15, 0'); a('v_mov_b32 v14, 0x3F803F80')
    a('v_cmp_eq_u32 vcc, 18, v8'); a('v_cndmask_b32 v15, v15, v14, vcc')
    a('v_cmp_eq_u32 vcc, 28, v8'); a('v_cndmask_b32 v15, v15, v14, vcc')
    for r in range(16):
        a(f'v_mov_b32 v{VF+r}, v15')
    for r in range(32):
        a(f'v_mov_b32 v{O0+r}, 0')
    og_addr(46)
    p3_setup()
    a('s_mov_b32 s47, 0')
    a(f'v_mov_b32 v24, {FLAG_L}')

    def rd_kt(u): a(f'ds_read_b32 v{KT}, v12 offset:{u * 256}')
    def rd_km(u, i): a(f'ds_read_b128 {vr(KM + 4 * i)}, v11 offset:{(2 * u + i) * 1024}')

    def rd_v(u, i):
        a('s_mov_b64 exec, s[34:35]')
        a(f'ds_read_b128 {vr(VF + 4 * i)}, v13 offset:{(8 * u + 2 * i) * VROW}')
        a('s_mov_b64 exec, -1')

    def qk2b(S, t): a(f'v_mfma_f32_32x32x4_2b_bf16 {vr(S, 32)}, {vr(KT, 2)}, {vr(QT[t], 2)}, 0')
    def qk(S, i, t): a(f'v_mfma_f32_32x32x16_bf16 {vr(S + 16 * i, 16)}, {vr(KM + 4 * i)}, {vr(QM[t])}, {vr(S + 16 * i, 16)}')
    def pv(S, i, O): a(f'v_smfmac_f32_32x32x32_bf16 {vr(O, 16)}, {vr(VF + 4 * i)}, {vr(S + 8 * i, 8)}, v{IDX}')

    def rowmax(S, n, dst, tmp):
        a(f'v_max3_f32 v{dst}, v{S}, v{S+1}, v{S+2}')
        a(f'v_max3_f32 v{tmp}, v{S+3}, v{S+4}, v{S+5}')
        for k in range(6, n - 2, 4):
            a(f'v_max3_f32 v{dst}, v{S+k}, v{S+k+1}, v{dst}')
            a(f'v_max3_f32 v{tmp}, v{S+k+2}, v{S+k+3}, v{tmp}')
        a(f'v_max3_f32 v{dst}, v{S+n-2}, v{S+n-1}, v{dst}')
        a(f'v_max_f32 v{dst}, v{dst}, v{tmp}')
        a(f'v_mov_b32 v{tmp}, v{dst}')
        a(f'v_permlane32_swap_b32 v{dst}, v{tmp}')
        a(f'v_max_f32 v{dst}, v{dst}, v{tmp}')

    a('s_barrier')
    a.stamp(5)
    for t in range(2):
        a(f'buffer_load_dwordx4 {vr(QM[t])}, v3, s[16:19], s43 offen offset:{t * 1024}')
        a(f'buffer_load_dword v{QT[t]}, v10, s[16:19], s51 offen offset:{t * 256}')
    a.waitcnt(vm=0)
    a('s_barrier')
    a.stamp(6)
    a(f'ds_read_b32 v{KT}, v4'); a(f'ds_read_b128 {vr(KM)}, v3')
    for i in range(4):
        rd_v(0, i)
    qk2b(SA, 0); qk2b(SB, 1); qk(SA, 0, 0); qk(SB, 0, 1)
    rd_kt(0); rd_km(0, 0); rd_km(0, 1)
    for t, S in ((0, SA), (1, SB)):
        rowmax(S, 16, 18, 19)
        a('v_xor_b32 v18, 0x80000000, v18')
        a(f'v_lshrrev_b32 v{QT[t]+1}, 16, v18')
    qk2b(SA, 0); qk(SA, 0, 0); qk(SA, 1, 0)
    for r in range(24, 32):
        a(f'v_mov_b32 v{SB+r}, 0')
    a.waitcnt(lg=0)

    def phase(u, t):
        Sc, Sn = (SA, SB) if t == 0 else (SB, SA)
        Oc, Op = (O0, O1) if t == 0 else (O1, O0)
        e = [0]

        def ex(n):
            for r in range(e[0], e[0] + n):
                a(f'v_exp_f32 v{Sc+r}, v{Sc+r}')
            e[0] += n
        if 'noprio' not in X: a(f's_setprio {3 - (2 * u + t) % 4}')
        ex(2)
        pv(Sn, 3, Op)
        if t == 0: rd_v(u, 3)
        ex(4)
        qk2b(Sn, 1 - t)
        if t == 0: rd_kt(u + 1)
        ex(8)
        pv(Sc, 0, Oc)
        if t == 1: rd_v(u + 1, 0)
        ex(4)
        qk(Sn, 0, 1 - t)
        if t == 0: rd_km(u + 1, 0)
        ex(4)
        pv(Sc, 1, Oc)
        if t == 1: rd_v(u + 1, 1)
        ex(4)
        qk(Sn, 1, 1 - t)
        if t == 0: rd_km(u + 1, 1)
        ex(4)
        pv(Sc, 2, Oc)
        if t == 1: rd_v(u + 1, 2)
        ex(2)

    UN = 2

    def body():
        a('s_bitcmp1_b32 0xA, s47'); a('s_cbranch_scc0 K2_NOB1')
        a('s_barrier')
        a.label('K2_NOB1')
        if prof and 'it' in X:
            for k, st_ in ((1, 2), (2, 3), (5, 4)):
                a(f's_cmp_lg_u32 s47, {k}'); a(f's_cbranch_scc1 K2_NS{k}')
                a.raw(f'  s_memtime s[{84+2*st_}:{85+2*st_}]'); a.raw('  s_waitcnt lgkmcnt(0)')
                a.label(f'K2_NS{k}')
        for u in range(UN):
            phase(u, 0); phase(u, 1)

    def tail():
        a(f'v_add_u32 v11, {UN * 2048}, v11'); a(f'v_add_u32 v12, {UN * 256}, v12'); a(f'v_add_u32 v13, {UN * 8 * VROW}, v13')
        a('s_add_u32 s47, s47, 1'); a(f's_cmp_lg_u32 s47, {16 // UN}'); a('s_cbranch_scc1 K2_LOOP')
    n0 = len(a.lines); st = a.snapshot(); body(); tail(); back = a.snapshot(); del a.lines[n0:]; a.restore(st)
    a.lg = [set(x) for x in back[5]]
    a.raw('.p2align 6')
    a.loop('K2_LOOP', body, tail)
    a.stamp(7)
    a('s_setprio 3')
    pv(SB, 3, O1)
    a('v_lshlrev_b32 v12, 2, v8')
    a(f'buffer_load_dword v{G}, v12, s[16:19], s75 offen')

    a('v_cmp_eq_u32 vcc, 0, v9')
    a(f'v_cndmask_b32 v{O0+10}, v{O0+12}, v{O0+10}, vcc')
    a(f'v_cndmask_b32 v{O1+10}, v{O1+12}, v{O1+10}, vcc')
    a(f'v_max_f32 v19, v{O0+10}, v{O1+10}')
    a(f'v_fmac_f32 v19, 0, v{O0+10}'); a(f'v_fmac_f32 v19, 0, v{O1+10}')
    for r in range(10):
        a(f'v_fmac_f32 v19, 0, v{O0+r}'); a(f'v_fmac_f32 v19, 0, v{O1+r}')
    a('v_mov_b32 v20, 0x5F000000')
    a('v_cmp_nlt_f32 vcc, v19, v20')
    a('s_cmp_eq_u64 vcc, 0')
    a('s_cbranch_scc1 K2_OK')
    a('v_mov_b32 v19, 1')
    a('ds_write_b32 v24, v19')
    a.label('K2_OK')
    a.waitcnt(lg=0)
    a('s_barrier')
    if 'tl' in X: a.stamp(2)
    a('ds_read_b32 v19, v24')
    a('s_mul_i32 s52, s36, 3072'); a(f's_add_u32 s52, s52, {XB}')
    a('s_xor_b32 s53, s36, 4'); a('s_mul_i32 s53, s53, 3072'); a(f's_add_u32 s53, s53, {XB}')
    a('v_add_u32 v25, s52, v3'); a('v_add_u32 v26, s53, v3')
    a('v_readfirstlane_b32 s52, v19')
    a('s_cmp_lg_u32 s52, 0')
    a('s_cbranch_scc1 K2_SLOW')
    a('s_cmp_eq_u32 s40, 0')
    a('s_cbranch_scc1 K2_X0')
    for r in range(11):
        a(f'v_swap_b32 v{O0+r}, v{O1+r}')
    a.label('K2_X0')
    a.nop(1)
    for k in range(3):
        a(f'ds_write_b128 v25, {vr(O1 + 4 * k)} offset:{k * 1024}')
    a.waitcnt(lg=0)
    a('s_barrier')
    for k in (2, 0, 1):
        a(f'ds_read_b128 {vr(O1 + 4 * k)}, v26 offset:{k * 1024}')
    for r in (10, 8, 0, 2, 4, 6):
        a(f'v_pk_add_f32 v[{O0+r}:{O0+r+1}], v[{O0+r}:{O0+r+1}], v[{O1+r}:{O1+r+1}]')
    a.label('K2_EPI')
    a.nop(2)
    a(f'v_rcp_f32 v18, v{O0+10}')
    a(f'v_mul_f32 v18, v18, v{G}')
    og_store(O0, 18, 28, 62, 64)
    if 'tl' in X: a.stamp(3)
    a('s_setprio 0')
    six(OGF, 69, 18432, '')
    a('s_xor_b32 s45, s36, 4'); a('s_mul_i32 s45, s45, 3072')
    base = frag_src(120)
    assert all(frag_src(120 + i) == base + i * 1024 for i in range(6)) and all(frag_src(126 + i) == frag_src(126) + i * 1024 for i in range(18))
    a(f's_add_u32 s52, s45, {base}'); a(f's_add_u32 s55, s45, {frag_src(126) - 6 * 1024}')
    a('s_cmp_ge_u32 s45, 6144'); a('s_cselect_b32 s52, s55, s52'); a('s_add_u32 s52, s52, s67')
    a(f's_add_u32 m0, s45, {XB}')
    a('s_cmp_ge_u32 s68, 0x7FF00000'); a('s_cbranch_scc1 K2_NOXB')
    six(XW0, 68, 18432, '')
    a.label('K2_NOXB')
    a('s_barrier')
    if 'tl' in X: a.stamp(4)
    for i in range(3):
        a(f'buffer_load_dwordx4 v3, s[16:19], s52 offen offset:{i * 1024} lds')
    st_p3c = a.snapshot()
    a('s_branch K2_P3')

    a.label('K2_SLOW')
    a.fence()
    a('s_cmp_eq_u32 s40, 0')
    a('s_cbranch_scc1 K2_S0')
    for r in range(5):
        a(f'v_mov_b32 v{QM[0]+r}, v{QM[1]+r}')
    a.label('K2_S0')
    a(f'v_mov_b32 v{QT[0]+1}, 0')
    a('v_mov_b32 v20, 0xFF800000')
    for r in range(16):
        a(f'v_mov_b32 v{O0+r}, 0')
    a('v_mov_b32 v11, v3'); a('v_mov_b32 v12, v4'); a('v_mov_b32 v13, v5')
    a('s_mov_b32 s47, 32')
    a.label('K2_SLOW_LOOP')
    a.fence()
    rd_kt(0); rd_km(0, 0); rd_km(0, 1)
    for i in range(4):
        rd_v(0, i)
    qk2b(SA, 0); qk(SA, 0, 0); qk(SA, 1, 0)
    rowmax(SA, 32, 18, 19)
    a('v_max_f32 v18, v18, v20')
    a('v_sub_f32 v19, v20, v18'); a('v_exp_f32 v19, v19')
    a('v_mov_b32 v20, v18')
    for r in range(32):
        a(f'v_sub_f32 v{SA+r}, v{SA+r}, v18')
    for r in range(32):
        a(f'v_exp_f32 v{SA+r}, v{SA+r}')
    for r in range(16):
        a(f'v_mul_f32 v{O0+r}, v{O0+r}, v19')
    for i in range(4):
        pv(SA, i, O0)
    a('v_add_u32 v11, 2048, v11'); a('v_add_u32 v12, 256, v12'); a(f'v_add_u32 v13, {8 * VROW}, v13')
    a('s_sub_u32 s47, s47, 1'); a('s_cmp_lg_u32 s47, 0'); a('s_cbranch_scc1 K2_SLOW_LOOP')
    a.fence()
    a('v_cmp_eq_u32 vcc, 0, v9')
    a(f'v_cndmask_b32 v{O0+10}, v{O0+12}, v{O0+10}, vcc')
    a.hazard_fence()
    a('s_barrier')
    a('s_branch K2_EPI')

    a.restore(st_entry)
    a.label('K2_HELPER')
    a('s_setprio 3')
    KVB, KVA = 32, 64
    QB = 96
    GB = 108
    a('v_lshlrev_b32 v7, 3, v2')
    a('s_lshl_b32 s40, s39, 10')
    a('s_add_u32 s46, s41, s40'); a(f's_add_u32 s46, s46, {WS_KAM}')
    a('s_lshl_b32 s47, s39, 9'); a('s_add_u32 s47, s47, s44'); a(f's_add_u32 s47, s47, {WS_KAT}')
    a('s_add_u32 s49, s48, s40'); a(f's_add_u32 s49, s49, {WS_VA}')
    a('s_lshl_b32 s50, s39, 8')
    srd()
    a('s_lshr_b32 s52, s37, 1')
    for i, add in enumerate((16, 32, 0)):
        a(f's_add_u32 s53, s52, {add}'); a('s_mul_i32 s53, s53, 43'); a(f's_lshr_b32 s{54+i}, s53, 8')
    a('v_and_b32 v25, 15, v2'); a('v_lshlrev_b32 v25, 4, v25')
    a('v_mov_b32 v26, s54'); a('v_mov_b32 v27, s55'); a('v_cmp_le_u32 vcc, 16, v2'); a('v_cndmask_b32 v26, v26, v27, vcc')
    a('v_add_u32 v25, v25, v26')
    a('v_and_b32 v26, 1, v2'); a('s_lshl_b32 s53, s38, 1'); a('v_add_u32 v26, s53, v26'); a('v_lshlrev_b32 v26, 4, v26')
    a('s_add_u32 s57, s56, 8'); a('s_add_u32 s58, s54, 8'); a('s_add_u32 s59, s55, 8')
    a('v_mov_b32 v27, s56')
    for lane, sg in ((34, 57), (36, 58), (38, 59)):
        a(f'v_mov_b32 v28, s{sg}'); a(f'v_cmp_le_u32 vcc, {lane}, v2'); a('v_cndmask_b32 v27, v27, v28, vcc')
    a('v_mov_b32 v28, 0'); a('v_cmp_le_u32 vcc, 40, v2'); a('v_cndmask_b32 v27, v27, v28, vcc')
    a('v_add_u32 v26, v26, v27')
    a('v_cmp_le_u32 vcc, 32, v2'); a('v_cndmask_b32 v25, v25, v26, vcc')
    a('v_lshlrev_b32 v6, 7, v25')
    a(f's_mov_b32 s75, {WS_FL1}')

    def poll(name, voff, soff, mask=None, sleep=4):
        if mask:
            a(f's_and_b32 s76, s80, {mask[0]}'); a(f's_and_b32 s77, s81, {mask[1]}')
            a('s_cmp_eq_u64 s[76:77], 0'); a(f's_cbranch_scc1 {name}_OK')
        a('s_mov_b32 s60, 0')
        a.label(name)
        a(f'buffer_load_dwordx2 v[26:27], v{voff}, s[16:19], s{soff} offen sc1')
        a.waitcnt(vm=0)
        a('v_cmp_ne_u64 vcc, s[78:79], v[26:27]')
        if mask:
            a('s_mov_b64 s[80:81], vcc'); a(f's_and_b32 vcc_lo, vcc_lo, {mask[0]}'); a(f's_and_b32 vcc_hi, vcc_hi, {mask[1]}')
        a('s_cmp_eq_u64 vcc, 0'); a(f's_cbranch_scc1 {name}_OK')
        a(f's_sleep {sleep}')
        a('s_add_u32 s60, s60, 1'); a('s_cmp_lt_u32 s60, 0x40000'); a(f's_cbranch_scc1 {name}')
        a.label(f'{name}_OK')
    a('s_mov_b64 s[80:81], -1')
    a('s_cmp_lg_u32 s39, 0'); a('s_cbranch_scc1 K2_PF1_OK')
    poll('K2_PF1', 6, 75, (0x03030303, 3), 2)
    a('s_barrier')
    if 'hs' in X: a.stamp(2)

    def dma(kind, n, tag):
        if kind == 'KM':
            a(f's_add_u32 m0, s40, {KM_L + n * 4096}'); a(f's_add_u32 s52, s46, {n * 4096}')
            a('buffer_load_dwordx4 v3, s[16:19], s52 offen lds', tag=tag)
        elif kind == 'V':
            a(f's_add_u32 m0, s40, {V_L + n * 4096}'); a(f's_add_u32 s52, s49, {n * 4096}')
            a('buffer_load_dwordx4 v3, s[16:19], s52 offen lds', tag=tag)
        else:
            a(f's_add_u32 m0, s50, {KT_L + n * 1024}'); a(f's_add_u32 s52, s47, {n * 2048}')
            a('buffer_load_dword v7, s[16:19], s52 offen lds', tag=tag)
    for hb in range(2):
        dma('KM', 8 * hb, 'b0'); dma('KT', 4 * hb, 'b0'); dma('V', 9 * hb, 'b0')
    for hb in range(2):
        dma('KM', 8 * hb + 1, 'b0'); dma('V', 9 * hb + 1, 'b0')
    a('v_mov_b32 v15, 0'); a(f'v_mov_b32 v24, {FLAG_L}'); a('ds_write_b32 v24, v15')
    a('v_mov_b32 v14, 0x3F803F80')
    a('v_cmp_eq_u32 vcc, 18, v8'); a('v_cndmask_b32 v13, v15, v14, vcc')
    for st in range(4):
        for r in range(4):
            a(f'v_mov_b32 v{KVB+8*st+r}, 0')
            a(f'v_mov_b32 v{KVB+8*st+4+r}, v13')
    for r in range(16):
        a(f'v_mov_b32 v{KVA+r}, 0')
    a.wait_vm_tag('b0')
    a.waitcnt(lg=0)
    a('s_barrier')
    a(f's_mul_i32 s61, s42, {4 * VROW}'); a('s_add_u32 s61, s61, s48')
    a(f's_add_u32 s62, s61, {WS_KB}'); a(f's_add_u32 s63, s61, {WS_VB}')
    order = []
    for n in range(2, 9):
        for hb in range(2):
            if n < 8: order.append(('KM', 8 * hb + n))
            order.append(('V', 9 * hb + n))
            if n in (2, 4, 6): order.append(('KT', 4 * hb + n // 2))
    first = [x for x in order if {'KM': x[1] % 8 < 4, 'V': x[1] % 9 < 4, 'KT': x[1] % 4 < 2}[x[0]]]
    rest = [x for x in order if x not in first]
    poll('K2_PF2', 6, 75, (0x0F0F0F0F, -1))
    for (k, n) in first:
        dma(k, n, 'b1')
    a('s_mov_b64 exec, s[34:35]')
    for st in range(4):
        a(f'buffer_load_dwordx4 {vr(KVB + 8 * st)}, v17, s[16:19], s62 offen offset:{st * 2 * VROW}')
        a(f'buffer_load_dwordx4 {vr(KVB + 8 * st + 4)}, v17, s[16:19], s63 offen offset:{st * 2 * VROW}')
    a('s_mov_b64 exec, -1')
    st_pf3 = a.snapshot()
    poll('K2_PF3', 6, 75, (-1, -1))
    a.restore(st_pf3)
    for (k, n) in rest[:6]:
        dma(k, n, 'b2')
    for st in range(4):
        a(f'v_mfma_f32_32x32x16_bf16 {vr(KVA, 16)}, {vr(KVB + 8 * st)}, {vr(KVB + 8 * st + 4)}, {vr(KVA, 16)}')
    a('v_mul_u32_u24 v18, 80, v8'); a('v_lshl_add_u32 v18, v9, 4, v18')
    a('s_mul_i32 s61, s39, 1520'); a(f's_add_u32 s61, s61, {KVP_L}'); a('v_add_u32 v18, s61, v18')
    a('s_mov_b32 exec_lo, 0x7FFFF'); a('s_mov_b32 exec_hi, 0x7FFFF')
    a(f'ds_write_b128 v18, {vr(KVA)}')
    a(f'ds_write_b128 v18, {vr(KVA + 4)} offset:32')
    a('s_mov_b32 exec_hi, 0')
    a(f'ds_write_b64 v18, {vr(KVA + 8, 2)} offset:64')
    a('s_mov_b64 exec, -1')
    a.wait_vm_tag('b1')
    a.waitcnt(lg=0)
    a('s_barrier')
    a('s_mul_i32 s57, s37, 12288'); a(f's_add_u32 s57, s57, {WS_KVS}')
    a('s_cmp_lg_u32 s39, 0')
    a('s_cbranch_scc1 K2_HPUB')
    st_skip = a.snapshot()
    a('v_min_u32 v19, 30, v2'); a('v_lshlrev_b32 v19, 4, v19'); a('v_add_u32 v19, 1024, v19')
    a(f'v_add_u32 v18, {KVP_L}, v3'); a(f'v_add_u32 v20, {KVP_L}, v19')
    for k in range(4):
        a(f'ds_read_b128 {vr(KVB + 8 * k)}, v18 offset:{k * 1520}')
        a(f'ds_read_b128 {vr(KVB + 8 * k + 4)}, v20 offset:{k * 1520}')
    for k in range(1, 4):
        for r in range(0, 8, 2):
            a(f'v_pk_add_f32 v[{KVB+r}:{KVB+r+1}], v[{KVB+r}:{KVB+r+1}], v[{KVB+8*k+r}:{KVB+8*k+r+1}]')
    a('s_mul_i32 s58, s38, 1536'); a('s_add_u32 s58, s58, s57')
    a(f'buffer_store_dwordx4 {vr(KVB)}, v3, s[16:19], s58 offen sc1')
    a(f'buffer_store_dwordx4 {vr(KVB + 4)}, v19, s[16:19], s58 offen sc1')
    a.waitcnt(vm=0)
    a('v_mov_b32 v18, s78'); a('v_mov_b32 v19, s79'); a('v_mov_b32 v20, 1520')
    a('s_mov_b64 exec, 1')
    a('buffer_store_dwordx2 v[18:19], v20, s[16:19], s58 offen sc1')
    a('s_mov_b64 exec, -1')
    a.restore(st_skip)
    a.label('K2_HPUB')
    a.nop(2)
    for (k, n) in rest[6:]:
        dma(k, n, 'b2')
    og_addr(42)
    for r in range(4):
        a(f'v_mov_b32 v{28+r}, -1')
    for t in range(2):
        a(f's_add_u32 s52, s62, {t * 73728}'); a(f's_add_u32 s53, s64, {t * 73728}')
        a('buffer_store_dwordx4 v[28:31], v21, s[16:19], s52 offen sc1')
        a('s_mov_b32 exec_hi, 0')
        a('buffer_store_dword v28, v22, s[16:19], s53 offen sc1')
        a('s_mov_b32 exec_hi, -1')
    a('v_mov_b32 v11, 0x7FF00000'); a('v_cmp_eq_u32 vcc, 0, v9'); a('v_cndmask_b32 v11, v11, v10, vcc')
    a('v_lshlrev_b32 v12, 2, v8')
    a(f's_add_u32 s51, s43, {WS_QBM}'); a(f's_add_u32 s52, s45, {WS_QBT}')
    a('s_lshl_b32 s53, s42, 7'); a(f's_add_u32 s53, s53, {WS_G}')
    for t in range(2):
        a(f'buffer_load_dwordx4 {vr(QB + 6 * t)}, v3, s[16:19], s51 offen offset:{t * 1024}')
        a(f'buffer_load_dword v{QB + 6 * t + 4}, v11, s[16:19], s52 offen offset:{t * 256}')
        a(f'v_mov_b32 v{QB + 6 * t + 5}, 0')
        a(f'buffer_load_dword v{GB + t}, v12, s[16:19], s53 offen offset:{t * 128}')
    a('v_min_u32 v18, 18, v8'); a('v_mul_u32_u24 v19, 80, v18'); a('v_lshl_add_u32 v18, v9, 5, v19')
    a('v_and_b32 v25, 7, v2'); a('v_mul_u32_u24 v25, 1536, v25'); a('v_add_u32 v25, 1520, v25')
    a.waitcnt(vm=0)
    a('s_barrier')
    if 'hs' in X: a.stamp(3)
    poll('K2_POLL', 25, 57)
    if 'hs' in X: a.stamp(4)
    TS = [32, 40, 48, 56, 64, 72, 80, 88]
    a('v_min_u32 v20, 30, v2'); a('v_lshlrev_b32 v20, 4, v20'); a('v_add_u32 v20, 1024, v20')
    for q in range(8):
        d = TS[q]
        if q % 2 == 0: a(f's_add_u32 s58, s57, {q * 1536}')
        o = (q % 2) * 1536
        a(f'buffer_load_dwordx4 {vr(d)}, v3, s[16:19], s58 offen offset:{o}')
        a(f'buffer_load_dwordx4 {vr(d + 4)}, v20, s[16:19], s58 offen offset:{o}')
    a('s_mul_i32 s58, s39, 1520'); a(f's_add_u32 s58, s58, {KVP_L}')
    a('v_add_u32 v25, s58, v3'); a('v_add_u32 v20, s58, v20'); a('v_add_u32 v18, s58, v18'); a('v_add_u32 v19, s58, v19')
    for q in range(1, 8):
        for r in range(0, 8, 2):
            a(f'v_pk_add_f32 v[{32+r}:{33+r}], v[{32+r}:{33+r}], v[{TS[q]+r}:{TS[q]+r+1}]')
    a('ds_write_b128 v25, v[32:35]'); a('ds_write_b128 v20, v[36:39]')
    a.waitcnt(lg=0)
    a('ds_read_b128 v[32:35], v18'); a('ds_read_b128 v[36:39], v18 offset:16'); a('ds_read_b64 v[40:41], v19 offset:64')
    for k in range(5):
        a(f'v_cvt_pk_bf16_f32 v{44+k}, v{32+2*k}, v{33+2*k}')
    a('v_mov_b32 v49, 0')
    for t in range(2):
        D = 64 + 16 * t
        a(f'v_mfma_f32_32x32x16_bf16 {vr(D, 16)}, v[44:47], {vr(QB + 6 * t)}, 0')
        a(f'v_mfma_f32_32x32x8bf16_1k {vr(D, 16)}, v[48:49], {vr(QB + 6 * t + 4, 2)}, {vr(D, 16)}')
    a('s_add_u32 s62, s62, 18432'); a('s_add_u32 s64, s64, 18432')
    for t in range(2):
        D = 64 + 16 * t
        a('v_cmp_eq_u32 vcc, 0, v9')
        a(f'v_cndmask_b32 v19, v{D+12}, v{D+10}, vcc')
        a(f'v_add_f32 v19, {EPS_BITS}, v19')
        a('v_rcp_f32 v19, v19')
        a(f'v_sub_f32 v20, 1.0, v{GB+t}')
        a('v_mul_f32 v19, v19, v20')
        og_store(D, 19, 28 + 0 * t, 62, 64)
        if t == 0:
            a('s_add_u32 s62, s62, 73728'); a('s_add_u32 s64, s64, 73728')
    a('s_lshl_b32 s59, s38, 2'); a('s_add_u32 s59, s59, s39'); a('s_lshl_b32 s59, s59, 12'); a(f's_add_u32 s59, s59, {WS_FLG + 2048 * 128}')
    a('v_mov_b32 v4, s78'); a('v_mov_b32 v5, s79'); a('v_mov_b32 v6, s37'); a('v_lshlrev_b32 v6, 7, v6')
    a.waitcnt(vm=0)
    a('s_mov_b64 exec, 1')
    a('buffer_store_dwordx2 v[4:5], v6, s[16:19], s59 offen sc1')
    a('s_mov_b64 exec, -1')
    if 'hs' in X: a.stamp(5)
    if True:
        a('s_mov_b32 s20, s82'); a('s_mov_b32 s21, s83'); a('s_mov_b32 s22, 256'); a('s_mov_b32 s23, 0x00020000')
        a('v_mov_b32 v25, 8'); a('s_mov_b32 s60, 0')
        a.label('K2_PW')
        a('buffer_load_dword v26, v25, s[20:23], 0 offen sc1')
        a.waitcnt(vm=0)
        a('v_readfirstlane_b32 s58, v26')
        a('s_cmp_ge_u32 s58, 256'); a('s_cbranch_scc1 K2_PW_OK')
        a('s_sleep 8')
        a('s_add_u32 s60, s60, 1'); a('s_cmp_lt_u32 s60, 0x40000'); a('s_cbranch_scc1 K2_PW')
        a.label('K2_PW_OK')
    p3_setup()
    six(XW0, 68, 18432, '')
    STG = (80, 104, 128)
    a('s_mul_i32 s45, s39, 36864'); a('s_add_u32 s45, s45, s67')
    for i in range(3):
        six(STG[i], 45, 18432 + i * 6144, '')
    def a_src(j):
        srcs = [frag_src(72 + 12 * l + j) for l in range(4)]
        a('s_cmp_eq_u32 s39, 1'); a(f's_mov_b32 s52, {srcs[0]}'); a(f's_cselect_b32 s52, {srcs[1]}, s52')
        a('s_cmp_eq_u32 s39, 2'); a(f's_cselect_b32 s52, {srcs[2]}, s52')
        a('s_cmp_eq_u32 s39, 3'); a(f's_cselect_b32 s52, {srcs[3]}, s52'); a('s_add_u32 s52, s52, s67')
    STA = [152, 156, 160, 164, 8, 12, 16, 20, 24]
    for j in range(4):
        a_src(j)
        a(f'buffer_load_dwordx4 {vr(STA[j])}, v3, s[16:19], s52 offen')
    if True:
        a('s_lshr_b32 s53, s2, 3'); a('s_lshl_b32 s53, s53, 2'); a('s_add_u32 s53, s53, s39')
        a('s_mul_i32 s53, s53, 11264'); a(f's_add_u32 s53, s53, {WS_WOT}')
        for k in range(11):
            if k % 4 == 0 and k: a('s_add_u32 s53, s53, 4096')
            a(f'buffer_load_dwordx4 v[4:7], v3, s[16:19], s53 offen offset:{(k % 4) * 1024}', tag='untracked')
    a('v_lshlrev_b32 v30, 7, v8')
    poll('K2_PB', 30, 74)
    if 'hs' in X: a.stamp(6)
    six(OGF, 69, 18432, '')
    for k in range(12):
        if k % 4 == 0: a(f's_add_u32 s56, s69, {18432 - 12288 + k * 1024}')
        a(f'buffer_load_dwordx4 v[4:7], v3, s[16:19], s56 offen offset:{(k % 4) * 1024}', tag='untracked')
    for j in range(4, 9):
        a_src(j)
        a(f'buffer_load_dwordx4 {vr(STA[j])}, v3, s[16:19], s52 offen')
    a('s_mul_i32 s45, s39, 18432'); a('v_add_u32 v29, s45, v3')
    a('s_mul_i32 s45, s39, 12288'); a('s_add_u32 s45, s45, 73728'); a('v_add_u32 v28, s45, v3')
    a.waitcnt(vm=0)
    if 'hs' in X: a.stamp(7)
    a('s_setprio 0')
    a('s_barrier')
    a('s_barrier')
    for i in range(18):
        a(f'ds_write_b128 v29, {vr(STG[i // 6] + 4 * (i % 6))} offset:{i * 1024}')
    a.waitcnt(lg=0)
    a('s_barrier')
    if 'hp2' in X: a('s_setprio 2')
    for j in range(9):
        a(f'ds_write_b128 v28, {vr(STA[j])} offset:{j * 1024}')
    for j in range(9, 12):
        a(f's_add_u32 m0, s45, {j * 1024}')
        a_src(j)
        a('buffer_load_dwordx4 v3, s[16:19], s52 offen lds')
    a.waitcnt(lg=0)
    a.restore(st_p3c)
    phase3(a, X, six)
    a.label('K2_END')
    a('s_endpgm')


def phase3(a, X, six):
    a.label('K2_P3')
    a.nop(2)
    a('s_cmp_ge_u32 s68, 0x7FF00000'); a('s_cbranch_scc1 K2_P3_4')
    st = a.snapshot()
    phase3v(a, X, six, 5)
    a('s_branch K2_FIN')
    a.restore(st)
    a.vm = [e for e in a.vm if not (e['d'] & {('v', r) for r in range(P3_XW[0], P3_XW[0] + 24)})]
    a.label('K2_P3_4')
    phase3v(a, X, six, 4)
    a.label('K2_FIN')
    if a.prof:
        if 'hs' in X:
            a('s_cmp_lt_u32 s36, 8'); a('s_cbranch_scc1 K2_END'); a('s_sub_u32 s36, s36, 8')
        else:
            a('s_cmp_ge_u32 s36, 8'); a('s_cbranch_scc1 K2_END')
        a.reset_state()
        a.stamp_flush(6, 0, 3, 36, 2, WS_PROF)


def phase3v(a, X, six, NT):
    WR, ACC = 128, 8
    OGF, XW = 32, 80
    a('v_add_u32 v6, s66, v3')
    a('v_add_u32 v7, 73728, v6')

    def wrd(hf, k):
        for nt in range(4):
            a(f'ds_read_b128 {vr(WR + (k % 2) * 16 + 4 * nt)}, v{6 + hf} offset:{nt * 18432 + k * 1024}')

    def half(hf, extra=None):
        for k in range(6):
            for nt in range(NT):
                d = ACC + 4 * nt
                A = P3_XW[hf] + 4 * k if nt == 4 else WR + (k % 2) * 16 + 4 * nt
                a(f'v_mfma_f32_16x16x32_bf16 {vr(d)}, {vr(A)}, {vr(P3_OG[hf] + 4 * k)}, {"0" if k == 0 and hf == 0 else vr(d)}')
            if k + 2 < 6:
                wrd(hf, k + 2)
            if extra: extra(k)
    wrd(0, 0); wrd(0, 1)
    a('s_add_u32 s56, s68, 4096'); a('s_add_u32 s57, s69, 4096')

    def a_loads(k):
        for j in (((0, 1, 2), (3, 4, 5), (6, 7, 8), (9, 10, 11), (), ()) if 'ea' in X else ((0, 1, 2), (3, 4, 5), (), (6, 7), (8, 9), (10, 11)))[k]:
            i = j % 6
            if j < 6 and NT == 4:
                continue
            if j < 6:
                a(f'buffer_load_dwordx4 {vr(P3_XW[1] + 4 * i)}, v3, s[16:19], s{68 if i < 4 else 56} offen offset:{(i % 4) * 1024}')
            else:
                a(f'buffer_load_dwordx4 {vr(P3_OG[1] + 4 * i)}, v3, s[16:19], s{69 if i < 4 else 57} offen offset:{(i % 4) * 1024}')
    half(0, a_loads)
    if 'tl' in X: a.stamp(5)
    a('s_mov_b32 s20, s4'); a('s_mov_b32 s21, s5'); a(f's_mov_b32 s22, {2048*1152}'); a('s_mov_b32 s23, 0x00020000')
    a('v_and_b32 v5, 15, v2'); a('v_lshrrev_b32 v31, 4, v2')
    a('s_lshl_b32 s58, s73, 4'); a('v_add_u32 v5, s58, v5'); a('v_mul_u32_u24 v5, 1152, v5')
    a('v_lshl_add_u32 v28, v31, 3, v5')
    a('v_and_b32 v29, 1, v31'); a('v_lshl_add_u32 v5, v29, 5, v5')
    a('v_lshrrev_b32 v29, 1, v31'); a('v_lshl_add_u32 v29, v29, 4, v5')
    a('s_mov_b32 s60, 0')
    a.waitcnt(vm=0)
    a('s_barrier')
    wrd(1, 0); wrd(1, 1)
    a(f's_branch K2_P3CHK{NT}')
    a.label(f'K2_P3RETRY{NT}')
    six(P3_OG[1], 69, 0, ' sc1')
    a.waitcnt(vm=0)
    a.label(f'K2_P3CHK{NT}')
    R = P3_OG[1]
    a(f'v_max3_u32 v31, v{R}, v{R+1}, v{R+2}'); a(f'v_max3_u32 v5, v{R+3}, v{R+4}, v{R+5}')
    for k in range(6, 22, 4):
        a(f'v_max3_u32 v31, v{R+k}, v{R+k+1}, v31'); a(f'v_max3_u32 v5, v{R+k+2}, v{R+k+3}, v5')
    a(f'v_max3_u32 v31, v{R+22}, v{R+23}, v31'); a('v_max_u32 v31, v31, v5')
    a('v_cmp_eq_u32 vcc, -1, v31')
    a('s_add_u32 s60, s60, 1'); a('s_cmp_lt_u32 s60, 0x2000'); a('s_cselect_b64 s[76:77], -1, 0')
    a('s_and_b64 vcc, vcc, s[76:77]')
    a(f's_cbranch_scc1 K2_P3RETRY{NT}')
    if 'tl' in X: a.stamp(6)
    a('s_mul_i32 s58, s36, 5120'); a('v_add_u32 v6, s58, v3')
    half(1)
    a('s_cmp_eq_u32 s66, 0'); a(f's_cbranch_scc1 K2_P3R{NT}')
    st = a.snapshot()
    for nt in range(NT):
        a(f'ds_write_b128 v6, {vr(ACC + 4 * nt)} offset:{nt * 1024}')
    a.waitcnt(lg=0)
    a('s_barrier')
    a('s_branch K2_FIN')
    a.restore(st)
    a.label(f'K2_P3R{NT}')
    a('s_barrier')
    for j in range(2):
        for nt in range(NT):
            a(f'ds_read_b128 {vr(OGF + (j * 5 + nt) * 4)}, v6 offset:{(j + 1) * 20480 + nt * 1024}')
    for nt in range(NT):
        d = ACC + 4 * nt
        for j in range(2):
            s_ = OGF + (j * 5 + nt) * 4
            a(f'v_pk_add_f32 v[{d}:{d+1}], v[{d}:{d+1}], v[{s_}:{s_+1}]')
            a(f'v_pk_add_f32 v[{d+2}:{d+3}], v[{d+2}:{d+3}], v[{s_+2}:{s_+3}]')
        t = XW + nt * 2
        a(f'v_cvt_pk_bf16_f32 v{t}, v{d}, v{d+1}'); a(f'v_cvt_pk_bf16_f32 v{t+1}, v{d+2}, v{d+3}')
        if nt % 2 == 1:
            t0 = t - 2
            a(f'v_permlane16_swap_b32 v{t0}, v{t0+2}'); a(f'v_permlane16_swap_b32 v{t0+1}, v{t0+3}')
            a(f'buffer_store_dwordx4 {vr(t0)}, v29, s[20:23], s72 offen offset:{(nt - 1) * 32}')
        elif nt == 4:
            a(f'buffer_store_dwordx2 {vr(t, 2)}, v28, s[20:23], s71 offen')


DESC = f"""
.amdhsa_kernel gated_mix__mha_block__linear_attn_block__prompt_kernel
  .amdhsa_next_free_vgpr {NV2}
  .amdhsa_next_free_sgpr 102
  .amdhsa_accum_offset {NV2}
  .amdhsa_group_segment_fixed_size 0
  .amdhsa_kernarg_size 80
  .amdhsa_user_sgpr_count 2
  .amdhsa_user_sgpr_kernarg_segment_ptr 1
  .amdhsa_system_sgpr_workgroup_id_x 1
.end_amdhsa_kernel
"""
```

```python
from asmlib import Asm
from layout import *

WPART = 14400
SLOT = WPART
NS = 6
XBASE = NS * SLOT
XSLOT = 16384
NX = 4
LDS1 = XBASE + NX * XSLOT
assert XBASE % 128 == 0

ACC = 56
WF = 12
NWF = 3
XF = 24
TOK_L = 153600 - 32


PFS = [(2, 0), (0, 4), (6, 0), (0, 8)]
PF = {'pf1': ([(2, 2)], [(4, 6), (8, 8)]), 'pf2': ([(2, 4)], [(6, 8)]), 'pf3': ([(0, 2)], [(4, 6), (8, 8)]), 'pf4': ([(2, 4)], [])}


def acc(rt, tile):
    return ACC + (tile * 4 + rt) * 4


def vr(b, n=4):
    return f'v[{b}:{b+n-1}]'


def gen(a, X=()):
    prof = a.prof
    a.raw('.p2align 8')
    a.raw('.globl gated_mix__mha_block__linear_attn_block__prompt_kernel')
    a.raw('.type gated_mix__mha_block__linear_attn_block__prompt_kernel,@function')
    a.label('gated_mix__mha_block__linear_attn_block__prompt_kernel')
    a('s_cmp_ge_u32 s2, 256')
    a('s_cbranch_scc1 K2_END')
    a.stamp(0, real=True); a.stamp(1)
    a('s_load_dwordx4 s[4:7], s[0:1], 0')
    a('s_load_dwordx2 s[8:9], s[0:1], 32')
    a('s_load_dwordx2 s[10:11], s[0:1], 48')
    a('s_load_dwordx2 s[12:13], s[0:1], 72')
    a('s_load_dwordx2 s[14:15], s[0:1], 16')
    a('s_load_dwordx2 s[32:33], s[0:1], 40')
    a('s_load_dwordx2 s[82:83], s[0:1], 64')
    a('v_lshrrev_b32 v1, 6, v0')
    a('v_and_b32 v2, 63, v0')
    a('v_readfirstlane_b32 s36, v1')
    a('s_and_b32 s37, s2, 7')
    a('s_lshr_b32 s38, s2, 3')
    a('s_and_b32 s39, s37, 1')
    a('s_lshl_b32 s39, s39, 3')
    a('s_and_b32 s40, s38, 7')
    a('s_add_u32 s39, s39, s40')
    if 'newmap' not in X:
        a('s_lshr_b32 s40, s37, 1'); a('s_lshl_b32 s40, s40, 2'); a('s_lshr_b32 s41, s38, 3'); a('s_add_u32 s40, s40, s41')
    else:
        a('s_and_b32 s40, s37, 6'); a('s_bfe_u32 s41, s38, 0x10003'); a('s_add_u32 s40, s40, s41')
        a('s_lshr_b32 s41, s38, 4'); a('s_lshl_b32 s41, s41, 3'); a('s_add_u32 s40, s40, s41')
    a('s_lshr_b32 s41, s40, 3')
    a('s_and_b32 s42, s40, 7')
    a('s_and_b32 s43, s36, 1')
    a('s_bfe_u32 s44, s36, 0x10001')
    a('s_cmp_ge_u32 s36, 8')
    a('s_cbranch_scc1 K1_HELPER')
    a('s_cmp_lt_u32 s36, 4')
    a('s_cbranch_scc1 K1_COMPUTE')
    st_entry = a.snapshot()
    FILL = [('x', 1), ('w', 2), ('w', 3), ('x', 2), ('w', 4), ('w', 5), ('x', 3)]
    NC = [int(x[1:]) for x in X if x[0] == 'c' and x[1:].isdigit()]
    NC = NC[0] if NC else 0
    a('s_mov_b32 s34, 0xF7FFFFFF')
    a('s_mov_b32 s35, 0x007FFFFF')
    a('v_cmp_le_u32 vcc, 28, v2')
    a('v_mov_b32 v4, 0')
    a('v_mov_b32 v5, 3008')
    a('v_cndmask_b32 v4, v4, v5, vcc')
    a('v_lshl_add_u32 v3, v2, 4, v4')
    a('s_mul_i32 s58, s42, 432')
    a('v_add_u32 v3, s58, v3')
    a('v_lshrrev_b32 v5, 3, v2')
    a('v_and_b32 v6, 7, v2')
    a('v_and_b32 v7, 2, v5')
    a('v_lshlrev_b32 v7, 1, v7')
    a('s_lshl_b32 s58, s43, 1')
    a('v_or_b32 v7, s58, v7')
    a('v_xor_b32 v6, v6, v7')
    a('v_mul_u32_u24 v5, 1152, v5')
    a('v_lshl_add_u32 v4, v6, 4, v5')
    a('s_mul_i32 s60, s44, 7200')
    a('s_mul_i32 s58, s43, 3616')
    a('s_add_u32 s60, s60, s58')
    a('s_and_b32 s58, s36, 3')
    a('s_mul_i32 s61, s58, 27648')
    a('s_lshl_b32 s58, s43, 1'); a('s_lshl_b32 s59, s44, 3'); a('s_add_u32 s58, s58, s59')
    a('s_lshl_b32 s62, s58, 10'); a(f's_add_u32 s62, s62, {XBASE}')
    a('s_lshl_b32 s59, s39, 4'); a('s_add_u32 s58, s58, s59')
    a('s_mul_i32 s63, s58, 9216')
    a('s_and_b32 s58, s38, 7'); a('s_lshr_b32 s59, s38, 3'); a('s_lshl_b32 s59, s59, 1'); a('s_add_u32 s58, s58, s59')
    a('s_sub_u32 s59, s58, 9'); a('s_cmp_ge_u32 s58, 9'); a('s_cselect_b32 s66, s59, s58')
    if 'norot' in X: a('s_mov_b32 s66, 0')
    if 'h1' in X or 'h2' in X: a('s_min_u32 s66, s66, 7' if 'h1' in X else 's_min_u32 s66, s66, 6')
    if 'rot3' in X:
        a('s_mul_i32 s58, s66, 43'); a('s_lshr_b32 s58, s58, 7'); a('s_mul_i32 s66, s58, 3')
    if 'rot2' in X:
        a('s_and_b32 s66, s66, 1'); a('s_lshl_b32 s66, s66, 2')
    a.waitcnt(lg=0)
    a('s_mov_b32 s16, s4'); a('s_mov_b32 s17, s5'); a(f's_mov_b32 s18, {2048*1152}'); a('s_mov_b32 s19, 0x00020000')
    a('s_cmp_eq_u32 s41, 0')
    a('s_cselect_b32 s20, s6, s8'); a('s_cselect_b32 s21, s7, s9')
    a(f's_mov_b32 s22, {576*3456}'); a('s_mov_b32 s23, 0x00020000')
    a('s_mov_b32 s28, s10'); a('s_mov_b32 s29, s11'); a('s_mov_b32 s30, 1152'); a('s_mov_b32 s31, 0x00020000')

    def kblock(A):
        H = [int(x[1:]) for x in X if x[0] == 'h' and x[1:].isdigit()]
        if H:
            h = H[0]
            if A < h:
                a(f's_mov_b32 s67, {A}')
            else:
                n = 9 - h
                a(f's_add_u32 s67, s66, {A - h}')
                for _ in range(2 if n < 8 else 1):
                    a(f's_sub_u32 s58, s67, {n}'); a(f's_cmp_ge_u32 s67, {n}'); a('s_cselect_b32 s67, s58, s67')
                a(f's_add_u32 s67, s67, {h}')
            return
        a(f's_add_u32 s67, s66, {A}'); a('s_sub_u32 s58, s67, 9'); a('s_cmp_ge_u32 s67, 9'); a('s_cselect_b32 s67, s58, s67')

    def xhalf(A, h):
        if h == 0:
            kblock(A)
            a('s_lshl_b32 s69, s67, 7'); a('s_add_u32 s69, s69, s63')
        for n in (2 * h, 2 * h + 1):
            rg = (n & 1) + 4 * (n >> 1)
            a(f's_add_u32 m0, s62, {(A % NX) * XSLOT + rg * 1024}')
            a(f's_add_u32 s65, s69, {rg * 9216}')
            if 'noload' not in X and 'nox' not in X: a('buffer_load_dwordx4 v4, s[16:19], s65 offen lds', tag=('x', A))

    def xchunk(A):
        xhalf(A, 0); xhalf(A, 1)

    def wchunk(c):
        if c % 2 == 0:
            kblock(c // 2)
            a(f's_mul_i32 s68, s67, {64 * 3456}'); a('s_add_u32 s68, s68, s61')
        a('s_mov_b64 exec, s[34:35]')
        for n in range(4):
            a(f's_add_u32 m0, s60, {(c % NS) * SLOT + n * 896}')
            a(f's_add_u32 s64, s68, {((c % 2) * 32 + 2 * n) * 3456}')
            if 'noload' not in X and 'now' not in X: a('buffer_load_dwordx4 v3, s[20:23], s64 offen lds', tag=('w', c))
        a('s_mov_b64 exec, -1')

    PF2 = 'pf2' in X
    if PF2:
        a('v_lshrrev_b32 v20, 3, v2'); a('s_and_b32 s58, s37, 1'); a('s_lshl_b32 s58, s58, 5'); a('s_add_u32 s58, s58, s38')
        a('s_lshl_b32 s58, s58, 2'); a('s_and_b32 s59, s36, 3'); a('s_add_u32 s58, s58, s59'); a('s_lshl_b32 s58, s58, 3')
        a('v_add_u32 v20, s58, v20'); a('v_mul_u32_u24 v20, 1152, v20'); a('v_and_b32 v21, 7, v2'); a('v_lshl_add_u32 v20, v21, 4, v20')
        a('s_lshl_b32 s59, s59, 10'); a('v_lshlrev_b32 v21, 4, v2'); a('v_add_u32 v21, s59, v21')
        a('v_mov_b32 v22, 0'); a('v_mov_b32 v23, 1664'); a('v_cmp_le_u32 vcc, 0x700, v21'); a('v_cndmask_b32 v22, v22, v23, vcc')
        a('v_min_u32 v21, 3568, v21'); a('v_add_u32 v21, v21, v22')
        a('s_bfe_u32 s58, s37, 0x10001'); a('s_mul_i32 s58, s58, 1664'); a('s_mul_i32 s59, s38, 6912'); a('s_add_u32 s58, s58, s59')
        a('v_add_u32 v21, s58, v21')

    def pfx(b):
        if PF2 and b < 9:
            a(f's_mov_b32 s58, {b * 128}'); a('buffer_load_dwordx4 v[24:27], v20, s[16:19], s58 offen', tag='pf')

    def pfw(b):
        if PF2 and b < 9:
            a(f's_mov_b32 s58, {b * 64 * 3456}'); a('buffer_load_dwordx4 v[28:31], v21, s[20:23], s58 offen', tag='pf')
    xchunk(0); wchunk(0)
    a('s_lshl_b32 s72, s40, 3'); a('s_or_b32 s72, s72, s36')
    a('s_cmp_lg_u32 s72, 4'); a('s_cbranch_scc1 K1_NGL')
    a('v_lshlrev_b32 v19, 1, v2')
    for g in range(9):
        kblock(g); a('s_lshl_b32 s58, s67, 7')
        a(f'buffer_load_ushort v{41+g}, v19, s[28:31], s58 offen', tag=('w', 0))
    a.label('K1_NGL')
    wchunk(1)
    for b in (1, 2, 3):
        pfx(b); pfw(b)
    a('v_bfe_u32 v6, v2, 4, 1')
    a('v_mul_u32_u24 v18, 7200, v6')
    a('v_and_b32 v6, 15, v2')
    a('v_mul_u32_u24 v6, 448, v6')
    a('v_add_u32 v18, v18, v6')
    a('v_bfe_u32 v6, v2, 3, 1')
    a('v_lshl_add_u32 v18, v6, 5, v18')
    a('v_lshrrev_b32 v6, 5, v2')
    a(f'v_mul_u32_u24 v6, {SLOT}, v6')
    a('v_add_u32 v18, v18, v6')
    a('v_add_u32 v18, 432, v18')
    a(f'v_add_u32 v17, {4*SLOT}, v18')


    def gate_write(g):
        sl = (2 * g) % NS
        a('s_cmp_lg_u32 s72, 4'); a(f's_cbranch_scc1 K1_NG{g}')
        if sl == 4:
            a(f'ds_write_b16 v17, v{41+g}')
        else:
            a(f'ds_write_b16 v18, v{41+g} offset:{sl * SLOT}')
        a.label(f'K1_NG{g}')
    if 'free' in X:
        win = [int(x[1:]) for x in X if x[0] == 'n' and x[1:].isdigit()][0]
        a.stamp(2)
        for s in range(4, 18):
            if s % 2 == 0:
                xchunk(s // 2)
            wchunk(s)
            a.waitcnt(vm=min(win, 63))
            if s in (8, 12): a.stamp({8: 3, 12: 4}[s])
        a.stamp(5); a.stamp(6); a.stamp(7)
        a('s_sub_u32 s36, s36, 4')
        a('s_branch K1_FIN')
    a.wait_vm_tag(('w', 0))
    for g in range(3):
        gate_write(g)
    a.waitcnt(lg=0)
    a('s_barrier')
    rest = FILL[NC:]
    pre_n = max(0, 3 - NC)
    for k, i in rest[:pre_n]:
        xchunk(i) if k == 'x' else wchunk(i)
    rest = rest[pre_n:]
    plan = {}
    for s in range(0, 18):
        p = []
        A, h = ((s + 7) // 2, 0) if s % 2 else ((s + 6) // 2, 1)
        if 4 <= A < 9: p.append(('x', A, h))
        if s + 6 < 18: p.append(('w', s + 6))
        if s < 2:
            q = []
            for k, i in (rest[:3] if s == 0 else rest[3:]):
                q += [('x', i, 0), ('x', i, 1)] if k == 'x' else [('w', i)]
            if s == 0 and rest:
                held = p; p = q
            else:
                p = q + (held if rest and s == 1 else []) + p
                p.sort(key=lambda z: z[1] if z[0] == 'w' else 2 * z[1] - 0.5)
        plan[s] = p
    L = 'lst' in X
    PFD = 4
    for s in range(18):
        if L and s in (7, 8): a.stamp(2 + 3 * (s - 7))
        a.wait_vm_tag(('w', s + 1))
        a.wait_vm_tag(('x', (s + 1) // 2))
        a.waitcnt(lg=0)
        if L and s in (7, 8): a.stamp(3 + 3 * (s - 7))
        a('s_barrier')
        if L and s in (7, 8): a.stamp(4 + 3 * (s - 7))
        for p in plan[s]:
            if p[0] == 'x': xhalf(p[1], p[2])
            else: wchunk(p[1])
        if s + 6 < 18 and (s + 6) % 2 == 1:
            gate_write((s + 6) // 2)
        if s % 2 == 0: pfx(s // 2 + PFD); pfw(s // 2 + PFD)
    a('s_barrier')
    a('s_branch K2_ENTRY')

    a.restore(st_entry)
    a.label('K1_HELPER')
    a.waitcnt(lg=0)
    a('s_mov_b32 s20, s82'); a('s_mov_b32 s21, s83'); a('s_mov_b32 s22, 256'); a('s_mov_b32 s23, 0x00020000')
    a('s_cmp_lg_u32 s36, 8'); a('s_cbranch_scc1 K1_HT0')
    a('s_memrealtime s[78:79]'); a.waitcnt(lg=0)
    a('s_or_b32 s79, s79, 0x80000000')
    a('v_mov_b32 v4, s78'); a('v_mov_b32 v5, s79'); a('v_mov_b32 v6, 0'); a('v_mov_b32 v7, 0'); a('v_mov_b32 v8, 0')
    a('s_mov_b64 exec, 1')
    a('buffer_atomic_cmpswap_x2 v[4:7], v8, s[20:23], 0 offen sc0', tag='untracked')
    a('s_mov_b64 exec, -1')
    a.label('K1_HT0')
    a(f'v_mov_b32 v9, {TOK_L}')
    for b in range(11):
        a('s_barrier')
    a.waitcnt(vm=0)
    a('s_cmp_lg_u32 s36, 8'); a('s_cbranch_scc1 K1_HT1')
    a('v_readfirstlane_b32 s76, v4'); a('v_readfirstlane_b32 s77, v5')
    a('s_cmp_eq_u64 s[76:77], 0'); a('s_cselect_b64 s[78:79], s[78:79], s[76:77]')
    a('v_mov_b32 v4, s78'); a('v_mov_b32 v5, s79')
    a('ds_write_b64 v9, v[4:5]')
    a.waitcnt(lg=0)
    a.label('K1_HT1')
    a('s_barrier')
    a('ds_read_b64 v[4:5], v9')
    a('v_readfirstlane_b32 s78, v4'); a('v_readfirstlane_b32 s79, v5')
    a('s_barrier')
    wo_gather(a, 0); wo_gather(a, 1)
    for b in range(4):
        a('s_barrier')
    wo_store(a, 0); wo_store(a, 1)
    for b in range(2):
        a('s_barrier')
    a('s_lshl_b32 s58, s39, 4'); a('s_add_u32 s58, s58, s40'); a('s_lshl_b32 s58, s58, 7'); a(f's_add_u32 s58, s58, {WS_FL1}')
    a('v_mov_b32 v6, 0'); a('v_mov_b32 v7, 1'); a('v_mov_b32 v8, 8')
    a.waitcnt(vm=0)
    a('s_barrier')
    a('s_cmp_lg_u32 s36, 8'); a('s_cbranch_scc1 K2_ENTRY')
    if 'wb' in X:
        a.raw('  buffer_wbl2 sc1'); a.raw('  s_waitcnt vmcnt(0)')
    a('s_mov_b64 exec, 1')
    a('buffer_store_dwordx2 v[4:5], v6, s[24:27], s58 offen sc1')
    a('buffer_atomic_add v7, v8, s[20:23], 0 offen')
    a('s_mov_b64 exec, -1')
    a('s_branch K2_ENTRY')

    a.restore(st_entry)
    a.label('K1_COMPUTE')
    a('s_setprio 3')
    a('s_cmp_eq_u32 s42, 5')
    a('s_cselect_b32 s45, 2, 0')
    a('s_cselect_b32 s46, 0, 4')
    a('s_add_u32 s47, s45, 3')
    a('s_add_u32 s48, s45, 1')
    a('s_cmp_eq_u32 s44, 0')
    a('s_cselect_b32 s47, s45, s47')
    a('s_cselect_b32 s48, s48, s46')
    a('s_cselect_b32 s49, s45, s46')
    a('s_cselect_b32 s50, 4, 2')
    a('s_mul_i32 s51, s42, 6')
    a('s_mul_i32 s52, s41, 3')
    a('s_add_u32 s53, s51, s47')
    a('s_add_u32 s54, s51, s48')
    a('s_add_u32 s55, s51, s49')
    a('s_lshr_b32 s56, s53, 4')
    a('s_add_u32 s56, s56, s52')
    a('s_lshr_b32 s57, s54, 4')
    a('s_add_u32 s57, s57, s52')
    a('s_and_b32 s53, s53, 15')
    a('s_and_b32 s54, s54, 15')
    a('s_and_b32 s55, s55, 15')
    a('v_lshrrev_b32 v25, 5, v2')
    a('v_mul_u32_u24 v24, 7200, v25')
    a('v_bfe_u32 v25, v2, 4, 1')
    a('v_mul_u32_u24 v25, 3616, v25')
    a('v_add_u32 v24, v24, v25')
    a('v_bfe_u32 v25, v2, 2, 2')
    a('v_mul_u32_u24 v25, 448, v25')
    a('v_add_u32 v24, v24, v25')
    a('v_and_b32 v25, 3, v2')
    a('v_lshl_add_u32 v26, v25, 3, v24')
    a('s_mul_i32 s58, s47, 72')
    a('v_add_u32 v3, s58, v26')
    a('s_mul_i32 s58, s48, 72')
    a('v_add_u32 v5, s58, v26')
    a('v_add_u32 v27, s49, v25')
    a('v_mul_u32_u24 v27, 72, v27')
    a('v_add_u32 v27, 32, v27')
    a('v_lshlrev_b32 v28, 3, v25')
    a('v_add_u32 v28, 416, v28')
    a('v_cmp_gt_u32 vcc, s50, v25')
    a('v_cndmask_b32 v27, v28, v27, vcc')
    a('v_add_u32 v4, v24, v27')
    a('v_and_b32 v25, 15, v2')
    a('v_lshrrev_b32 v26, 2, v25')
    a('v_and_b32 v27, 3, v25')
    a('v_lshl_add_u32 v29, v26, 3, v27')
    a('s_lshl_b32 s58, s43, 6')
    a('v_add_u32 v28, s58, v29')
    a('v_lshlrev_b32 v28, 7, v28')
    a('v_and_b32 v27, 2, v27')
    a('v_lshlrev_b32 v27, 1, v27')
    a('v_and_b32 v26, 2, v26')
    a('v_or_b32 v26, v26, v27')
    a('v_lshrrev_b32 v30, 4, v2')
    a('v_xor_b32 v27, v30, v26')
    a('v_lshl_add_u32 v9, v27, 4, v28')
    a(f'v_add_u32 v9, {XBASE}, v9')
    a('v_xor_b32 v10, 64, v9')
    a('v_mov_b32 v11, v9')
    a('s_mov_b32 s79, 0')
    for r in (3, 4, 5):
        a(f'v_add_u32 v{r+3}, {3*SLOT}, v{r}')
    a('s_lshr_b32 s58, 0x18, s56'); a('s_and_b32 s66, s58, 1')
    a('s_lshr_b32 s58, 0x18, s57'); a('s_and_b32 s67, s58, 1')
    a(f's_mul_i32 s68, s66, {EPS_BITS}')
    a(f's_mul_i32 s69, s67, {EPS_BITS}')
    for tile in range(7):
        for r in range(16):
            a(f'v_mov_b32 v{ACC + tile*16 + r}, s{68 if tile < 2 else 69}')
    a('s_lshr_b32 s58, 0x34, s56'); a('s_and_b32 s70, s58, 1')
    a('s_lshr_b32 s58, 0x34, s57'); a('s_and_b32 s71, s58, 1')
    a('s_lshl_b32 s58, s70, 1'); a('s_or_b32 s72, s58, s71')
    a.waitcnt(lg=0)
    a('s_mov_b32 s24, s12'); a('s_mov_b32 s25, s13'); a(f's_mov_b32 s26, {WS_END}'); a('s_mov_b32 s27, 0x00020000')
    a('s_lshl_b32 s77, s39, 7'); a('s_lshl_b32 s58, s43, 6'); a('s_add_u32 s77, s77, s58')
    a('s_mov_b32 s73, 3')
    if 'nob' in X:
        a('s_cmp_eq_u32 s41, 1'); a('s_cselect_b32 s26, 0, s26')
    a('s_cmp_eq_u32 s72, 1'); a('s_cbranch_scc1 K1_TN')
    a('s_cmp_eq_u32 s72, 2'); a('s_cbranch_scc1 K1_NT')
    a('s_cmp_eq_u32 s72, 3'); a('s_cbranch_scc1 K1_NN')
    state = a.snapshot()

    def tile_addr(tile, slot):
        base = {0: 3, 1: 3, 2: 4}.get(tile, 5)
        imm = {0: 0, 1: 40, 2: 0, 3: 0, 4: 40, 5: 72, 6: 112}[tile]
        if slot >= 3:
            base += 3
            slot -= 3
        return base, imm + slot * SLOT

    for (name, Na, Nb) in (('TT', 0, 0), ('TN', 0, 1), ('NT', 1, 0), ('NN', 1, 1)):
        a.restore(state)
        a.label(f'K1_{name}')
        epi_setup(a, name, Na, Nb)

        def wread(idx):
            s, t = (idx // 7) % NS, idx % 7
            b, imm = tile_addr(t, s)
            d = WF + (idx % NWF) * 4
            a(f'ds_read_b64_tr_b16 {vr(d, 2)}, v{b} offset:{imm}')
            a(f'ds_read_b64_tr_b16 {vr(d + 2, 2)}, v{b} offset:{imm + 1792}')

        def xread(s, rt):
            d = XF + (s % 2) * 16 + rt * 4
            off = (rt // 2) * 4096 + (rt % 2) * 512
            a(f'ds_read_b128 {vr(d)}, v{9 if s % 2 == 0 else 10} offset:{off}')

        a('s_barrier')
        a.stamp(2)

        def body():
            for s in range(NS):
                for t in range(7):
                    idx = s * 7 + t
                    wf = WF + (idx % NWF) * 4
                    N = Na if t < 2 else Nb
                    for rt in range(4):
                        xf = XF + (s % 2) * 16 + rt * 4
                        d = acc(rt, t)
                        if N:
                            a(f'v_mfma_f32_16x16x32_bf16 {vr(d)}, {vr(xf)}, {vr(wf)}, {vr(d)}')
                        else:
                            a(f'v_mfma_f32_16x16x32_bf16 {vr(d)}, {vr(wf)}, {vr(xf)}, {vr(d)}')
                        if t == 5:
                            xread(s + 1, rt)
                        if rt == 1 and t == 6 and s % 2 == 0:
                            a(f's_add_u32 s79, s79, {XSLOT}'); a(f's_and_b32 s79, s79, {NX * XSLOT - 1}')
                            a('v_add_u32 v9, s79, v11'); a('v_xor_b32 v10, 64, v9')
                    if t == 4:
                        a.waitcnt(lg=0)
                        a('s_barrier')
                    wread(idx + NWF)

        def tail():
            a('s_sub_u32 s73, s73, 1'); a('s_cmp_lg_u32 s73, 0'); a(f's_cbranch_scc1 K1_{name}_LOOP')
        wread(0)
        for rt in range(4):
            xread(0, rt)
        wread(1); wread(2)
        n0 = len(a.lines); st = a.snapshot(); body(); tail(); back = a.snapshot(); del a.lines[n0:]; a.restore(st)
        a.waitcnt(lg=len(back[5]))
        a.loop(f'K1_{name}_LOOP', body, tail)
        a.stamp(3)
        epi_lanes(a, name, Na, Nb)
        epilogue(a, name, Na, Nb, X)
        a('s_branch K1_FIN')
    a.label('K1_FIN')
    a.reset_state()
    a('s_setprio 0')
    a.waitcnt(vm=0)
    a('s_barrier')
    a.stamp(4)


def wo_gather(a, r):
    V = 64 + 16 * r
    sf = 70 + r
    a('s_lshl_b32 s53, s2, 2'); a('s_and_b32 s58, s36, 3'); a('s_add_u32 s53, s53, s58')
    if r: a('s_add_u32 s53, s53, 1024')
    a(f's_mul_hi_u32 s54, s53, {-(-(1 << 32) // 36)}')
    a('s_mul_i32 s55, s54, 36'); a('s_sub_u32 s55, s53, s55')
    a('s_cmp_ge_u32 s55, 18')
    a('s_cselect_b32 s28, s32, s14'); a('s_cselect_b32 s29, s33, s15')
    a('s_cselect_b32 s56, 18, 0'); a('s_sub_u32 s55, s55, s56')
    a(f's_mov_b32 s30, {576*1152}'); a('s_mov_b32 s31, 0x00020000')
    a('s_mul_i32 s56, s55, 36')
    a('s_mul_i32 s57, s55, 288'); a(f's_sub_u32 s57, s57, {288*16-16}')
    a('s_cmp_ge_u32 s55, 16')
    a('s_cselect_b32 s56, s57, s56')
    a('s_cselect_b32 s57, 144, 20')
    a('s_cselect_b32 s58, 72, 8')
    a('s_cselect_b32 s59, 36, 4')
    a('s_mul_i32 s59, s59, 1152')
    a('v_lshrrev_b32 v13, 5, v2')
    a('v_mul_lo_u32 v13, v13, s57')
    a('v_bfe_u32 v14, v2, 4, 1')
    a('v_mul_lo_u32 v14, v14, s58')
    a('v_add3_u32 v13, v13, v14, s56')
    a('v_mul_u32_u24 v13, 1152, v13')
    a('v_and_b32 v14, 15, v2')
    a('v_lshl_add_u32 v13, v14, 1, v13')
    a('s_lshl_b32 s56, s54, 5')
    a('s_cmp_lt_u32 s53, 1296')
    a('s_cselect_b32 s56, s56, 0x7FF00000')
    a('v_add_u32 v13, s56, v13')
    a(f's_lshl_b32 s{sf}, s53, 10'); a(f's_add_u32 s{sf}, s{sf}, {WS_WOT}')
    a('s_cmp_lt_u32 s53, 1296')
    a(f's_cselect_b32 s{sf}, s{sf}, 0x7FF00000')
    for j in range(8):
        so = '0' if j < 4 else 's59'
        a(f'buffer_load_ushort v{V+j}, v13, s[28:31], {so} offen offset:{(j % 4) * 1152}')


def wo_store(a, r):
    V = 64 + 16 * r
    if r == 0:
        a('s_mov_b32 s24, s12'); a('s_mov_b32 s25, s13'); a(f's_mov_b32 s26, {WS_END}'); a('s_mov_b32 s27, 0x00020000')
        a('v_lshlrev_b32 v15, 4, v2')
    for j in range(4):
        a(f'v_lshl_or_b32 v{V+8+j}, v{V+1+2*j}, 16, v{V+2*j}')
    a(f'buffer_store_dwordx4 v[{V+8}:{V+11}], v15, s[24:27], s{70+r} offen sc1')


def epi_setup(a, name, Na, Nb):
    def dest_scalars(stype, shp, N, sd, tail):
        if N:
            a(f's_sub_u32 s58, s{stype}, 3'); a(f's_cmp_eq_u32 s{stype}, 2'); a('s_cselect_b32 s58, 0, s58')
            a(f's_mul_i32 s58, s58, {NIMG * 32}')
            a(f's_mul_i32 s59, s{shp}, {NIMG * 2}')
            a(f's_add_u32 s{sd}, s58, s59'); a(f's_add_u32 s{sd}, s{sd}, {WS_VA}')
        else:
            a(f's_cmp_eq_u32 s{stype}, 3'); a(f's_cselect_b32 s58, 2, s{stype}')
            if tail:
                a('s_lshl_b32 s58, s58, 18'); a(f's_lshl_b32 s59, s{shp}, 14')
                a(f's_add_u32 s{sd}, s58, s59'); a(f's_add_u32 s{sd}, s{sd}, {WS_QAT}')
            else:
                a('s_lshl_b32 s58, s58, 21'); a(f's_lshl_b32 s59, s{shp}, 17')
                a(f's_add_u32 s{sd}, s58, s59')
                assert WS_QAM == 0
    dest_scalars(56, 53, Na, 80, False)
    dest_scalars(57, 54, Nb, 81, False)
    dest_scalars(57, 55, Nb, 82, True)
    for st, sd in ((56, 30), (57, 14)):
        a(f's_cmp_eq_u32 s{st}, 0'); a(f's_cselect_b32 s{sd}, {QSCALE_BITS}, 1.0'); a(f's_mov_b32 s{sd+1}, s{sd}')
    a(f's_mov_b32 s74, {LOG2E_BITS}'); a(f's_mov_b32 s75, {LOG2E_BITS}'); a(f's_mov_b32 s76, {EPS_BITS}')


def epi_lanes(a, name, Na, Nb):
    a.waitcnt(lg=0)
    a('v_and_b32 v19, 15, v2'); a('v_lshrrev_b32 v20, 2, v19'); a('v_and_b32 v19, 3, v19'); a('v_lshl_add_u32 v12, v20, 3, v19')
    a('v_lshrrev_b32 v13, 4, v2')
    a(f'v_mov_b32 v22, {NEG_EPS_LOG2E_BITS}'); a(f'v_mov_b32 v23, {NEG_EPS_LOG2E_BITS}')
    if (not Na) or (not Nb):
        a('v_and_b32 v19, 1, v13'); a('v_lshl_add_u32 v19, v19, 2, v12'); a('v_lshlrev_b32 v19, 4, v19')
        a('v_lshrrev_b32 v20, 1, v13'); a('v_lshl_add_u32 v14, v20, 9, v19')
        a('s_lshl_b32 s58, s77, 5'); a('v_add_u32 v14, s58, v14')
    if not Nb:
        a('v_add_u32 v19, s77, v12'); a('v_lshlrev_b32 v19, 3, v19'); a('v_lshl_add_u32 v15, v13, 14, v19')
        a('v_mov_b32 v20, 0x7FF00000'); a('v_cmp_gt_u32 vcc, s50, v13'); a('v_cndmask_b32 v15, v20, v15, vcc')
    if Na or Nb:
        a('s_lshr_b32 s58, s77, 3'); a('v_add_u32 v19, s58, v13'); a('v_mul_u32_u24 v19, 18, v19')
        a('v_and_b32 v20, 15, v2'); a('v_add_u32 v16, v19, v20'); a('v_lshlrev_b32 v16, 4, v16')
    if Nb:
        a('v_and_b32 v21, 1, v20'); a('v_add3_u32 v21, v19, v21, 16'); a('v_lshlrev_b32 v21, 4, v21')
        a('v_lshrrev_b32 v1, 1, v20'); a(f's_mov_b32 s58, {NIMG}'); a('v_mul_lo_u32 v1, v1, s58'); a('v_add_u32 v17, v21, v1')
        a('v_mov_b32 v21, 0x7FF00000'); a('v_lshrrev_b32 v1, 2, v20'); a('v_cmp_gt_u32 vcc, s50, v1')
        a('v_cndmask_b32 v17, v21, v17, vcc')
    if name == 'TT':
        a('v_add_u32 v19, s77, v12'); a('v_lshlrev_b32 v19, 2, v19')
        a('v_mov_b32 v20, 0x7FF00000'); a('v_cmp_eq_u32 vcc, 2, v13'); a('v_cndmask_b32 v18, v20, v19, vcc')
        a('s_lshl_b32 s58, s40, 1'); a('s_or_b32 s58, s58, s44')
        a('s_cmp_eq_u32 s58, 1'); a(f's_cselect_b32 s83, {WS_G}, 0x7FF00000' if False else f's_mov_b32 s83, {WS_G}')
        a('s_cselect_b32 s83, s83, 0x7FF00000')


def epilogue(a, name, Na, Nb, X=()):
    ST = '' if 'wb' in X else ' sc1'
    cnt = [0]

    def store_tile(tile):
        N = Na if tile < 2 else Nb
        sd = 80 if tile < 2 else (82 if tile == 2 else 81)
        hl = {0: 0, 1: 1, 2: 0, 3: 0, 4: 1, 5: 2, 6: 3}[tile]
        for G in range(2):
            X, Y = acc(2 * G, tile), acc(2 * G + 1, tile)
            t = 40 + (cnt[0] % 4) * 4
            cnt[0] += 1
            a(f'v_cvt_pk_bf16_f32 v{t}, v{X}, v{X+1}'); a(f'v_cvt_pk_bf16_f32 v{t+1}, v{X+2}, v{X+3}')
            a(f'v_cvt_pk_bf16_f32 v{t+2}, v{Y}, v{Y+1}'); a(f'v_cvt_pk_bf16_f32 v{t+3}, v{Y+2}, v{Y+3}')
            if N:
                voff = 17 if tile == 2 else 16
                a(f's_add_u32 s58, s{sd}, {hl * NIMG + G * 4 * 288}')
                a(f'buffer_store_dwordx4 {vr(t)}, v{voff}, s[24:27], s58 offen{ST}')
            elif tile == 2:
                a(f'buffer_store_dwordx2 {vr(t, 2)}, v15, s[24:27], s{sd} offen offset:{G * 256}{ST}')
                a(f'buffer_store_dwordx2 {vr(t + 2, 2)}, v15, s[24:27], s{sd} offen offset:{G * 256 + 32}{ST}')
            else:
                a(f's_add_u32 s58, s{sd}, {hl * 65536 + G * 1024}')
                a(f'v_permlane16_swap_b32 v{t}, v{t+2}')
                a(f'v_permlane16_swap_b32 v{t+1}, v{t+3}')
                a(f'buffer_store_dwordx4 {vr(t)}, v14, s[24:27], s58 offen{ST}')

    if name == 'TT':
        for rt in range(4):
            a(f'v_mul_f32 v{3+rt}, 0xBFB8AA3B, v{acc(rt, 2)}')
        for rt in range(4):
            a(f'v_exp_f32 v{3+rt}, v{3+rt}')
        for rt in range(4):
            a(f'v_add_f32 v{3+rt}, 1.0, v{3+rt}')
        for rt in range(4):
            a(f'v_rcp_f32 v{3+rt}, v{3+rt}')
        for rt in range(4):
            a(f'buffer_store_dword v{3+rt}, v18, s[24:27], s83 offen offset:{(rt // 2) * 128 + (rt % 2) * 16} sc1')
    for seg, tiles, sphi, ssc in (('a', (0, 1), 66, 30), ('b', (2, 3, 4, 5, 6), 67, 14)):
        N = Na if seg == 'a' else Nb
        lab = f'K1_{name}_{seg}'
        a(f's_cmp_eq_u32 s{sphi}, 0')
        a(f's_cbranch_scc1 {lab}_nophi')
        st = a.snapshot()
        c0 = cnt[0]
        for tile in tiles:
            T = 24
            rr = [ACC + tile * 16 + r for r in range(16)]
            for k in range(0, 16, 2):
                a(f'v_pk_fma_f32 v[{T+k}:{T+k+1}], v[{rr[k]}:{rr[k]+1}], s[74:75], v[22:23]')
            for k in range(16):
                a(f'v_exp_f32_e64 v{T+k}, v{T+k} clamp')
                a(f'v_max_f32 v{rr[k]}, s76, v{rr[k]}')
            for k in range(0, 16, 2):
                a(f'v_pk_add_f32 v[{rr[k]}:{rr[k]+1}], v[{rr[k]}:{rr[k]+1}], v[{T+k}:{T+k+1}]')
            store_tile(tile)
        a(f's_branch {lab}_done')
        st1 = a.snapshot()
        a.restore(st)
        cnt[0] = c0
        a.label(f'{lab}_nophi')
        for tile in tiles:
            if not N:
                for k in range(0, 16, 2):
                    r = ACC + tile * 16 + k
                    a(f'v_pk_mul_f32 v[{r}:{r+1}], v[{r}:{r+1}], s[{ssc}:{ssc+1}]')
            store_tile(tile)
        a.label(f'{lab}_done')
        a.nop(2)
```

```python
from asmlib import Asm
from layout import *

KM_L = 0
KT_L = 65536
V_L = 73728
KVP_L = V_L + NIMG
FLAG_L = KVP_L + 4 * 1520
LDS2 = FLAG_L + 64
XB = KVP_L - 8 * 3072
VROW = 288
BLOCK = 768

SA, SB = 32, 64
O0, O1 = 96, 112
KM = 128
VF = 136
KT = 152
QM = (154, 160)
QT = (158, 164)
IDX = 166
G = 167
NV2 = 168
P3_OG = (32, 80)
P3_XW = (56, 104)


def vr(b, n=4):
    return f'v[{b}:{b+n-1}]'


def gen(a, X=()):
    prof = a.prof
    a.label('K2_ENTRY')
    a.reset_state()
    a.nop(2)
    a('s_load_dwordx2 s[6:7], s[0:1], 72')
    a('s_load_dwordx2 s[4:5], s[0:1], 56')
    a('v_and_b32 v2, 63, v0')
    if 'qx' not in X:
        a('s_and_b32 s37, s2, 7'); a('s_lshl_b32 s37, s37, 2'); a('s_lshr_b32 s38, s2, 3'); a('s_and_b32 s39, s38, 3')
        a('s_add_u32 s37, s37, s39'); a('s_lshr_b32 s38, s38, 2')
    else:
        a('s_lshr_b32 s37, s2, 3')
        a('s_and_b32 s38, s2, 7')
    a('v_lshlrev_b32 v3, 4, v2')
    a('v_and_b32 v8, 31, v2')
    a('v_lshrrev_b32 v9, 5, v2')
    a('s_lshl_b32 s41, s37, 16')
    a('s_lshr_b32 s44, s37, 1'); a('s_lshl_b32 s44, s44, 14')
    a('s_and_b32 s45, s37, 1'); a('s_lshl_b32 s45, s45, 2'); a('s_add_u32 s44, s44, s45')
    a(f's_mul_i32 s48, s37, {NIMG}')
    a('s_and_b32 s39, s36, 3')
    a('s_lshl_b32 s42, s38, 3'); a('s_lshl_b32 s43, s39, 1'); a('s_add_u32 s42, s42, s43')
    a('s_lshl_b32 s43, s42, 10'); a('s_add_u32 s43, s43, s41')
    a('s_lshl_b32 s45, s42, 8'); a('s_add_u32 s45, s45, s44')
    a('v_lshlrev_b32 v10, 3, v8')
    a('v_min_u32 v14, 17, v8')
    a('v_mul_u32_u24 v16, 18, v9')
    a('v_add_u32 v17, v14, v16'); a('v_lshlrev_b32 v17, 4, v17')
    a('s_mov_b32 s34, 0x3FFFF'); a('s_mov_b32 s35, 0x3FFFF')
    a('s_cmp_ge_u32 s36, 8')
    a('s_cbranch_scc1 K2_HELPER')
    st_entry = a.snapshot()

    def srd():
        a.waitcnt(lg=0)
        a('s_mov_b32 s16, s6'); a('s_mov_b32 s17, s7'); a(f's_mov_b32 s18, {WS_END}'); a('s_mov_b32 s19, 0x00020000')

    def og_addr(tile_sgpr):
        a('v_lshrrev_b32 v20, 4, v8'); a('v_mul_u32_u24 v20, 36864, v20')
        a('v_and_b32 v21, 15, v8'); a('v_lshl_add_u32 v22, v21, 4, v20')
        a('v_lshl_add_u32 v21, v9, 8, v22')
        a(f's_mul_i32 s61, s{tile_sgpr}, 73728'); a(f's_add_u32 s61, s61, {WS_OG}')
        a('s_lshr_b32 s62, s37, 1'); a('s_lshl_b32 s62, s62, 10')
        a('s_and_b32 s63, s37, 1'); a('s_lshl_b32 s63, s63, 9'); a('s_add_u32 s62, s62, s63')
        a('s_add_u32 s62, s62, s61')
        a('s_lshr_b32 s64, s37, 4'); a('s_lshl_b32 s64, s64, 10')
        a('s_bfe_u32 s65, s37, 0x20002'); a('s_lshl_b32 s65, s65, 8'); a('s_add_u32 s64, s64, s65')
        a('s_and_b32 s65, s37, 3'); a('s_lshl_b32 s65, s65, 2'); a('s_add_u32 s64, s64, s65')
        a('s_add_u32 s64, s64, s61'); a('s_add_u32 s64, s64, 16384')

    def og_store(src, sc, T, smain, stail):
        for r in range(10):
            a(f'v_mul_f32 v{src+r}, v{src+r}, v{sc}')
        for k in range(4):
            a(f'v_cvt_pk_bf16_f32 v{T+k}, v{src+2*k}, v{src+2*k+1}')
        a(f'v_cvt_pk_bf16_f32 v{src+8}, v{src+8}, v{src+9}')
        a(f'v_permlane32_swap_b32 v{T}, v{T+2}')
        a(f'v_permlane32_swap_b32 v{T+1}, v{T+3}')
        a(f'buffer_store_dwordx4 {vr(T)}, v21, s[16:19], s{smain} offen' + (' sc1'))
        a('s_mov_b32 exec_hi, 0')
        a(f'buffer_store_dword v{src+8}, v22, s[16:19], s{stail} offen' + (' sc1'))
        a('s_mov_b32 exec_hi, -1')

    OGF, XW0 = P3_OG[0], P3_XW[0]

    def frag_src(f):
        half, r = divmod(f, 72); nt, k = divmod(r, 18)
        return (nt * 36 + (18 if half == 0 else 0) + k) * 1024

    def p3_setup():
        a('s_lshr_b32 s66, s36, 2'); a('s_mul_i32 s66, s66, 6144')
        a('s_and_b32 s52, s37, 7')
        a('s_lshr_b32 s53, s37, 3')
        a('s_mul_i32 s67, s52, 147456'); a(f's_add_u32 s67, s67, {WS_WOT}')
        a('s_and_b32 s54, s52, 3'); a('s_add_u32 s54, s54, 32')
        a('s_mul_i32 s68, s54, 36864'); a('s_add_u32 s68, s68, s66'); a(f's_add_u32 s68, s68, {WS_WOT}')
        a('s_lshl_b32 s71, s54, 5'); a('s_lshl_b32 s72, s52, 7')
        a('s_lshr_b32 s55, s39, 1'); a('s_lshr_b32 s56, s52, 2')
        a('s_cmp_eq_u32 s55, s56'); a('s_cselect_b32 s68, s68, 0x7FF00000'); a('s_cselect_b32 s71, s71, 0x7FF00000')
        a('s_lshl_b32 s70, s38, 2'); a('s_add_u32 s70, s70, s53')
        a('s_lshl_b32 s73, s70, 2'); a('s_add_u32 s73, s73, s39')
        a('s_mul_i32 s69, s73, 36864'); a('s_add_u32 s69, s69, s66'); a(f's_add_u32 s69, s69, {WS_OG}')
        a('s_lshl_b32 s74, s70, 12'); a(f's_add_u32 s74, s74, {WS_FLG + 2048 * 128}')
        a('s_lshl_b32 s70, s70, 13'); a(f's_add_u32 s70, s70, {WS_FLG}')

    def six(dst, sbase, add, fl, tag=None):
        a(f's_add_u32 s56, s{sbase}, {add}'); a(f's_add_u32 s57, s{sbase}, {add + 4096}')
        for k in range(6):
            a(f'buffer_load_dwordx4 {vr(dst + 4 * k)}, v3, s[16:19], s{56 if k < 4 else 57} offen offset:{(k % 4) * 1024}{fl}', tag=tag)

    a('s_lshr_b32 s40, s36, 2')
    a(f's_add_u32 s51, s45, {WS_QAT}')
    srd()
    a('s_add_u32 s46, s42, s40')
    a('s_lshl_b32 s75, s46, 7'); a(f's_add_u32 s75, s75, {WS_G}')
    a('v_lshlrev_b32 v4, 2, v2'); a(f'v_add_u32 v4, {KT_L}, v4')
    a(f'v_add_u32 v5, {V_L}, v17')
    a('s_lshl_b32 s52, s40, 15'); a('v_add_u32 v11, s52, v3')
    a('s_lshl_b32 s52, s40, 12'); a('v_add_u32 v12, s52, v4')
    a(f's_mul_i32 s52, s40, {128 * VROW}'); a('v_add_u32 v13, s52, v5')
    a(f'v_mov_b32 v{IDX}, 0xDDDD')
    a(f'v_mov_b32 v{KT+1}, 0x3F80')
    a(f'v_mov_b32 v{QT[0]+1}, 0'); a(f'v_mov_b32 v{QT[1]+1}, 0')
    a('v_mov_b32 v15, 0'); a('v_mov_b32 v14, 0x3F803F80')
    a('v_cmp_eq_u32 vcc, 18, v8'); a('v_cndmask_b32 v15, v15, v14, vcc')
    a('v_cmp_eq_u32 vcc, 28, v8'); a('v_cndmask_b32 v15, v15, v14, vcc')
    for r in range(16):
        a(f'v_mov_b32 v{VF+r}, v15')
    for r in range(32):
        a(f'v_mov_b32 v{O0+r}, 0')
    og_addr(46)
    p3_setup()
    a('s_mov_b32 s47, 0')
    a(f'v_mov_b32 v24, {FLAG_L}')

    def rd_kt(u): a(f'ds_read_b32 v{KT}, v12 offset:{u * 256}')
    def rd_km(u, i): a(f'ds_read_b128 {vr(KM + 4 * i)}, v11 offset:{(2 * u + i) * 1024}')

    def rd_v(u, i):
        a('s_mov_b64 exec, s[34:35]')
        a(f'ds_read_b128 {vr(VF + 4 * i)}, v13 offset:{(8 * u + 2 * i) * VROW}')
        a('s_mov_b64 exec, -1')

    def qk2b(S, t): a(f'v_mfma_f32_32x32x4_2b_bf16 {vr(S, 32)}, {vr(KT, 2)}, {vr(QT[t], 2)}, 0')
    def qk(S, i, t): a(f'v_mfma_f32_32x32x16_bf16 {vr(S + 16 * i, 16)}, {vr(KM + 4 * i)}, {vr(QM[t])}, {vr(S + 16 * i, 16)}')
    def pv(S, i, O): a(f'v_smfmac_f32_32x32x32_bf16 {vr(O, 16)}, {vr(VF + 4 * i)}, {vr(S + 8 * i, 8)}, v{IDX}')

    def rowmax(S, n, dst, tmp):
        a(f'v_max3_f32 v{dst}, v{S}, v{S+1}, v{S+2}')
        a(f'v_max3_f32 v{tmp}, v{S+3}, v{S+4}, v{S+5}')
        for k in range(6, n - 2, 4):
            a(f'v_max3_f32 v{dst}, v{S+k}, v{S+k+1}, v{dst}')
            a(f'v_max3_f32 v{tmp}, v{S+k+2}, v{S+k+3}, v{tmp}')
        a(f'v_max3_f32 v{dst}, v{S+n-2}, v{S+n-1}, v{dst}')
        a(f'v_max_f32 v{dst}, v{dst}, v{tmp}')
        a(f'v_mov_b32 v{tmp}, v{dst}')
        a(f'v_permlane32_swap_b32 v{dst}, v{tmp}')
        a(f'v_max_f32 v{dst}, v{dst}, v{tmp}')

    a('s_barrier')
    a.stamp(5)
    for t in range(2):
        a(f'buffer_load_dwordx4 {vr(QM[t])}, v3, s[16:19], s43 offen offset:{t * 1024}')
        a(f'buffer_load_dword v{QT[t]}, v10, s[16:19], s51 offen offset:{t * 256}')
    a.waitcnt(vm=0)
    a('s_barrier')
    a.stamp(6)
    a(f'ds_read_b32 v{KT}, v4'); a(f'ds_read_b128 {vr(KM)}, v3')
    for i in range(4):
        rd_v(0, i)
    qk2b(SA, 0); qk2b(SB, 1); qk(SA, 0, 0); qk(SB, 0, 1)
    rd_kt(0); rd_km(0, 0); rd_km(0, 1)
    for t, S in ((0, SA), (1, SB)):
        rowmax(S, 16, 18, 19)
        a('v_xor_b32 v18, 0x80000000, v18')
        a(f'v_lshrrev_b32 v{QT[t]+1}, 16, v18')
    qk2b(SA, 0); qk(SA, 0, 0); qk(SA, 1, 0)
    for r in range(24, 32):
        a(f'v_mov_b32 v{SB+r}, 0')
    a.waitcnt(lg=0)

    def phase(u, t):
        Sc, Sn = (SA, SB) if t == 0 else (SB, SA)
        Oc, Op = (O0, O1) if t == 0 else (O1, O0)
        e = [0]

        def ex(n):
            for r in range(e[0], e[0] + n):
                a(f'v_exp_f32 v{Sc+r}, v{Sc+r}')
            e[0] += n
        if 'pr2' in X:
            if t == 0: a(f's_setprio {3 - u % 4}')
        elif 'noprio' not in X: a(f's_setprio {3 - (2 * u + t) % 4}')
        ex(2)
        pv(Sn, 3, Op)
        if t == 0: rd_v(u, 3)
        ex(4)
        qk2b(Sn, 1 - t)
        if t == 0: rd_kt(u + 1)
        ex(8)
        pv(Sc, 0, Oc)
        if t == 1: rd_v(u + 1, 0)
        ex(4)
        qk(Sn, 0, 1 - t)
        if t == 0: rd_km(u + 1, 0)
        ex(4)
        pv(Sc, 1, Oc)
        if t == 1: rd_v(u + 1, 1)
        ex(4)
        qk(Sn, 1, 1 - t)
        if t == 0: rd_km(u + 1, 1)
        ex(4)
        pv(Sc, 2, Oc)
        if t == 1: rd_v(u + 1, 2)
        ex(2)

    UN = 4 if 'un4' in X else 2

    def body():
        for u in range(UN):
            if u == UN - 2:
                if UN == 2:
                    a('s_bitcmp1_b32 0xA, s47'); a('s_cbranch_scc0 K2_NOB1')
                else:
                    a('s_cmp_lt_u32 s47, 2'); a('s_cbranch_scc0 K2_NOB1')
                a('s_barrier')
                a.label('K2_NOB1')
            phase(u, 0); phase(u, 1)

    def tail():
        a(f'v_add_u32 v11, {UN * 2048}, v11'); a(f'v_add_u32 v12, {UN * 256}, v12'); a(f'v_add_u32 v13, {UN * 8 * VROW}, v13')
        a('s_add_u32 s47, s47, 1'); a(f's_cmp_lg_u32 s47, {16 // UN}'); a('s_cbranch_scc1 K2_LOOP')
    n0 = len(a.lines); st = a.snapshot(); body(); tail(); back = a.snapshot(); del a.lines[n0:]; a.restore(st)
    a.lg = [set(x) for x in back[5]]
    a.raw('.p2align 6')
    a.loop('K2_LOOP', body, tail)
    a.stamp(7)
    a('s_setprio 3')
    pv(SB, 3, O1)
    a('v_lshlrev_b32 v12, 2, v8')
    a(f'buffer_load_dword v{G}, v12, s[16:19], s75 offen')

    a('v_cmp_eq_u32 vcc, 0, v9')
    a(f'v_cndmask_b32 v{O0+10}, v{O0+12}, v{O0+10}, vcc')
    a(f'v_cndmask_b32 v{O1+10}, v{O1+12}, v{O1+10}, vcc')
    a(f'v_max_f32 v19, v{O0+10}, v{O1+10}')
    a(f'v_fmac_f32 v19, 0, v{O0+10}'); a(f'v_fmac_f32 v19, 0, v{O1+10}')
    for r in range(10):
        a(f'v_fmac_f32 v19, 0, v{O0+r}'); a(f'v_fmac_f32 v19, 0, v{O1+r}')
    a('v_mov_b32 v20, 0x5F000000')
    a('v_cmp_nlt_f32 vcc, v19, v20')
    a('s_cmp_eq_u64 vcc, 0')
    a('s_cbranch_scc1 K2_OK')
    a('v_mov_b32 v19, 1')
    a('ds_write_b32 v24, v19')
    a.label('K2_OK')
    a.waitcnt(lg=0)
    a('s_barrier')
    if 'tl' in X: a.stamp(2)
    a('ds_read_b32 v19, v24')
    a('s_mul_i32 s52, s36, 3072'); a(f's_add_u32 s52, s52, {XB}')
    a('s_xor_b32 s53, s36, 4'); a('s_mul_i32 s53, s53, 3072'); a(f's_add_u32 s53, s53, {XB}')
    a('v_add_u32 v25, s52, v3'); a('v_add_u32 v26, s53, v3')
    a('v_readfirstlane_b32 s52, v19')
    a('s_cmp_lg_u32 s52, 0')
    a('s_cbranch_scc1 K2_SLOW')
    a('s_cmp_eq_u32 s40, 0')
    a('s_cbranch_scc1 K2_X0')
    for r in range(11):
        a(f'v_swap_b32 v{O0+r}, v{O1+r}')
    a.label('K2_X0')
    a.nop(1)
    for k in range(3):
        a(f'ds_write_b128 v25, {vr(O1 + 4 * k)} offset:{k * 1024}')
    a.waitcnt(lg=0)
    a('s_barrier')
    for k in (2, 0, 1):
        a(f'ds_read_b128 {vr(O1 + 4 * k)}, v26 offset:{k * 1024}')
    for r in (10, 8, 0, 2, 4, 6):
        a(f'v_pk_add_f32 v[{O0+r}:{O0+r+1}], v[{O0+r}:{O0+r+1}], v[{O1+r}:{O1+r+1}]')
    a.label('K2_EPI')
    a.nop(2)
    a(f'v_rcp_f32 v18, v{O0+10}')
    a(f'v_mul_f32 v18, v18, v{G}')
    og_store(O0, 18, 28, 62, 64)
    if 'tl' in X: a.stamp(3)
    a('s_setprio 0')
    six(OGF, 69, 18432, '')
    a('s_xor_b32 s45, s36, 4'); a('s_mul_i32 s45, s45, 3072')
    base = frag_src(120)
    assert all(frag_src(120 + i) == base + i * 1024 for i in range(6)) and all(frag_src(126 + i) == frag_src(126) + i * 1024 for i in range(18))
    a(f's_add_u32 s52, s45, {base}'); a(f's_add_u32 s55, s45, {frag_src(126) - 6 * 1024}')
    a('s_cmp_ge_u32 s45, 6144'); a('s_cselect_b32 s52, s55, s52'); a('s_add_u32 s52, s52, s67')
    a(f's_add_u32 m0, s45, {XB}')
    a('s_cmp_ge_u32 s68, 0x7FF00000'); a('s_cbranch_scc1 K2_NOXB')
    six(XW0, 68, 18432, '')
    a.label('K2_NOXB')
    a('s_barrier')
    if 'tl' in X: a.stamp(4)
    for i in range(3):
        a(f'buffer_load_dwordx4 v3, s[16:19], s52 offen offset:{i * 1024} lds')
    st_p3c = a.snapshot()
    a('s_branch K2_P3')

    a.label('K2_SLOW')
    a.fence()
    a('s_cmp_eq_u32 s40, 0')
    a('s_cbranch_scc1 K2_S0')
    for r in range(5):
        a(f'v_mov_b32 v{QM[0]+r}, v{QM[1]+r}')
    a.label('K2_S0')
    a(f'v_mov_b32 v{QT[0]+1}, 0')
    a('v_mov_b32 v20, 0xFF800000')
    for r in range(16):
        a(f'v_mov_b32 v{O0+r}, 0')
    a('v_mov_b32 v11, v3'); a('v_mov_b32 v12, v4'); a('v_mov_b32 v13, v5')
    a('s_mov_b32 s47, 32')
    a.label('K2_SLOW_LOOP')
    a.fence()
    rd_kt(0); rd_km(0, 0); rd_km(0, 1)
    for i in range(4):
        rd_v(0, i)
    qk2b(SA, 0); qk(SA, 0, 0); qk(SA, 1, 0)
    rowmax(SA, 32, 18, 19)
    a('v_max_f32 v18, v18, v20')
    a('v_sub_f32 v19, v20, v18'); a('v_exp_f32 v19, v19')
    a('v_mov_b32 v20, v18')
    for r in range(32):
        a(f'v_sub_f32 v{SA+r}, v{SA+r}, v18')
    for r in range(32):
        a(f'v_exp_f32 v{SA+r}, v{SA+r}')
    for r in range(16):
        a(f'v_mul_f32 v{O0+r}, v{O0+r}, v19')
    for i in range(4):
        pv(SA, i, O0)
    a('v_add_u32 v11, 2048, v11'); a('v_add_u32 v12, 256, v12'); a(f'v_add_u32 v13, {8 * VROW}, v13')
    a('s_sub_u32 s47, s47, 1'); a('s_cmp_lg_u32 s47, 0'); a('s_cbranch_scc1 K2_SLOW_LOOP')
    a.fence()
    a('v_cmp_eq_u32 vcc, 0, v9')
    a(f'v_cndmask_b32 v{O0+10}, v{O0+12}, v{O0+10}, vcc')
    a.hazard_fence()
    a('s_barrier')
    a('s_branch K2_EPI')

    a.restore(st_entry)
    a.label('K2_HELPER')
    a('s_setprio 3')
    KVB, KVA = 32, 64
    QB = 96
    GB = 108
    a('v_lshlrev_b32 v7, 3, v2')
    a('s_lshl_b32 s40, s39, 10')
    a('s_add_u32 s46, s41, s40'); a(f's_add_u32 s46, s46, {WS_KAM}')
    a('s_lshl_b32 s47, s39, 9'); a('s_add_u32 s47, s47, s44'); a(f's_add_u32 s47, s47, {WS_KAT}')
    a('s_add_u32 s49, s48, s40'); a(f's_add_u32 s49, s49, {WS_VA}')
    a('s_lshl_b32 s50, s39, 8')
    srd()
    a('s_lshr_b32 s52, s37, 1')
    for i, add in enumerate((16, 32, 0)):
        a(f's_add_u32 s53, s52, {add}'); a('s_mul_i32 s53, s53, 43'); a(f's_lshr_b32 s{54+i}, s53, 8')
    a('v_and_b32 v25, 15, v2'); a('v_lshlrev_b32 v25, 4, v25')
    a('v_mov_b32 v26, s54'); a('v_mov_b32 v27, s55'); a('v_cmp_le_u32 vcc, 16, v2'); a('v_cndmask_b32 v26, v26, v27, vcc')
    a('v_add_u32 v25, v25, v26')
    a('v_and_b32 v26, 1, v2'); a('s_lshl_b32 s53, s38, 1'); a('v_add_u32 v26, s53, v26'); a('v_lshlrev_b32 v26, 4, v26')
    a('s_add_u32 s57, s56, 8'); a('s_add_u32 s58, s54, 8'); a('s_add_u32 s59, s55, 8')
    a('v_mov_b32 v27, s56')
    for lane, sg in ((34, 57), (36, 58), (38, 59)):
        a(f'v_mov_b32 v28, s{sg}'); a(f'v_cmp_le_u32 vcc, {lane}, v2'); a('v_cndmask_b32 v27, v27, v28, vcc')
    a('v_mov_b32 v28, 0'); a('v_cmp_le_u32 vcc, 40, v2'); a('v_cndmask_b32 v27, v27, v28, vcc')
    a('v_add_u32 v26, v26, v27')
    a('v_cmp_le_u32 vcc, 32, v2'); a('v_cndmask_b32 v25, v25, v26, vcc')
    a('v_lshlrev_b32 v6, 7, v25')
    a(f's_mov_b32 s75, {WS_FL1}')

    def poll(name, voff, soff, mask=None, sleep=4):
        if mask:
            a(f's_and_b32 s76, s80, {mask[0]}'); a(f's_and_b32 s77, s81, {mask[1]}')
            a('s_cmp_eq_u64 s[76:77], 0'); a(f's_cbranch_scc1 {name}_OK')
        a('s_mov_b32 s60, 0')
        a.label(name)
        a(f'buffer_load_dwordx2 v[26:27], v{voff}, s[16:19], s{soff} offen sc1')
        a.waitcnt(vm=0)
        a('v_cmp_ne_u64 vcc, s[78:79], v[26:27]')
        if mask:
            a('s_mov_b64 s[80:81], vcc'); a(f's_and_b32 vcc_lo, vcc_lo, {mask[0]}'); a(f's_and_b32 vcc_hi, vcc_hi, {mask[1]}')
        a('s_cmp_eq_u64 vcc, 0'); a(f's_cbranch_scc1 {name}_OK')
        a(f's_sleep {sleep}')
        a('s_add_u32 s60, s60, 1'); a('s_cmp_lt_u32 s60, 0x40000'); a(f's_cbranch_scc1 {name}')
        a.label(f'{name}_OK')
    a('s_mov_b64 s[80:81], -1')
    a('s_cmp_lg_u32 s39, 0'); a('s_cbranch_scc1 K2_PF1_OK')
    poll('K2_PF1', 6, 75, (0x03030303, 3), 2)
    a('s_barrier')
    if 'hs' in X: a.stamp(2)

    def dma(kind, n, tag):
        if kind == 'KM':
            a(f's_add_u32 m0, s40, {KM_L + n * 4096}'); a(f's_add_u32 s52, s46, {n * 4096}')
            a('buffer_load_dwordx4 v3, s[16:19], s52 offen lds', tag=tag)
        elif kind == 'V':
            a(f's_add_u32 m0, s40, {V_L + n * 4096}'); a(f's_add_u32 s52, s49, {n * 4096}')
            a('buffer_load_dwordx4 v3, s[16:19], s52 offen lds', tag=tag)
        else:
            a(f's_add_u32 m0, s50, {KT_L + n * 1024}'); a(f's_add_u32 s52, s47, {n * 2048}')
            a('buffer_load_dword v7, s[16:19], s52 offen lds', tag=tag)
    for hb in range(2):
        dma('KM', 8 * hb, 'b0'); dma('KT', 4 * hb, 'b0'); dma('V', 9 * hb, 'b0')
    for hb in range(2):
        dma('KM', 8 * hb + 1, 'b0'); dma('V', 9 * hb + 1, 'b0')
    a('v_mov_b32 v15, 0'); a(f'v_mov_b32 v24, {FLAG_L}'); a('ds_write_b32 v24, v15')
    a('v_mov_b32 v14, 0x3F803F80')
    a('v_cmp_eq_u32 vcc, 18, v8'); a('v_cndmask_b32 v13, v15, v14, vcc')
    for st in range(4):
        for r in range(4):
            a(f'v_mov_b32 v{KVB+8*st+r}, 0')
            a(f'v_mov_b32 v{KVB+8*st+4+r}, v13')
    for r in range(16):
        a(f'v_mov_b32 v{KVA+r}, 0')
    a.wait_vm_tag('b0')
    a.waitcnt(lg=0)
    a('s_barrier')
    a(f's_mul_i32 s61, s42, {4 * VROW}'); a('s_add_u32 s61, s61, s48')
    a(f's_add_u32 s62, s61, {WS_KB}'); a(f's_add_u32 s63, s61, {WS_VB}')
    order = []
    for n in range(2, 9):
        for hb in range(2):
            if n < 8: order.append(('KM', 8 * hb + n))
            order.append(('V', 9 * hb + n))
            if n in (2, 4, 6): order.append(('KT', 4 * hb + n // 2))
    first = [x for x in order if {'KM': x[1] % 8 < 4, 'V': x[1] % 9 < 4, 'KT': x[1] % 4 < 2}[x[0]]]
    rest = [x for x in order if x not in first]
    poll('K2_PF2', 6, 75, (0x0F0F0F0F, -1))
    for (k, n) in first:
        dma(k, n, 'b1')
    a('s_mov_b64 exec, s[34:35]')
    for st in range(4):
        a(f'buffer_load_dwordx4 {vr(KVB + 8 * st)}, v17, s[16:19], s62 offen offset:{st * 2 * VROW}')
        a(f'buffer_load_dwordx4 {vr(KVB + 8 * st + 4)}, v17, s[16:19], s63 offen offset:{st * 2 * VROW}')
    a('s_mov_b64 exec, -1')
    st_pf3 = a.snapshot()
    poll('K2_PF3', 6, 75, (-1, -1))
    a.restore(st_pf3)
    for (k, n) in rest[:6]:
        dma(k, n, 'b2')
    for st in range(4):
        a(f'v_mfma_f32_32x32x16_bf16 {vr(KVA, 16)}, {vr(KVB + 8 * st)}, {vr(KVB + 8 * st + 4)}, {vr(KVA, 16)}')
    a('v_mul_u32_u24 v18, 80, v8'); a('v_lshl_add_u32 v18, v9, 4, v18')
    a('s_mul_i32 s61, s39, 1520'); a(f's_add_u32 s61, s61, {KVP_L}'); a('v_add_u32 v18, s61, v18')
    a('s_mov_b32 exec_lo, 0x7FFFF'); a('s_mov_b32 exec_hi, 0x7FFFF')
    a(f'ds_write_b128 v18, {vr(KVA)}')
    a(f'ds_write_b128 v18, {vr(KVA + 4)} offset:32')
    a('s_mov_b32 exec_hi, 0')
    a(f'ds_write_b64 v18, {vr(KVA + 8, 2)} offset:64')
    a('s_mov_b64 exec, -1')
    a.wait_vm_tag('b1')
    a.waitcnt(lg=0)
    a('s_barrier')
    a('s_mul_i32 s57, s37, 12288'); a(f's_add_u32 s57, s57, {WS_KVS}')
    a('s_cmp_lg_u32 s39, 0')
    a('s_cbranch_scc1 K2_HPUB')
    st_skip = a.snapshot()
    a('v_min_u32 v19, 30, v2'); a('v_lshlrev_b32 v19, 4, v19'); a('v_add_u32 v19, 1024, v19')
    a(f'v_add_u32 v18, {KVP_L}, v3'); a(f'v_add_u32 v20, {KVP_L}, v19')
    for k in range(4):
        a(f'ds_read_b128 {vr(KVB + 8 * k)}, v18 offset:{k * 1520}')
        a(f'ds_read_b128 {vr(KVB + 8 * k + 4)}, v20 offset:{k * 1520}')
    for k in range(1, 4):
        for r in range(0, 8, 2):
            a(f'v_pk_add_f32 v[{KVB+r}:{KVB+r+1}], v[{KVB+r}:{KVB+r+1}], v[{KVB+8*k+r}:{KVB+8*k+r+1}]')
    a('s_mul_i32 s58, s38, 1536'); a('s_add_u32 s58, s58, s57')
    a(f'buffer_store_dwordx4 {vr(KVB)}, v3, s[16:19], s58 offen sc1')
    a(f'buffer_store_dwordx4 {vr(KVB + 4)}, v19, s[16:19], s58 offen sc1')
    a.waitcnt(vm=0)
    a('v_mov_b32 v18, s78'); a('v_mov_b32 v19, s79'); a('v_mov_b32 v20, 1520')
    a('s_mov_b64 exec, 1')
    a('buffer_store_dwordx2 v[18:19], v20, s[16:19], s58 offen sc1')
    a('s_mov_b64 exec, -1')
    a.restore(st_skip)
    a.label('K2_HPUB')
    a.nop(2)
    for (k, n) in rest[6:]:
        dma(k, n, 'b2')
    og_addr(42)
    for r in range(4):
        a(f'v_mov_b32 v{28+r}, -1')
    for t in range(2):
        a(f's_add_u32 s52, s62, {t * 73728}'); a(f's_add_u32 s53, s64, {t * 73728}')
        a('buffer_store_dwordx4 v[28:31], v21, s[16:19], s52 offen sc1')
        a('s_mov_b32 exec_hi, 0')
        a('buffer_store_dword v28, v22, s[16:19], s53 offen sc1')
        a('s_mov_b32 exec_hi, -1')
    a('v_mov_b32 v11, 0x7FF00000'); a('v_cmp_eq_u32 vcc, 0, v9'); a('v_cndmask_b32 v11, v11, v10, vcc')
    a('v_lshlrev_b32 v12, 2, v8')
    a(f's_add_u32 s51, s43, {WS_QBM}'); a(f's_add_u32 s52, s45, {WS_QBT}')
    a('s_lshl_b32 s53, s42, 7'); a(f's_add_u32 s53, s53, {WS_G}')
    for t in range(2):
        a(f'buffer_load_dwordx4 {vr(QB + 6 * t)}, v3, s[16:19], s51 offen offset:{t * 1024}')
        a(f'buffer_load_dword v{QB + 6 * t + 4}, v11, s[16:19], s52 offen offset:{t * 256}')
        a(f'v_mov_b32 v{QB + 6 * t + 5}, 0')
        a(f'buffer_load_dword v{GB + t}, v12, s[16:19], s53 offen offset:{t * 128}')
    a('v_min_u32 v18, 18, v8'); a('v_mul_u32_u24 v19, 80, v18'); a('v_lshl_add_u32 v18, v9, 5, v19')
    a('v_and_b32 v25, 7, v2'); a('v_mul_u32_u24 v25, 1536, v25'); a('v_add_u32 v25, 1520, v25')
    a.waitcnt(vm=0)
    a('s_barrier')
    if 'hs' in X: a.stamp(3)
    poll('K2_POLL', 25, 57)
    if 'hs' in X: a.stamp(4)
    TS = [32, 40, 48, 56, 64, 72, 80, 88]
    a('v_min_u32 v20, 30, v2'); a('v_lshlrev_b32 v20, 4, v20'); a('v_add_u32 v20, 1024, v20')
    for q in range(8):
        d = TS[q]
        if q % 2 == 0: a(f's_add_u32 s58, s57, {q * 1536}')
        o = (q % 2) * 1536
        a(f'buffer_load_dwordx4 {vr(d)}, v3, s[16:19], s58 offen offset:{o}')
        a(f'buffer_load_dwordx4 {vr(d + 4)}, v20, s[16:19], s58 offen offset:{o}')
    a('s_mul_i32 s58, s39, 1520'); a(f's_add_u32 s58, s58, {KVP_L}')
    a('v_add_u32 v25, s58, v3'); a('v_add_u32 v20, s58, v20'); a('v_add_u32 v18, s58, v18'); a('v_add_u32 v19, s58, v19')
    for q in range(1, 8):
        for r in range(0, 8, 2):
            a(f'v_pk_add_f32 v[{32+r}:{33+r}], v[{32+r}:{33+r}], v[{TS[q]+r}:{TS[q]+r+1}]')
    a('ds_write_b128 v25, v[32:35]'); a('ds_write_b128 v20, v[36:39]')
    a.waitcnt(lg=0)
    a('ds_read_b128 v[32:35], v18'); a('ds_read_b128 v[36:39], v18 offset:16'); a('ds_read_b64 v[40:41], v19 offset:64')
    for k in range(5):
        a(f'v_cvt_pk_bf16_f32 v{44+k}, v{32+2*k}, v{33+2*k}')
    a('v_mov_b32 v49, 0')
    for t in range(2):
        D = 64 + 16 * t
        a(f'v_mfma_f32_32x32x16_bf16 {vr(D, 16)}, v[44:47], {vr(QB + 6 * t)}, 0')
        a(f'v_mfma_f32_32x32x8bf16_1k {vr(D, 16)}, v[48:49], {vr(QB + 6 * t + 4, 2)}, {vr(D, 16)}')
    a('s_add_u32 s62, s62, 18432'); a('s_add_u32 s64, s64, 18432')
    for t in range(2):
        D = 64 + 16 * t
        a('v_cmp_eq_u32 vcc, 0, v9')
        a(f'v_cndmask_b32 v19, v{D+12}, v{D+10}, vcc')
        a(f'v_add_f32 v19, {EPS_BITS}, v19')
        a('v_rcp_f32 v19, v19')
        a(f'v_sub_f32 v20, 1.0, v{GB+t}')
        a('v_mul_f32 v19, v19, v20')
        og_store(D, 19, 28 + 0 * t, 62, 64)
        if t == 0:
            a('s_add_u32 s62, s62, 73728'); a('s_add_u32 s64, s64, 73728')
    a('s_lshl_b32 s59, s38, 2'); a('s_add_u32 s59, s59, s39'); a('s_lshl_b32 s59, s59, 12'); a(f's_add_u32 s59, s59, {WS_FLG + 2048 * 128}')
    a('v_mov_b32 v4, s78'); a('v_mov_b32 v5, s79'); a('v_mov_b32 v6, s37'); a('v_lshlrev_b32 v6, 7, v6')
    a.waitcnt(vm=0)
    a('s_mov_b64 exec, 1')
    a('buffer_store_dwordx2 v[4:5], v6, s[16:19], s59 offen sc1')
    a('s_mov_b64 exec, -1')
    if 'hs' in X: a.stamp(5)
    if True:
        a('s_mov_b32 s20, s82'); a('s_mov_b32 s21, s83'); a('s_mov_b32 s22, 256'); a('s_mov_b32 s23, 0x00020000')
        a('v_mov_b32 v25, 8'); a('s_mov_b32 s60, 0')
        a.label('K2_PW')
        a('buffer_load_dword v26, v25, s[20:23], 0 offen sc1')
        a.waitcnt(vm=0)
        a('v_readfirstlane_b32 s58, v26')
        a('s_cmp_ge_u32 s58, 256'); a('s_cbranch_scc1 K2_PW_OK')
        a('s_sleep 8')
        a('s_add_u32 s60, s60, 1'); a('s_cmp_lt_u32 s60, 0x40000'); a('s_cbranch_scc1 K2_PW')
        a.label('K2_PW_OK')
    p3_setup()
    six(XW0, 68, 18432, '')
    STG = (80, 104, 128)
    a('s_mul_i32 s45, s39, 36864'); a('s_add_u32 s45, s45, s67')
    for i in range(3):
        six(STG[i], 45, 18432 + i * 6144, '')
    def a_src(j):
        srcs = [frag_src(72 + 12 * l + j) for l in range(4)]
        a('s_cmp_eq_u32 s39, 1'); a(f's_mov_b32 s52, {srcs[0]}'); a(f's_cselect_b32 s52, {srcs[1]}, s52')
        a('s_cmp_eq_u32 s39, 2'); a(f's_cselect_b32 s52, {srcs[2]}, s52')
        a('s_cmp_eq_u32 s39, 3'); a(f's_cselect_b32 s52, {srcs[3]}, s52'); a('s_add_u32 s52, s52, s67')
    STA = [152, 156, 160, 164, 8, 12, 16, 20, 24]
    for j in range(4):
        a_src(j)
        a(f'buffer_load_dwordx4 {vr(STA[j])}, v3, s[16:19], s52 offen')
    if True:
        a('s_lshr_b32 s53, s2, 3'); a('s_lshl_b32 s53, s53, 2'); a('s_add_u32 s53, s53, s39')
        a('s_mul_i32 s53, s53, 11264'); a(f's_add_u32 s53, s53, {WS_WOT}')
        for k in range(11):
            if k % 4 == 0 and k: a('s_add_u32 s53, s53, 4096')
            a(f'buffer_load_dwordx4 v[4:7], v3, s[16:19], s53 offen offset:{(k % 4) * 1024}', tag='untracked')
    a('v_lshlrev_b32 v30, 7, v8')
    poll('K2_PB', 30, 74)
    if 'hs' in X: a.stamp(6)
    six(OGF, 69, 18432, '')
    for k in range(12):
        if k % 4 == 0: a(f's_add_u32 s56, s69, {18432 - 12288 + k * 1024}')
        a(f'buffer_load_dwordx4 v[4:7], v3, s[16:19], s56 offen offset:{(k % 4) * 1024}', tag='untracked')
    for j in range(4, 9):
        a_src(j)
        a(f'buffer_load_dwordx4 {vr(STA[j])}, v3, s[16:19], s52 offen')
    a('s_mul_i32 s45, s39, 18432'); a('v_add_u32 v29, s45, v3')
    a('s_mul_i32 s45, s39, 12288'); a('s_add_u32 s45, s45, 73728'); a('v_add_u32 v28, s45, v3')
    a.waitcnt(vm=0)
    if 'hs' in X: a.stamp(7)
    a('s_setprio 0')
    a('s_barrier')
    a('s_barrier')
    for i in range(18):
        a(f'ds_write_b128 v29, {vr(STG[i // 6] + 4 * (i % 6))} offset:{i * 1024}')
    a.waitcnt(lg=0)
    a('s_barrier')
    if 'hp2' in X: a('s_setprio 2')
    for j in range(9):
        a(f'ds_write_b128 v28, {vr(STA[j])} offset:{j * 1024}')
    for j in range(9, 12):
        a(f's_add_u32 m0, s45, {j * 1024}')
        a_src(j)
        a('buffer_load_dwordx4 v3, s[16:19], s52 offen lds')
    a.waitcnt(lg=0)
    a.restore(st_p3c)
    phase3(a, X, six)
    a.label('K2_END')
    a('s_endpgm')


def phase3(a, X, six):
    a.label('K2_P3')
    a.nop(2)
    a('s_cmp_ge_u32 s68, 0x7FF00000'); a('s_cbranch_scc1 K2_P3_4')
    st = a.snapshot()
    phase3v(a, X, six, 5)
    a('s_branch K2_FIN')
    a.restore(st)
    a.vm = [e for e in a.vm if not (e['d'] & {('v', r) for r in range(P3_XW[0], P3_XW[0] + 24)})]
    a.label('K2_P3_4')
    phase3v(a, X, six, 4)
    a.label('K2_FIN')
    if a.prof:
        if 'hs' in X:
            a('s_cmp_lt_u32 s36, 8'); a('s_cbranch_scc1 K2_END'); a('s_sub_u32 s36, s36, 8')
        else:
            a('s_cmp_ge_u32 s36, 8'); a('s_cbranch_scc1 K2_END')
        a.reset_state()
        a.stamp_flush(6, 0, 3, 36, 2, WS_PROF)


def phase3v(a, X, six, NT):
    WR, ACC = 128, 8
    OGF, XW = 32, 80
    a('v_add_u32 v6, s66, v3')
    a('v_add_u32 v7, 73728, v6')

    def wrd(hf, k):
        for nt in range(4):
            a(f'ds_read_b128 {vr(WR + (k % 2) * 16 + 4 * nt)}, v{6 + hf} offset:{nt * 18432 + k * 1024}')

    def half(hf, extra=None):
        for k in range(6):
            for nt in range(NT):
                d = ACC + 4 * nt
                A = P3_XW[hf] + 4 * k if nt == 4 else WR + (k % 2) * 16 + 4 * nt
                a(f'v_mfma_f32_16x16x32_bf16 {vr(d)}, {vr(A)}, {vr(P3_OG[hf] + 4 * k)}, {"0" if k == 0 and hf == 0 else vr(d)}')
            if k + 2 < 6:
                wrd(hf, k + 2)
            if extra: extra(k)
    wrd(0, 0); wrd(0, 1)
    a('s_add_u32 s56, s68, 4096'); a('s_add_u32 s57, s69, 4096')

    def a_loads(k):
        for j in (((0, 1, 2), (3, 4, 5), (6, 7, 8), (9, 10, 11), (), ()) if 'ea' in X else ((0, 1, 2), (3, 4, 5), (), (6, 7), (8, 9), (10, 11)))[k]:
            i = j % 6
            if j < 6 and NT == 4:
                continue
            if j < 6:
                a(f'buffer_load_dwordx4 {vr(P3_XW[1] + 4 * i)}, v3, s[16:19], s{68 if i < 4 else 56} offen offset:{(i % 4) * 1024}')
            else:
                a(f'buffer_load_dwordx4 {vr(P3_OG[1] + 4 * i)}, v3, s[16:19], s{69 if i < 4 else 57} offen offset:{(i % 4) * 1024}')
    half(0, a_loads)
    if 'tl' in X: a.stamp(5)
    a('s_mov_b32 s20, s4'); a('s_mov_b32 s21, s5'); a(f's_mov_b32 s22, {2048*1152}'); a('s_mov_b32 s23, 0x00020000')
    a('v_and_b32 v5, 15, v2'); a('v_lshrrev_b32 v31, 4, v2')
    a('s_lshl_b32 s58, s73, 4'); a('v_add_u32 v5, s58, v5'); a('v_mul_u32_u24 v5, 1152, v5')
    a('v_lshl_add_u32 v28, v31, 3, v5')
    a('v_and_b32 v29, 1, v31'); a('v_lshl_add_u32 v5, v29, 5, v5')
    a('v_lshrrev_b32 v29, 1, v31'); a('v_lshl_add_u32 v29, v29, 4, v5')
    a('s_mov_b32 s60, 0')
    a.waitcnt(vm=0)
    a('s_barrier')
    wrd(1, 0); wrd(1, 1)
    a(f's_branch K2_P3CHK{NT}')
    a.label(f'K2_P3RETRY{NT}')
    six(P3_OG[1], 69, 0, ' sc1')
    a.waitcnt(vm=0)
    a.label(f'K2_P3CHK{NT}')
    R = P3_OG[1]
    a(f'v_max3_u32 v31, v{R}, v{R+1}, v{R+2}'); a(f'v_max3_u32 v5, v{R+3}, v{R+4}, v{R+5}')
    for k in range(6, 22, 4):
        a(f'v_max3_u32 v31, v{R+k}, v{R+k+1}, v31'); a(f'v_max3_u32 v5, v{R+k+2}, v{R+k+3}, v5')
    a(f'v_max3_u32 v31, v{R+22}, v{R+23}, v31'); a('v_max_u32 v31, v31, v5')
    a('v_cmp_eq_u32 vcc, -1, v31')
    a('s_add_u32 s60, s60, 1'); a('s_cmp_lt_u32 s60, 0x2000'); a('s_cselect_b64 s[76:77], -1, 0')
    a('s_and_b64 vcc, vcc, s[76:77]')
    a(f's_cbranch_scc1 K2_P3RETRY{NT}')
    if 'tl' in X: a.stamp(6)
    a('s_mul_i32 s58, s36, 5120'); a('v_add_u32 v6, s58, v3')
    half(1)
    a('s_cmp_eq_u32 s66, 0'); a(f's_cbranch_scc1 K2_P3R{NT}')
    st = a.snapshot()
    for nt in range(NT):
        a(f'ds_write_b128 v6, {vr(ACC + 4 * nt)} offset:{nt * 1024}')
    a.waitcnt(lg=0)
    a('s_barrier')
    a('s_branch K2_FIN')
    a.restore(st)
    a.label(f'K2_P3R{NT}')
    a('s_barrier')
    for j in range(2):
        for nt in range(NT):
            a(f'ds_read_b128 {vr(OGF + (j * 5 + nt) * 4)}, v6 offset:{(j + 1) * 20480 + nt * 1024}')
    for nt in range(NT):
        d = ACC + 4 * nt
        for j in range(2):
            s_ = OGF + (j * 5 + nt) * 4
            a(f'v_pk_add_f32 v[{d}:{d+1}], v[{d}:{d+1}], v[{s_}:{s_+1}]')
            a(f'v_pk_add_f32 v[{d+2}:{d+3}], v[{d+2}:{d+3}], v[{s_+2}:{s_+3}]')
        t = XW + nt * 2
        a(f'v_cvt_pk_bf16_f32 v{t}, v{d}, v{d+1}'); a(f'v_cvt_pk_bf16_f32 v{t+1}, v{d+2}, v{d+3}')
        if nt % 2 == 1:
            t0 = t - 2
            a(f'v_permlane16_swap_b32 v{t0}, v{t0+2}'); a(f'v_permlane16_swap_b32 v{t0+1}, v{t0+3}')
            a(f'buffer_store_dwordx4 {vr(t0)}, v29, s[20:23], s72 offen offset:{(nt - 1) * 32}')
        elif nt == 4:
            a(f'buffer_store_dwordx2 {vr(t, 2)}, v28, s[20:23], s71 offen')


DESC = f"""
.amdhsa_kernel gated_mix__mha_block__linear_attn_block__prompt_kernel
  .amdhsa_next_free_vgpr {NV2}
  .amdhsa_next_free_sgpr 102
  .amdhsa_accum_offset {NV2}
  .amdhsa_group_segment_fixed_size 0
  .amdhsa_kernarg_size 80
  .amdhsa_user_sgpr_count 2
  .amdhsa_user_sgpr_kernarg_segment_ptr 1
  .amdhsa_system_sgpr_workgroup_id_x 1
.end_amdhsa_kernel
"""
```

```python
from asmlib import Asm
from layout import *

KM_L = 0
KT_L = 65536
V_L = 73728
KVP_L = V_L + NIMG
FLAG_L = KVP_L + 4 * 1520
LDS2 = FLAG_L + 64
XB = KVP_L - 8 * 3072
VROW = 288
BLOCK = 768

SA, SB = 32, 64
O0, O1 = 96, 112
KM = 128
VF = 136
KT = 152
QM = (154, 160)
QT = (158, 164)
IDX = 166
G = 167
NV2 = 168
P3_OG = (32, 80)
P3_XW = (56, 104)


def vr(b, n=4):
    return f'v[{b}:{b+n-1}]'


def gen(a, X=()):
    prof = a.prof
    a.label('K2_ENTRY')
    a.reset_state()
    a.nop(2)
    a('s_load_dwordx2 s[6:7], s[0:1], 72')
    a('s_load_dwordx2 s[4:5], s[0:1], 56')
    a('v_and_b32 v2, 63, v0')
    if 'qx' not in X:
        a('s_and_b32 s37, s2, 7'); a('s_lshl_b32 s37, s37, 2'); a('s_lshr_b32 s38, s2, 3'); a('s_and_b32 s39, s38, 3')
        a('s_add_u32 s37, s37, s39'); a('s_lshr_b32 s38, s38, 2')
    else:
        a('s_lshr_b32 s37, s2, 3')
        a('s_and_b32 s38, s2, 7')
    a('v_lshlrev_b32 v3, 4, v2')
    a('v_and_b32 v8, 31, v2')
    a('v_lshrrev_b32 v9, 5, v2')
    a('s_lshl_b32 s41, s37, 16')
    a('s_lshr_b32 s44, s37, 1'); a('s_lshl_b32 s44, s44, 14')
    a('s_and_b32 s45, s37, 1'); a('s_lshl_b32 s45, s45, 2'); a('s_add_u32 s44, s44, s45')
    a(f's_mul_i32 s48, s37, {NIMG}')
    a('s_and_b32 s39, s36, 3')
    a('s_lshl_b32 s42, s38, 3'); a('s_lshl_b32 s43, s39, 1'); a('s_add_u32 s42, s42, s43')
    a('s_lshl_b32 s43, s42, 10'); a('s_add_u32 s43, s43, s41')
    a('s_lshl_b32 s45, s42, 8'); a('s_add_u32 s45, s45, s44')
    a('v_lshlrev_b32 v10, 3, v8')
    a('v_min_u32 v14, 17, v8')
    a('v_mul_u32_u24 v16, 18, v9')
    a('v_add_u32 v17, v14, v16'); a('v_lshlrev_b32 v17, 4, v17')
    a('s_mov_b32 s34, 0x3FFFF'); a('s_mov_b32 s35, 0x3FFFF')
    a('s_cmp_ge_u32 s36, 8')
    a('s_cbranch_scc1 K2_HELPER')
    st_entry = a.snapshot()

    def srd():
        a.waitcnt(lg=0)
        a('s_mov_b32 s16, s6'); a('s_mov_b32 s17, s7'); a(f's_mov_b32 s18, {WS_END}'); a('s_mov_b32 s19, 0x00020000')

    def og_addr(tile_sgpr):
        a('v_lshrrev_b32 v20, 4, v8'); a('v_mul_u32_u24 v20, 36864, v20')
        a('v_and_b32 v21, 15, v8'); a('v_lshl_add_u32 v22, v21, 4, v20')
        a('v_lshl_add_u32 v21, v9, 8, v22')
        a(f's_mul_i32 s61, s{tile_sgpr}, 73728'); a(f's_add_u32 s61, s61, {WS_OG}')
        a('s_lshr_b32 s62, s37, 1'); a('s_lshl_b32 s62, s62, 10')
        a('s_and_b32 s63, s37, 1'); a('s_lshl_b32 s63, s63, 9'); a('s_add_u32 s62, s62, s63')
        a('s_add_u32 s62, s62, s61')
        a('s_lshr_b32 s64, s37, 4'); a('s_lshl_b32 s64, s64, 10')
        a('s_bfe_u32 s65, s37, 0x20002'); a('s_lshl_b32 s65, s65, 8'); a('s_add_u32 s64, s64, s65')
        a('s_and_b32 s65, s37, 3'); a('s_lshl_b32 s65, s65, 2'); a('s_add_u32 s64, s64, s65')
        a('s_add_u32 s64, s64, s61'); a('s_add_u32 s64, s64, 16384')

    def og_store(src, sc, T, smain, stail):
        for r in range(10):
            a(f'v_mul_f32 v{src+r}, v{src+r}, v{sc}')
        for k in range(4):
            a(f'v_cvt_pk_bf16_f32 v{T+k}, v{src+2*k}, v{src+2*k+1}')
        a(f'v_cvt_pk_bf16_f32 v{src+8}, v{src+8}, v{src+9}')
        a(f'v_permlane32_swap_b32 v{T}, v{T+2}')
        a(f'v_permlane32_swap_b32 v{T+1}, v{T+3}')
        a(f'buffer_store_dwordx4 {vr(T)}, v21, s[16:19], s{smain} offen' + (' sc1'))
        a('s_mov_b32 exec_hi, 0')
        a(f'buffer_store_dword v{src+8}, v22, s[16:19], s{stail} offen' + (' sc1'))
        a('s_mov_b32 exec_hi, -1')

    OGF, XW0 = P3_OG[0], P3_XW[0]

    def frag_src(f):
        half, r = divmod(f, 72); nt, k = divmod(r, 18)
        return (nt * 36 + (18 if half == 0 else 0) + k) * 1024

    def p3_setup():
        a('s_lshr_b32 s66, s36, 2'); a('s_mul_i32 s66, s66, 6144')
        a('s_and_b32 s52, s37, 7')
        a('s_lshr_b32 s53, s37, 3')
        a('s_mul_i32 s67, s52, 147456'); a(f's_add_u32 s67, s67, {WS_WOT}')
        a('s_and_b32 s54, s52, 3'); a('s_add_u32 s54, s54, 32')
        a('s_mul_i32 s68, s54, 36864'); a('s_add_u32 s68, s68, s66'); a(f's_add_u32 s68, s68, {WS_WOT}')
        a('s_lshl_b32 s71, s54, 5'); a('s_lshl_b32 s72, s52, 7')
        a('s_lshr_b32 s55, s39, 1'); a('s_lshr_b32 s56, s52, 2')
        a('s_cmp_eq_u32 s55, s56'); a('s_cselect_b32 s68, s68, 0x7FF00000'); a('s_cselect_b32 s71, s71, 0x7FF00000')
        a('s_lshl_b32 s70, s38, 2'); a('s_add_u32 s70, s70, s53')
        a('s_lshl_b32 s73, s70, 2'); a('s_add_u32 s73, s73, s39')
        a('s_mul_i32 s69, s73, 36864'); a('s_add_u32 s69, s69, s66'); a(f's_add_u32 s69, s69, {WS_OG}')
        a('s_lshl_b32 s74, s70, 12'); a(f's_add_u32 s74, s74, {WS_FLG + 2048 * 128}')
        a('s_lshl_b32 s70, s70, 13'); a(f's_add_u32 s70, s70, {WS_FLG}')

    def six(dst, sbase, add, fl, tag=None):
        a(f's_add_u32 s56, s{sbase}, {add}'); a(f's_add_u32 s57, s{sbase}, {add + 4096}')
        for k in range(6):
            a(f'buffer_load_dwordx4 {vr(dst + 4 * k)}, v3, s[16:19], s{56 if k < 4 else 57} offen offset:{(k % 4) * 1024}{fl}', tag=tag)

    a('s_lshr_b32 s40, s36, 2')
    a(f's_add_u32 s51, s45, {WS_QAT}')
    srd()
    a('s_add_u32 s46, s42, s40')
    a('s_lshl_b32 s75, s46, 7'); a(f's_add_u32 s75, s75, {WS_G}')
    a('v_lshlrev_b32 v4, 2, v2'); a(f'v_add_u32 v4, {KT_L}, v4')
    a(f'v_add_u32 v5, {V_L}, v17')
    a('s_lshl_b32 s52, s40, 15'); a('v_add_u32 v11, s52, v3')
    a('s_lshl_b32 s52, s40, 12'); a('v_add_u32 v12, s52, v4')
    a(f's_mul_i32 s52, s40, {128 * VROW}'); a('v_add_u32 v13, s52, v5')
    a(f'v_mov_b32 v{IDX}, 0xDDDD')
    a(f'v_mov_b32 v{KT+1}, 0x3F80')
    a(f'v_mov_b32 v{QT[0]+1}, 0'); a(f'v_mov_b32 v{QT[1]+1}, 0')
    a('v_mov_b32 v15, 0'); a('v_mov_b32 v14, 0x3F803F80')
    a('v_cmp_eq_u32 vcc, 18, v8'); a('v_cndmask_b32 v15, v15, v14, vcc')
    a('v_cmp_eq_u32 vcc, 28, v8'); a('v_cndmask_b32 v15, v15, v14, vcc')
    for r in range(16):
        a(f'v_mov_b32 v{VF+r}, v15')
    for r in range(32):
        a(f'v_mov_b32 v{O0+r}, 0')
    og_addr(46)
    p3_setup()
    a('s_mov_b32 s47, 0')
    a(f'v_mov_b32 v24, {FLAG_L}')

    def rd_kt(u): a(f'ds_read_b32 v{KT}, v12 offset:{u * 256}')
    def rd_km(u, i): a(f'ds_read_b128 {vr(KM + 4 * i)}, v11 offset:{(2 * u + i) * 1024}')

    def rd_v(u, i):
        a('s_mov_b64 exec, s[34:35]')
        a(f'ds_read_b128 {vr(VF + 4 * i)}, v13 offset:{(8 * u + 2 * i) * VROW}')
        a('s_mov_b64 exec, -1')

    def qk2b(S, t): a(f'v_mfma_f32_32x32x4_2b_bf16 {vr(S, 32)}, {vr(KT, 2)}, {vr(QT[t], 2)}, 0')
    def qk(S, i, t): a(f'v_mfma_f32_32x32x16_bf16 {vr(S + 16 * i, 16)}, {vr(KM + 4 * i)}, {vr(QM[t])}, {vr(S + 16 * i, 16)}')
    def pv(S, i, O): a(f'v_smfmac_f32_32x32x32_bf16 {vr(O, 16)}, {vr(VF + 4 * i)}, {vr(S + 8 * i, 8)}, v{IDX}')

    def rowmax(S, n, dst, tmp):
        a(f'v_max3_f32 v{dst}, v{S}, v{S+1}, v{S+2}')
        a(f'v_max3_f32 v{tmp}, v{S+3}, v{S+4}, v{S+5}')
        for k in range(6, n - 2, 4):
            a(f'v_max3_f32 v{dst}, v{S+k}, v{S+k+1}, v{dst}')
            a(f'v_max3_f32 v{tmp}, v{S+k+2}, v{S+k+3}, v{tmp}')
        a(f'v_max3_f32 v{dst}, v{S+n-2}, v{S+n-1}, v{dst}')
        a(f'v_max_f32 v{dst}, v{dst}, v{tmp}')
        a(f'v_mov_b32 v{tmp}, v{dst}')
        a(f'v_permlane32_swap_b32 v{dst}, v{tmp}')
        a(f'v_max_f32 v{dst}, v{dst}, v{tmp}')

    a('s_barrier')
    a.stamp(5)
    for t in range(2):
        a(f'buffer_load_dwordx4 {vr(QM[t])}, v3, s[16:19], s43 offen offset:{t * 1024}')
        a(f'buffer_load_dword v{QT[t]}, v10, s[16:19], s51 offen offset:{t * 256}')
    a.waitcnt(vm=0)
    a('s_barrier')
    a.stamp(6)
    a(f'ds_read_b32 v{KT}, v4'); a(f'ds_read_b128 {vr(KM)}, v3')
    for i in range(4):
        rd_v(0, i)
    qk2b(SA, 0); qk2b(SB, 1); qk(SA, 0, 0); qk(SB, 0, 1)
    rd_kt(0); rd_km(0, 0); rd_km(0, 1)
    for t, S in ((0, SA), (1, SB)):
        rowmax(S, 16, 18, 19)
        a('v_xor_b32 v18, 0x80000000, v18')
        a(f'v_lshrrev_b32 v{QT[t]+1}, 16, v18')
        if t == 0:
            qk2b(SA, 0)
    qk(SA, 0, 0); qk(SA, 1, 0)
    for r in range(24, 32):
        a(f'v_mov_b32 v{SB+r}, 0')
    a.waitcnt(lg=0)

    def phase(u, t):
        Sc, Sn = (SA, SB) if t == 0 else (SB, SA)
        Oc, Op = (O0, O1) if t == 0 else (O1, O0)
        e = [0]

        def ex(n):
            for r in range(e[0], e[0] + n):
                a(f'v_exp_f32 v{Sc+r}, v{Sc+r}')
            e[0] += n
        if 'pr2' in X:
            if t == 0: a(f's_setprio {3 - u % 4}')
        elif 'noprio' not in X: a(f's_setprio {3 - (2 * u + t) % 4}')
        ex(2)
        pv(Sn, 3, Op)
        if t == 0: rd_v(u, 3)
        ex(4)
        qk2b(Sn, 1 - t)
        if t == 0: rd_kt(u + 1)
        ex(8)
        pv(Sc, 0, Oc)
        if t == 1: rd_v(u + 1, 0)
        ex(4)
        qk(Sn, 0, 1 - t)
        if t == 0: rd_km(u + 1, 0)
        ex(4)
        pv(Sc, 1, Oc)
        if t == 1: rd_v(u + 1, 1)
        ex(4)
        qk(Sn, 1, 1 - t)
        if t == 0: rd_km(u + 1, 1)
        ex(4)
        pv(Sc, 2, Oc)
        if t == 1: rd_v(u + 1, 2)
        ex(2)

    UN = 4 if 'un4' in X else 2

    def body():
        for u in range(UN):
            if u == UN - 2:
                if UN == 2:
                    a('s_bitcmp1_b32 0xA, s47'); a('s_cbranch_scc0 K2_NOB1')
                else:
                    a('s_cmp_lt_u32 s47, 2'); a('s_cbranch_scc0 K2_NOB1')
                a('s_barrier')
                a.label('K2_NOB1')
            phase(u, 0); phase(u, 1)

    def tail():
        a(f'v_add_u32 v11, {UN * 2048}, v11'); a(f'v_add_u32 v12, {UN * 256}, v12'); a(f'v_add_u32 v13, {UN * 8 * VROW}, v13')
        a('s_add_u32 s47, s47, 1'); a(f's_cmp_lg_u32 s47, {16 // UN}'); a('s_cbranch_scc1 K2_LOOP')
    n0 = len(a.lines); st = a.snapshot(); body(); tail(); back = a.snapshot(); del a.lines[n0:]; a.restore(st)
    a.lg = [set(x) for x in back[5]]
    a.raw('.p2align 6')
    a.loop('K2_LOOP', body, tail)
    a.stamp(7)
    a('s_setprio 3')
    pv(SB, 3, O1)
    a('v_lshlrev_b32 v12, 2, v8')
    a(f'buffer_load_dword v{G}, v12, s[16:19], s75 offen')

    a('v_cmp_eq_u32 vcc, 0, v9')
    a(f'v_cndmask_b32 v{O0+10}, v{O0+12}, v{O0+10}, vcc')
    a(f'v_cndmask_b32 v{O1+10}, v{O1+12}, v{O1+10}, vcc')
    a(f'v_max_f32 v19, v{O0+10}, v{O1+10}')
    a(f'v_fmac_f32 v19, 0, v{O0+10}'); a(f'v_fmac_f32 v19, 0, v{O1+10}')
    for r in range(10):
        a(f'v_fmac_f32 v19, 0, v{O0+r}'); a(f'v_fmac_f32 v19, 0, v{O1+r}')
    a('v_mov_b32 v20, 0x5F000000')
    a('v_cmp_nlt_f32 vcc, v19, v20')
    a('s_cmp_eq_u64 vcc, 0')
    a('s_cbranch_scc1 K2_OK')
    a('v_mov_b32 v19, 1')
    a('ds_write_b32 v24, v19')
    a.label('K2_OK')
    a.waitcnt(lg=0)
    a('s_barrier')
    if 'tl' in X: a.stamp(2)
    a('ds_read_b32 v19, v24')
    a('s_mul_i32 s52, s36, 3072'); a(f's_add_u32 s52, s52, {XB}')
    a('s_xor_b32 s53, s36, 4'); a('s_mul_i32 s53, s53, 3072'); a(f's_add_u32 s53, s53, {XB}')
    a('v_add_u32 v25, s52, v3'); a('v_add_u32 v26, s53, v3')
    a('v_readfirstlane_b32 s52, v19')
    a('s_cmp_lg_u32 s52, 0')
    a('s_cbranch_scc1 K2_SLOW')
    a('s_cmp_eq_u32 s40, 0')
    a('s_cbranch_scc1 K2_X0')
    for r in range(11):
        a(f'v_swap_b32 v{O0+r}, v{O1+r}')
    a.label('K2_X0')
    a.nop(1)
    for k in range(3):
        a(f'ds_write_b128 v25, {vr(O1 + 4 * k)} offset:{k * 1024}')
    a.waitcnt(lg=0)
    a('s_barrier')
    for k in (2, 0, 1):
        a(f'ds_read_b128 {vr(O1 + 4 * k)}, v26 offset:{k * 1024}')
    for r in (10, 8, 0, 2, 4, 6):
        a(f'v_pk_add_f32 v[{O0+r}:{O0+r+1}], v[{O0+r}:{O0+r+1}], v[{O1+r}:{O1+r+1}]')
    a.label('K2_EPI')
    a.nop(2)
    a(f'v_rcp_f32 v18, v{O0+10}')
    a(f'v_mul_f32 v18, v18, v{G}')
    og_store(O0, 18, 28, 62, 64)
    if 'tl' in X: a.stamp(3)
    a('s_setprio 0')
    six(OGF, 69, 18432, '')
    a('s_xor_b32 s45, s36, 4'); a('s_mul_i32 s45, s45, 3072')
    base = frag_src(120)
    assert all(frag_src(120 + i) == base + i * 1024 for i in range(6)) and all(frag_src(126 + i) == frag_src(126) + i * 1024 for i in range(18))
    a(f's_add_u32 s52, s45, {base}'); a(f's_add_u32 s55, s45, {frag_src(126) - 6 * 1024}')
    a('s_cmp_ge_u32 s45, 6144'); a('s_cselect_b32 s52, s55, s52'); a('s_add_u32 s52, s52, s67')
    a(f's_add_u32 m0, s45, {XB}')
    a('s_cmp_ge_u32 s68, 0x7FF00000'); a('s_cbranch_scc1 K2_NOXB')
    six(XW0, 68, 18432, '')
    a.label('K2_NOXB')
    a('s_barrier')
    if 'tl' in X: a.stamp(4)
    for i in range(3):
        a(f'buffer_load_dwordx4 v3, s[16:19], s52 offen offset:{i * 1024} lds')
    st_p3c = a.snapshot()
    a('s_branch K2_P3')

    a.label('K2_SLOW')
    a.fence()
    a('s_cmp_eq_u32 s40, 0')
    a('s_cbranch_scc1 K2_S0')
    for r in range(5):
        a(f'v_mov_b32 v{QM[0]+r}, v{QM[1]+r}')
    a.label('K2_S0')
    a(f'v_mov_b32 v{QT[0]+1}, 0')
    a('v_mov_b32 v20, 0xFF800000')
    for r in range(16):
        a(f'v_mov_b32 v{O0+r}, 0')
    a('v_mov_b32 v11, v3'); a('v_mov_b32 v12, v4'); a('v_mov_b32 v13, v5')
    a('s_mov_b32 s47, 32')
    a.label('K2_SLOW_LOOP')
    a.fence()
    rd_kt(0); rd_km(0, 0); rd_km(0, 1)
    for i in range(4):
        rd_v(0, i)
    qk2b(SA, 0); qk(SA, 0, 0); qk(SA, 1, 0)
    rowmax(SA, 32, 18, 19)
    a('v_max_f32 v18, v18, v20')
    a('v_sub_f32 v19, v20, v18'); a('v_exp_f32 v19, v19')
    a('v_mov_b32 v20, v18')
    for r in range(32):
        a(f'v_sub_f32 v{SA+r}, v{SA+r}, v18')
    for r in range(32):
        a(f'v_exp_f32 v{SA+r}, v{SA+r}')
    for r in range(16):
        a(f'v_mul_f32 v{O0+r}, v{O0+r}, v19')
    for i in range(4):
        pv(SA, i, O0)
    a('v_add_u32 v11, 2048, v11'); a('v_add_u32 v12, 256, v12'); a(f'v_add_u32 v13, {8 * VROW}, v13')
    a('s_sub_u32 s47, s47, 1'); a('s_cmp_lg_u32 s47, 0'); a('s_cbranch_scc1 K2_SLOW_LOOP')
    a.fence()
    a('v_cmp_eq_u32 vcc, 0, v9')
    a(f'v_cndmask_b32 v{O0+10}, v{O0+12}, v{O0+10}, vcc')
    a.hazard_fence()
    a('s_barrier')
    a('s_branch K2_EPI')

    a.restore(st_entry)
    a.label('K2_HELPER')
    a('s_setprio 3')
    KVB, KVA = 32, 64
    QB = 96
    GB = 108
    a('v_lshlrev_b32 v7, 3, v2')
    a('s_lshl_b32 s40, s39, 10')
    a('s_add_u32 s46, s41, s40'); a(f's_add_u32 s46, s46, {WS_KAM}')
    a('s_lshl_b32 s47, s39, 9'); a('s_add_u32 s47, s47, s44'); a(f's_add_u32 s47, s47, {WS_KAT}')
    a('s_add_u32 s49, s48, s40'); a(f's_add_u32 s49, s49, {WS_VA}')
    a('s_lshl_b32 s50, s39, 8')
    srd()
    a('s_lshr_b32 s52, s37, 1')
    for i, add in enumerate((16, 32, 0)):
        a(f's_add_u32 s53, s52, {add}'); a('s_mul_i32 s53, s53, 43'); a(f's_lshr_b32 s{54+i}, s53, 8')
    a('v_and_b32 v25, 15, v2'); a('v_lshlrev_b32 v25, 4, v25')
    a('v_mov_b32 v26, s54'); a('v_mov_b32 v27, s55'); a('v_cmp_le_u32 vcc, 16, v2'); a('v_cndmask_b32 v26, v26, v27, vcc')
    a('v_add_u32 v25, v25, v26')
    a('v_and_b32 v26, 1, v2'); a('s_lshl_b32 s53, s38, 1'); a('v_add_u32 v26, s53, v26'); a('v_lshlrev_b32 v26, 4, v26')
    a('s_add_u32 s57, s56, 8'); a('s_add_u32 s58, s54, 8'); a('s_add_u32 s59, s55, 8')
    a('v_mov_b32 v27, s56')
    for lane, sg in ((34, 57), (36, 58), (38, 59)):
        a(f'v_mov_b32 v28, s{sg}'); a(f'v_cmp_le_u32 vcc, {lane}, v2'); a('v_cndmask_b32 v27, v27, v28, vcc')
    a('v_mov_b32 v28, 0'); a('v_cmp_le_u32 vcc, 40, v2'); a('v_cndmask_b32 v27, v27, v28, vcc')
    a('v_add_u32 v26, v26, v27')
    a('v_cmp_le_u32 vcc, 32, v2'); a('v_cndmask_b32 v25, v25, v26, vcc')
    a('v_lshlrev_b32 v6, 7, v25')
    a(f's_mov_b32 s75, {WS_FL1}')

    def poll(name, voff, soff, mask=None, sleep=4):
        if mask:
            a(f's_and_b32 s76, s80, {mask[0]}'); a(f's_and_b32 s77, s81, {mask[1]}')
            a('s_cmp_eq_u64 s[76:77], 0'); a(f's_cbranch_scc1 {name}_OK')
        a('s_mov_b32 s60, 0')
        a.label(name)
        a(f'buffer_load_dwordx2 v[26:27], v{voff}, s[16:19], s{soff} offen sc1')
        a.waitcnt(vm=0)
        a('v_cmp_ne_u64 vcc, s[78:79], v[26:27]')
        if mask:
            a('s_mov_b64 s[80:81], vcc'); a(f's_and_b32 vcc_lo, vcc_lo, {mask[0]}'); a(f's_and_b32 vcc_hi, vcc_hi, {mask[1]}')
        a('s_cmp_eq_u64 vcc, 0'); a(f's_cbranch_scc1 {name}_OK')
        a(f's_sleep {sleep}')
        a('s_add_u32 s60, s60, 1'); a('s_cmp_lt_u32 s60, 0x40000'); a(f's_cbranch_scc1 {name}')
        a.label(f'{name}_OK')
    a('s_mov_b64 s[80:81], -1')
    a('s_cmp_lg_u32 s39, 0'); a('s_cbranch_scc1 K2_PF1_OK')
    poll('K2_PF1', 6, 75, (0x03030303, 3), 2)
    a('s_barrier')
    if 'hs' in X: a.stamp(2)

    def dma(kind, n, tag):
        if kind == 'KM':
            a(f's_add_u32 m0, s40, {KM_L + n * 4096}'); a(f's_add_u32 s52, s46, {n * 4096}')
            a('buffer_load_dwordx4 v3, s[16:19], s52 offen lds', tag=tag)
        elif kind == 'V':
            a(f's_add_u32 m0, s40, {V_L + n * 4096}'); a(f's_add_u32 s52, s49, {n * 4096}')
            a('buffer_load_dwordx4 v3, s[16:19], s52 offen lds', tag=tag)
        else:
            a(f's_add_u32 m0, s50, {KT_L + n * 1024}'); a(f's_add_u32 s52, s47, {n * 2048}')
            a('buffer_load_dword v7, s[16:19], s52 offen lds', tag=tag)
    for hb in range(2):
        dma('KM', 8 * hb, 'b0'); dma('KT', 4 * hb, 'b0'); dma('V', 9 * hb, 'b0')
    for hb in range(2):
        dma('KM', 8 * hb + 1, 'b0'); dma('V', 9 * hb + 1, 'b0')
    a('v_mov_b32 v15, 0'); a(f'v_mov_b32 v24, {FLAG_L}'); a('ds_write_b32 v24, v15')
    a('v_mov_b32 v14, 0x3F803F80')
    a('v_cmp_eq_u32 vcc, 18, v8'); a('v_cndmask_b32 v13, v15, v14, vcc')
    for st in range(4):
        for r in range(4):
            a(f'v_mov_b32 v{KVB+8*st+r}, 0')
            a(f'v_mov_b32 v{KVB+8*st+4+r}, v13')
    for r in range(16):
        a(f'v_mov_b32 v{KVA+r}, 0')
    a.wait_vm_tag('b0')
    a.waitcnt(lg=0)
    a('s_barrier')
    a(f's_mul_i32 s61, s42, {4 * VROW}'); a('s_add_u32 s61, s61, s48')
    a(f's_add_u32 s62, s61, {WS_KB}'); a(f's_add_u32 s63, s61, {WS_VB}')
    order = []
    for n in range(2, 9):
        for hb in range(2):
            if n < 8: order.append(('KM', 8 * hb + n))
            order.append(('V', 9 * hb + n))
            if n in (2, 4, 6): order.append(('KT', 4 * hb + n // 2))
    first = [x for x in order if {'KM': x[1] % 8 < 4, 'V': x[1] % 9 < 4, 'KT': x[1] % 4 < 2}[x[0]]]
    rest = [x for x in order if x not in first]
    poll('K2_PF2', 6, 75, (0x0F0F0F0F, -1))
    for (k, n) in first:
        dma(k, n, 'b1')
    a('s_mov_b64 exec, s[34:35]')
    for st in range(4):
        a(f'buffer_load_dwordx4 {vr(KVB + 8 * st)}, v17, s[16:19], s62 offen offset:{st * 2 * VROW}')
        a(f'buffer_load_dwordx4 {vr(KVB + 8 * st + 4)}, v17, s[16:19], s63 offen offset:{st * 2 * VROW}')
    a('s_mov_b64 exec, -1')
    st_pf3 = a.snapshot()
    poll('K2_PF3', 6, 75, (-1, -1))
    a.restore(st_pf3)
    for (k, n) in rest[:6]:
        dma(k, n, 'b2')
    for st in range(4):
        a(f'v_mfma_f32_32x32x16_bf16 {vr(KVA, 16)}, {vr(KVB + 8 * st)}, {vr(KVB + 8 * st + 4)}, {vr(KVA, 16)}')
    a('v_mul_u32_u24 v18, 80, v8'); a('v_lshl_add_u32 v18, v9, 4, v18')
    a('s_mul_i32 s61, s39, 1520'); a(f's_add_u32 s61, s61, {KVP_L}'); a('v_add_u32 v18, s61, v18')
    a('s_mov_b32 exec_lo, 0x7FFFF'); a('s_mov_b32 exec_hi, 0x7FFFF')
    a(f'ds_write_b128 v18, {vr(KVA)}')
    a(f'ds_write_b128 v18, {vr(KVA + 4)} offset:32')
    a('s_mov_b32 exec_hi, 0')
    a(f'ds_write_b64 v18, {vr(KVA + 8, 2)} offset:64')
    a('s_mov_b64 exec, -1')
    a.wait_vm_tag('b1')
    a.waitcnt(lg=0)
    a('s_barrier')
    a('s_mul_i32 s57, s37, 12288'); a(f's_add_u32 s57, s57, {WS_KVS}')
    a('s_cmp_lg_u32 s39, 0')
    a('s_cbranch_scc1 K2_HPUB')
    st_skip = a.snapshot()
    a('v_min_u32 v19, 30, v2'); a('v_lshlrev_b32 v19, 4, v19'); a('v_add_u32 v19, 1024, v19')
    a(f'v_add_u32 v18, {KVP_L}, v3'); a(f'v_add_u32 v20, {KVP_L}, v19')
    for k in range(4):
        a(f'ds_read_b128 {vr(KVB + 8 * k)}, v18 offset:{k * 1520}')
        a(f'ds_read_b128 {vr(KVB + 8 * k + 4)}, v20 offset:{k * 1520}')
    for k in range(1, 4):
        for r in range(0, 8, 2):
            a(f'v_pk_add_f32 v[{KVB+r}:{KVB+r+1}], v[{KVB+r}:{KVB+r+1}], v[{KVB+8*k+r}:{KVB+8*k+r+1}]')
    a('s_mul_i32 s58, s38, 1536'); a('s_add_u32 s58, s58, s57')
    a(f'buffer_store_dwordx4 {vr(KVB)}, v3, s[16:19], s58 offen sc1')
    a(f'buffer_store_dwordx4 {vr(KVB + 4)}, v19, s[16:19], s58 offen sc1')
    a.waitcnt(vm=0)
    a('v_mov_b32 v18, s78'); a('v_mov_b32 v19, s79'); a('v_mov_b32 v20, 1520')
    a('s_mov_b64 exec, 1')
    a('buffer_store_dwordx2 v[18:19], v20, s[16:19], s58 offen sc1')
    a('s_mov_b64 exec, -1')
    a.restore(st_skip)
    a.label('K2_HPUB')
    a.nop(2)
    for (k, n) in rest[6:]:
        dma(k, n, 'b2')
    og_addr(42)
    for r in range(4):
        a(f'v_mov_b32 v{28+r}, -1')
    for t in range(2):
        a(f's_add_u32 s52, s62, {t * 73728}'); a(f's_add_u32 s53, s64, {t * 73728}')
        a('buffer_store_dwordx4 v[28:31], v21, s[16:19], s52 offen sc1')
        a('s_mov_b32 exec_hi, 0')
        a('buffer_store_dword v28, v22, s[16:19], s53 offen sc1')
        a('s_mov_b32 exec_hi, -1')
    a('v_mov_b32 v11, 0x7FF00000'); a('v_cmp_eq_u32 vcc, 0, v9'); a('v_cndmask_b32 v11, v11, v10, vcc')
    a('v_lshlrev_b32 v12, 2, v8')
    a(f's_add_u32 s51, s43, {WS_QBM}'); a(f's_add_u32 s52, s45, {WS_QBT}')
    a('s_lshl_b32 s53, s42, 7'); a(f's_add_u32 s53, s53, {WS_G}')
    for t in range(2):
        a(f'buffer_load_dwordx4 {vr(QB + 6 * t)}, v3, s[16:19], s51 offen offset:{t * 1024}')
        a(f'buffer_load_dword v{QB + 6 * t + 4}, v11, s[16:19], s52 offen offset:{t * 256}')
        a(f'v_mov_b32 v{QB + 6 * t + 5}, 0')
        a(f'buffer_load_dword v{GB + t}, v12, s[16:19], s53 offen offset:{t * 128}')
    a('v_min_u32 v18, 18, v8'); a('v_mul_u32_u24 v19, 80, v18'); a('v_lshl_add_u32 v18, v9, 5, v19')
    a('v_and_b32 v25, 7, v2'); a('v_mul_u32_u24 v25, 1536, v25'); a('v_add_u32 v25, 1520, v25')
    a.waitcnt(vm=0)
    a('s_barrier')
    if 'hs' in X: a.stamp(3)
    poll('K2_POLL', 25, 57)
    if 'hs' in X: a.stamp(4)
    TS = [32, 40, 48, 56, 64, 72, 80, 88]
    a('v_min_u32 v20, 30, v2'); a('v_lshlrev_b32 v20, 4, v20'); a('v_add_u32 v20, 1024, v20')
    for q in range(8):
        d = TS[q]
        if q % 2 == 0: a(f's_add_u32 s58, s57, {q * 1536}')
        o = (q % 2) * 1536
        a(f'buffer_load_dwordx4 {vr(d)}, v3, s[16:19], s58 offen offset:{o}')
        a(f'buffer_load_dwordx4 {vr(d + 4)}, v20, s[16:19], s58 offen offset:{o}')
    a('s_mul_i32 s58, s39, 1520'); a(f's_add_u32 s58, s58, {KVP_L}')
    a('v_add_u32 v25, s58, v3'); a('v_add_u32 v20, s58, v20'); a('v_add_u32 v18, s58, v18'); a('v_add_u32 v19, s58, v19')
    for q in range(1, 8):
        for r in range(0, 8, 2):
            a(f'v_pk_add_f32 v[{32+r}:{33+r}], v[{32+r}:{33+r}], v[{TS[q]+r}:{TS[q]+r+1}]')
    a('ds_write_b128 v25, v[32:35]'); a('ds_write_b128 v20, v[36:39]')
    a.waitcnt(lg=0)
    a('ds_read_b128 v[32:35], v18'); a('ds_read_b128 v[36:39], v18 offset:16'); a('ds_read_b64 v[40:41], v19 offset:64')
    for k in range(5):
        a(f'v_cvt_pk_bf16_f32 v{44+k}, v{32+2*k}, v{33+2*k}')
    a('v_mov_b32 v49, 0')
    for t in range(2):
        D = 64 + 16 * t
        a(f'v_mfma_f32_32x32x16_bf16 {vr(D, 16)}, v[44:47], {vr(QB + 6 * t)}, 0')
        a(f'v_mfma_f32_32x32x8bf16_1k {vr(D, 16)}, v[48:49], {vr(QB + 6 * t + 4, 2)}, {vr(D, 16)}')
    a('s_add_u32 s62, s62, 18432'); a('s_add_u32 s64, s64, 18432')
    for t in range(2):
        D = 64 + 16 * t
        a('v_cmp_eq_u32 vcc, 0, v9')
        a(f'v_cndmask_b32 v19, v{D+12}, v{D+10}, vcc')
        a(f'v_add_f32 v19, {EPS_BITS}, v19')
        a('v_rcp_f32 v19, v19')
        a(f'v_sub_f32 v20, 1.0, v{GB+t}')
        a('v_mul_f32 v19, v19, v20')
        og_store(D, 19, 28 + 0 * t, 62, 64)
        if t == 0:
            a('s_add_u32 s62, s62, 73728'); a('s_add_u32 s64, s64, 73728')
    a('s_lshl_b32 s59, s38, 2'); a('s_add_u32 s59, s59, s39'); a('s_lshl_b32 s59, s59, 12'); a(f's_add_u32 s59, s59, {WS_FLG + 2048 * 128}')
    a('v_mov_b32 v4, s78'); a('v_mov_b32 v5, s79'); a('v_mov_b32 v6, s37'); a('v_lshlrev_b32 v6, 7, v6')
    a.waitcnt(vm=0)
    a('s_mov_b64 exec, 1')
    a('buffer_store_dwordx2 v[4:5], v6, s[16:19], s59 offen sc1')
    a('s_mov_b64 exec, -1')
    if 'hs' in X: a.stamp(5)
    if True:
        a('s_mov_b32 s20, s82'); a('s_mov_b32 s21, s83'); a('s_mov_b32 s22, 256'); a('s_mov_b32 s23, 0x00020000')
        a('v_mov_b32 v25, 8'); a('s_mov_b32 s60, 0')
        a.label('K2_PW')
        a('buffer_load_dword v26, v25, s[20:23], 0 offen sc1')
        a.waitcnt(vm=0)
        a('v_readfirstlane_b32 s58, v26')
        a('s_cmp_ge_u32 s58, 256'); a('s_cbranch_scc1 K2_PW_OK')
        a('s_sleep 8')
        a('s_add_u32 s60, s60, 1'); a('s_cmp_lt_u32 s60, 0x40000'); a('s_cbranch_scc1 K2_PW')
        a.label('K2_PW_OK')
    p3_setup()
    six(XW0, 68, 18432, '')
    STG = (80, 104, 128)
    a('s_mul_i32 s45, s39, 36864'); a('s_add_u32 s45, s45, s67')
    for i in range(3):
        six(STG[i], 45, 18432 + i * 6144, '')
    def a_src(j):
        srcs = [frag_src(72 + 12 * l + j) for l in range(4)]
        a('s_cmp_eq_u32 s39, 1'); a(f's_mov_b32 s52, {srcs[0]}'); a(f's_cselect_b32 s52, {srcs[1]}, s52')
        a('s_cmp_eq_u32 s39, 2'); a(f's_cselect_b32 s52, {srcs[2]}, s52')
        a('s_cmp_eq_u32 s39, 3'); a(f's_cselect_b32 s52, {srcs[3]}, s52'); a('s_add_u32 s52, s52, s67')
    STA = [152, 156, 160, 164, 8, 12, 16, 20, 24]
    for j in range(4):
        a_src(j)
        a(f'buffer_load_dwordx4 {vr(STA[j])}, v3, s[16:19], s52 offen')
    if True:
        a('s_lshr_b32 s53, s2, 3'); a('s_lshl_b32 s53, s53, 2'); a('s_add_u32 s53, s53, s39')
        a('s_mul_i32 s53, s53, 11264'); a(f's_add_u32 s53, s53, {WS_WOT}')
        for k in range(11):
            if k % 4 == 0 and k: a('s_add_u32 s53, s53, 4096')
            a(f'buffer_load_dwordx4 v[4:7], v3, s[16:19], s53 offen offset:{(k % 4) * 1024}', tag='untracked')
    a('v_lshlrev_b32 v30, 7, v8')
    poll('K2_PB', 30, 74)
    if 'hs' in X: a.stamp(6)
    six(OGF, 69, 18432, '')
    for k in range(12):
        if k % 4 == 0: a(f's_add_u32 s56, s69, {18432 - 12288 + k * 1024}')
        a(f'buffer_load_dwordx4 v[4:7], v3, s[16:19], s56 offen offset:{(k % 4) * 1024}', tag='untracked')
    for j in range(4, 9):
        a_src(j)
        a(f'buffer_load_dwordx4 {vr(STA[j])}, v3, s[16:19], s52 offen')
    a('s_mul_i32 s45, s39, 18432'); a('v_add_u32 v29, s45, v3')
    a('s_mul_i32 s45, s39, 12288'); a('s_add_u32 s45, s45, 73728'); a('v_add_u32 v28, s45, v3')
    a.waitcnt(vm=0)
    if 'hs' in X: a.stamp(7)
    a('s_setprio 0')
    a('s_barrier')
    a('s_barrier')
    for i in range(18):
        a(f'ds_write_b128 v29, {vr(STG[i // 6] + 4 * (i % 6))} offset:{i * 1024}')
    a.waitcnt(lg=0)
    a('s_barrier')
    if 'hp2' in X: a('s_setprio 2')
    for j in range(9):
        a(f'ds_write_b128 v28, {vr(STA[j])} offset:{j * 1024}')
    for j in range(9, 12):
        a(f's_add_u32 m0, s45, {j * 1024}')
        a_src(j)
        a('buffer_load_dwordx4 v3, s[16:19], s52 offen lds')
    a.waitcnt(lg=0)
    a.restore(st_p3c)
    phase3(a, X, six)
    a.label('K2_END')
    a('s_endpgm')


def phase3(a, X, six):
    a.label('K2_P3')
    a.nop(2)
    a('s_cmp_ge_u32 s68, 0x7FF00000'); a('s_cbranch_scc1 K2_P3_4')
    st = a.snapshot()
    phase3v(a, X, six, 5)
    a('s_branch K2_FIN')
    a.restore(st)
    a.vm = [e for e in a.vm if not (e['d'] & {('v', r) for r in range(P3_XW[0], P3_XW[0] + 24)})]
    a.label('K2_P3_4')
    phase3v(a, X, six, 4)
    a.label('K2_FIN')
    if a.prof:
        if 'hs' in X:
            a('s_cmp_lt_u32 s36, 8'); a('s_cbranch_scc1 K2_END'); a('s_sub_u32 s36, s36, 8')
        else:
            a('s_cmp_ge_u32 s36, 8'); a('s_cbranch_scc1 K2_END')
        a.reset_state()
        a.stamp_flush(6, 0, 3, 36, 2, WS_PROF)


def phase3v(a, X, six, NT):
    WR, ACC = 128, 8
    OGF, XW = 32, 80
    a('v_add_u32 v6, s66, v3')
    a('v_add_u32 v7, 73728, v6')

    def wrd(hf, k):
        for nt in range(4):
            a(f'ds_read_b128 {vr(WR + (k % 2) * 16 + 4 * nt)}, v{6 + hf} offset:{nt * 18432 + k * 1024}')

    def half(hf, extra=None):
        for k in range(6):
            for nt in range(NT):
                d = ACC + 4 * nt
                A = P3_XW[hf] + 4 * k if nt == 4 else WR + (k % 2) * 16 + 4 * nt
                a(f'v_mfma_f32_16x16x32_bf16 {vr(d)}, {vr(A)}, {vr(P3_OG[hf] + 4 * k)}, {"0" if k == 0 and hf == 0 else vr(d)}')
            if k + 2 < 6:
                wrd(hf, k + 2)
            if extra: extra(k)
    wrd(0, 0); wrd(0, 1)
    a('s_add_u32 s56, s68, 4096'); a('s_add_u32 s57, s69, 4096')

    def a_loads(k):
        for j in (((0, 1, 2), (3, 4, 5), (6, 7, 8), (9, 10, 11), (), ()) if 'ea' in X else ((0, 1, 2), (3, 4, 5), (), (6, 7), (8, 9), (10, 11)))[k]:
            i = j % 6
            if j < 6 and NT == 4:
                continue
            if j < 6:
                a(f'buffer_load_dwordx4 {vr(P3_XW[1] + 4 * i)}, v3, s[16:19], s{68 if i < 4 else 56} offen offset:{(i % 4) * 1024}')
            else:
                a(f'buffer_load_dwordx4 {vr(P3_OG[1] + 4 * i)}, v3, s[16:19], s{69 if i < 4 else 57} offen offset:{(i % 4) * 1024}')
    half(0, a_loads)
    if 'tl' in X: a.stamp(5)
    a('s_mov_b32 s20, s4'); a('s_mov_b32 s21, s5'); a(f's_mov_b32 s22, {2048*1152}'); a('s_mov_b32 s23, 0x00020000')
    a('v_and_b32 v5, 15, v2'); a('v_lshrrev_b32 v31, 4, v2')
    a('s_lshl_b32 s58, s73, 4'); a('v_add_u32 v5, s58, v5'); a('v_mul_u32_u24 v5, 1152, v5')
    a('v_lshl_add_u32 v28, v31, 3, v5')
    a('v_and_b32 v29, 1, v31'); a('v_lshl_add_u32 v5, v29, 5, v5')
    a('v_lshrrev_b32 v29, 1, v31'); a('v_lshl_add_u32 v29, v29, 4, v5')
    a('s_mov_b32 s60, 0')
    a.waitcnt(vm=0)
    a('s_barrier')
    wrd(1, 0); wrd(1, 1)
    a(f's_branch K2_P3CHK{NT}')
    a.label(f'K2_P3RETRY{NT}')
    six(P3_OG[1], 69, 0, ' sc1')
    a.waitcnt(vm=0)
    a.label(f'K2_P3CHK{NT}')
    R = P3_OG[1]
    a(f'v_max3_u32 v31, v{R}, v{R+1}, v{R+2}'); a(f'v_max3_u32 v5, v{R+3}, v{R+4}, v{R+5}')
    for k in range(6, 22, 4):
        a(f'v_max3_u32 v31, v{R+k}, v{R+k+1}, v31'); a(f'v_max3_u32 v5, v{R+k+2}, v{R+k+3}, v5')
    a(f'v_max3_u32 v31, v{R+22}, v{R+23}, v31'); a('v_max_u32 v31, v31, v5')
    a('v_cmp_eq_u32 vcc, -1, v31')
    a('s_add_u32 s60, s60, 1'); a('s_cmp_lt_u32 s60, 0x2000'); a('s_cselect_b64 s[76:77], -1, 0')
    a('s_and_b64 vcc, vcc, s[76:77]')
    a(f's_cbranch_scc1 K2_P3RETRY{NT}')
    if 'tl' in X: a.stamp(6)
    a('s_mul_i32 s58, s36, 5120'); a('v_add_u32 v6, s58, v3')
    half(1)
    a('s_cmp_eq_u32 s66, 0'); a(f's_cbranch_scc1 K2_P3R{NT}')
    st = a.snapshot()
    for nt in range(NT):
        a(f'ds_write_b128 v6, {vr(ACC + 4 * nt)} offset:{nt * 1024}')
    a.waitcnt(lg=0)
    a('s_barrier')
    a('s_branch K2_FIN')
    a.restore(st)
    a.label(f'K2_P3R{NT}')
    a('s_barrier')
    for j in range(2):
        for nt in range(NT):
            a(f'ds_read_b128 {vr(OGF + (j * 5 + nt) * 4)}, v6 offset:{(j + 1) * 20480 + nt * 1024}')
    for nt in range(NT):
        d = ACC + 4 * nt
        for j in range(2):
            s_ = OGF + (j * 5 + nt) * 4
            a(f'v_pk_add_f32 v[{d}:{d+1}], v[{d}:{d+1}], v[{s_}:{s_+1}]')
            a(f'v_pk_add_f32 v[{d+2}:{d+3}], v[{d+2}:{d+3}], v[{s_+2}:{s_+3}]')
        t = XW + nt * 2
        a(f'v_cvt_pk_bf16_f32 v{t}, v{d}, v{d+1}'); a(f'v_cvt_pk_bf16_f32 v{t+1}, v{d+2}, v{d+3}')
        if nt % 2 == 1:
            t0 = t - 2
            a(f'v_permlane16_swap_b32 v{t0}, v{t0+2}'); a(f'v_permlane16_swap_b32 v{t0+1}, v{t0+3}')
            a(f'buffer_store_dwordx4 {vr(t0)}, v29, s[20:23], s72 offen offset:{(nt - 1) * 32}' + (' sc1' if 'osc1' in X else ''))
        elif nt == 4:
            a(f'buffer_store_dwordx2 {vr(t, 2)}, v28, s[20:23], s71 offen' + (' sc1' if 'osc1' in X else ''))


DESC = f"""
.amdhsa_kernel gated_mix__mha_block__linear_attn_block__prompt_kernel
  .amdhsa_next_free_vgpr {NV2}
  .amdhsa_next_free_sgpr 102
  .amdhsa_accum_offset {NV2}
  .amdhsa_group_segment_fixed_size 0
  .amdhsa_kernarg_size 80
  .amdhsa_user_sgpr_count 2
  .amdhsa_user_sgpr_kernarg_segment_ptr 1
  .amdhsa_system_sgpr_workgroup_id_x 1
.end_amdhsa_kernel
"""
```

```python
from asmlib import Asm
from layout import *

WPART = 14400
SLOT = WPART
NS = 6
XBASE = NS * SLOT
XSLOT = 16384
NX = 4
LDS1 = XBASE + NX * XSLOT
assert XBASE % 128 == 0

ACC = 56
WF = 12
NWF = 3
XF = 24
TOK_L = 153600 - 32


PFS = [(2, 0), (0, 4), (6, 0), (0, 8)]
PF = {'pf1': ([(2, 2)], [(4, 6), (8, 8)]), 'pf2': ([(2, 4)], [(6, 8)]), 'pf3': ([(0, 2)], [(4, 6), (8, 8)]), 'pf4': ([(2, 4)], [])}


def acc(rt, tile):
    return ACC + (tile * 4 + rt) * 4


def vr(b, n=4):
    return f'v[{b}:{b+n-1}]'


def gen(a, X=()):
    prof = a.prof
    a.raw('.p2align 8')
    a.raw('.globl gated_mix__mha_block__linear_attn_block__prompt_kernel')
    a.raw('.type gated_mix__mha_block__linear_attn_block__prompt_kernel,@function')
    a.label('gated_mix__mha_block__linear_attn_block__prompt_kernel')
    a('s_cmp_ge_u32 s2, 256')
    a('s_cbranch_scc1 K2_END')
    a.stamp(0, real=True); a.stamp(1)
    a('s_load_dwordx4 s[4:7], s[0:1], 0')
    a('s_load_dwordx2 s[8:9], s[0:1], 32')
    a('s_load_dwordx2 s[10:11], s[0:1], 48')
    a('s_load_dwordx2 s[12:13], s[0:1], 72')
    a('s_load_dwordx2 s[14:15], s[0:1], 16')
    a('s_load_dwordx2 s[32:33], s[0:1], 40')
    a('s_load_dwordx2 s[82:83], s[0:1], 64')
    a('v_lshrrev_b32 v1, 6, v0')
    a('v_and_b32 v2, 63, v0')
    a('v_readfirstlane_b32 s36, v1')
    a('s_and_b32 s37, s2, 7')
    a('s_lshr_b32 s38, s2, 3')
    a('s_and_b32 s39, s37, 1')
    a('s_lshl_b32 s39, s39, 3')
    a('s_and_b32 s40, s38, 7')
    a('s_add_u32 s39, s39, s40')
    if 'newmap' not in X:
        a('s_lshr_b32 s40, s37, 1'); a('s_lshl_b32 s40, s40, 2'); a('s_lshr_b32 s41, s38, 3'); a('s_add_u32 s40, s40, s41')
    else:
        a('s_and_b32 s40, s37, 6'); a('s_bfe_u32 s41, s38, 0x10003'); a('s_add_u32 s40, s40, s41')
        a('s_lshr_b32 s41, s38, 4'); a('s_lshl_b32 s41, s41, 3'); a('s_add_u32 s40, s40, s41')
    a('s_lshr_b32 s41, s40, 3')
    a('s_and_b32 s42, s40, 7')
    a('s_and_b32 s43, s36, 1')
    a('s_bfe_u32 s44, s36, 0x10001')
    a('s_cmp_ge_u32 s36, 8')
    a('s_cbranch_scc1 K1_HELPER')
    a('s_cmp_lt_u32 s36, 4')
    a('s_cbranch_scc1 K1_COMPUTE')
    st_entry = a.snapshot()
    FILL = [('x', 1), ('w', 2), ('w', 3), ('x', 2), ('w', 4), ('w', 5), ('x', 3)]
    NC = [int(x[1:]) for x in X if x[0] == 'c' and x[1:].isdigit()]
    NC = NC[0] if NC else 0
    a('s_mov_b32 s34, 0xF7FFFFFF')
    a('s_mov_b32 s35, 0x007FFFFF')
    a('v_cmp_le_u32 vcc, 28, v2')
    a('v_mov_b32 v4, 0')
    a('v_mov_b32 v5, 3008')
    a('v_cndmask_b32 v4, v4, v5, vcc')
    a('v_lshl_add_u32 v3, v2, 4, v4')
    a('s_mul_i32 s58, s42, 432')
    a('v_add_u32 v3, s58, v3')
    a('v_lshrrev_b32 v5, 3, v2')
    a('v_and_b32 v6, 7, v2')
    a('v_and_b32 v7, 2, v5')
    a('v_lshlrev_b32 v7, 1, v7')
    a('s_lshl_b32 s58, s43, 1')
    a('v_or_b32 v7, s58, v7')
    a('v_xor_b32 v6, v6, v7')
    a('v_mul_u32_u24 v5, 1152, v5')
    a('v_lshl_add_u32 v4, v6, 4, v5')
    a('s_mul_i32 s60, s44, 7200')
    a('s_mul_i32 s58, s43, 3616')
    a('s_add_u32 s60, s60, s58')
    a('s_and_b32 s58, s36, 3')
    a('s_mul_i32 s61, s58, 27648')
    a('s_lshl_b32 s58, s43, 1'); a('s_lshl_b32 s59, s44, 3'); a('s_add_u32 s58, s58, s59')
    a('s_lshl_b32 s62, s58, 10'); a(f's_add_u32 s62, s62, {XBASE}')
    a('s_lshl_b32 s59, s39, 4'); a('s_add_u32 s58, s58, s59')
    a('s_mul_i32 s63, s58, 9216')
    a('s_and_b32 s58, s38, 7'); a('s_lshr_b32 s59, s38, 3'); a('s_lshl_b32 s59, s59, 1'); a('s_add_u32 s58, s58, s59')
    a('s_sub_u32 s59, s58, 9'); a('s_cmp_ge_u32 s58, 9'); a('s_cselect_b32 s66, s59, s58')
    if 'norot' in X: a('s_mov_b32 s66, 0')
    if 'h1' in X or 'h2' in X: a('s_min_u32 s66, s66, 7' if 'h1' in X else 's_min_u32 s66, s66, 6')
    if 'rot3' in X:
        a('s_mul_i32 s58, s66, 43'); a('s_lshr_b32 s58, s58, 7'); a('s_mul_i32 s66, s58, 3')
    if 'rot2' in X:
        a('s_and_b32 s66, s66, 1'); a('s_lshl_b32 s66, s66, 2')
    a.waitcnt(lg=0)
    a('s_mov_b32 s16, s4'); a('s_mov_b32 s17, s5'); a(f's_mov_b32 s18, {2048*1152}'); a('s_mov_b32 s19, 0x00020000')
    a('s_cmp_eq_u32 s41, 0')
    a('s_cselect_b32 s20, s6, s8'); a('s_cselect_b32 s21, s7, s9')
    a(f's_mov_b32 s22, {576*3456}'); a('s_mov_b32 s23, 0x00020000')
    a('s_mov_b32 s28, s10'); a('s_mov_b32 s29, s11'); a('s_mov_b32 s30, 1152'); a('s_mov_b32 s31, 0x00020000')

    def kblock(A):
        H = [int(x[1:]) for x in X if x[0] == 'h' and x[1:].isdigit()]
        if H:
            h = H[0]
            if A < h:
                a(f's_mov_b32 s67, {A}')
            else:
                n = 9 - h
                a(f's_add_u32 s67, s66, {A - h}')
                for _ in range(2 if n < 8 else 1):
                    a(f's_sub_u32 s58, s67, {n}'); a(f's_cmp_ge_u32 s67, {n}'); a('s_cselect_b32 s67, s58, s67')
                a(f's_add_u32 s67, s67, {h}')
            return
        a(f's_add_u32 s67, s66, {A}'); a('s_sub_u32 s58, s67, 9'); a('s_cmp_ge_u32 s67, 9'); a('s_cselect_b32 s67, s58, s67')

    def xhalf(A, h):
        if h == 0:
            kblock(A)
            a('s_lshl_b32 s69, s67, 7'); a('s_add_u32 s69, s69, s63')
        for n in (2 * h, 2 * h + 1):
            rg = (n & 1) + 4 * (n >> 1)
            a(f's_add_u32 m0, s62, {(A % NX) * XSLOT + rg * 1024}')
            a(f's_add_u32 s65, s69, {rg * 9216}')
            if 'noload' not in X and 'nox' not in X: a('buffer_load_dwordx4 v4, s[16:19], s65 offen lds', tag=('x', A))

    def xchunk(A):
        xhalf(A, 0); xhalf(A, 1)

    def wchunk(c):
        if c % 2 == 0:
            kblock(c // 2)
            a(f's_mul_i32 s68, s67, {64 * 3456}'); a('s_add_u32 s68, s68, s61')
        a('s_mov_b64 exec, s[34:35]')
        for n in range(4):
            a(f's_add_u32 m0, s60, {(c % NS) * SLOT + n * 896}')
            a(f's_add_u32 s64, s68, {((c % 2) * 32 + 2 * n) * 3456}')
            if 'noload' not in X and 'now' not in X: a('buffer_load_dwordx4 v3, s[20:23], s64 offen lds', tag=('w', c))
        a('s_mov_b64 exec, -1')

    PF2 = 'pf2' in X
    if PF2:
        a('v_lshrrev_b32 v20, 3, v2'); a('s_and_b32 s58, s37, 1'); a('s_lshl_b32 s58, s58, 5'); a('s_add_u32 s58, s58, s38')
        a('s_lshl_b32 s58, s58, 2'); a('s_and_b32 s59, s36, 3'); a('s_add_u32 s58, s58, s59'); a('s_lshl_b32 s58, s58, 3')
        a('v_add_u32 v20, s58, v20'); a('v_mul_u32_u24 v20, 1152, v20'); a('v_and_b32 v21, 7, v2'); a('v_lshl_add_u32 v20, v21, 4, v20')
        a('s_lshl_b32 s59, s59, 10'); a('v_lshlrev_b32 v21, 4, v2'); a('v_add_u32 v21, s59, v21')
        a('v_mov_b32 v22, 0'); a('v_mov_b32 v23, 1664'); a('v_cmp_le_u32 vcc, 0x700, v21'); a('v_cndmask_b32 v22, v22, v23, vcc')
        a('v_min_u32 v21, 3568, v21'); a('v_add_u32 v21, v21, v22')
        a('s_bfe_u32 s58, s37, 0x10001'); a('s_mul_i32 s58, s58, 1664'); a('s_mul_i32 s59, s38, 6912'); a('s_add_u32 s58, s58, s59')
        a('v_add_u32 v21, s58, v21')

    def pfx(b):
        if PF2 and b < 9:
            a(f's_mov_b32 s58, {b * 128}'); a('buffer_load_dwordx4 v[24:27], v20, s[16:19], s58 offen', tag='pf')

    def pfw(b):
        if PF2 and b < 9:
            a(f's_mov_b32 s58, {b * 64 * 3456}'); a('buffer_load_dwordx4 v[28:31], v21, s[20:23], s58 offen', tag='pf')
    xchunk(0); wchunk(0)
    a('s_lshl_b32 s72, s40, 3'); a('s_or_b32 s72, s72, s36')
    a('s_cmp_lg_u32 s72, 4'); a('s_cbranch_scc1 K1_NGL')
    a('v_lshlrev_b32 v19, 1, v2')
    for g in range(9):
        kblock(g); a('s_lshl_b32 s58, s67, 7')
        a(f'buffer_load_ushort v{41+g}, v19, s[28:31], s58 offen', tag=('w', 0))
    a.label('K1_NGL')
    wchunk(1)
    for b in (1, 2, 3):
        pfx(b); pfw(b)
    a('v_bfe_u32 v6, v2, 4, 1')
    a('v_mul_u32_u24 v18, 7200, v6')
    a('v_and_b32 v6, 15, v2')
    a('v_mul_u32_u24 v6, 448, v6')
    a('v_add_u32 v18, v18, v6')
    a('v_bfe_u32 v6, v2, 3, 1')
    a('v_lshl_add_u32 v18, v6, 5, v18')
    a('v_lshrrev_b32 v6, 5, v2')
    a(f'v_mul_u32_u24 v6, {SLOT}, v6')
    a('v_add_u32 v18, v18, v6')
    a('v_add_u32 v18, 432, v18')
    a(f'v_add_u32 v17, {4*SLOT}, v18')


    def gate_write(g):
        sl = (2 * g) % NS
        a('s_cmp_lg_u32 s72, 4'); a(f's_cbranch_scc1 K1_NG{g}')
        if sl == 4:
            a(f'ds_write_b16 v17, v{41+g}')
        else:
            a(f'ds_write_b16 v18, v{41+g} offset:{sl * SLOT}')
        a.label(f'K1_NG{g}')
    if 'free' in X:
        win = [int(x[1:]) for x in X if x[0] == 'n' and x[1:].isdigit()][0]
        a.stamp(2)
        for s in range(4, 18):
            if s % 2 == 0:
                xchunk(s // 2)
            wchunk(s)
            a.waitcnt(vm=min(win, 63))
            if s in (8, 12): a.stamp({8: 3, 12: 4}[s])
        a.stamp(5); a.stamp(6); a.stamp(7)
        a('s_sub_u32 s36, s36, 4')
        a('s_branch K1_FIN')
    a.wait_vm_tag(('w', 0))
    for g in range(3):
        gate_write(g)
    a.waitcnt(lg=0)
    a('s_barrier')
    rest = FILL[NC:]
    pre_n = max(0, 3 - NC)
    for k, i in rest[:pre_n]:
        xchunk(i) if k == 'x' else wchunk(i)
    rest = rest[pre_n:]
    plan = {}
    for s in range(0, 18):
        p = []
        A, h = ((s + 7) // 2, 0) if s % 2 else ((s + 6) // 2, 1)
        if 4 <= A < 9: p.append(('x', A, h))
        if s + 6 < 18: p.append(('w', s + 6))
        if s < 2:
            q = []
            for k, i in (rest[:3] if s == 0 else rest[3:]):
                q += [('x', i, 0), ('x', i, 1)] if k == 'x' else [('w', i)]
            if s == 0 and rest:
                held = p; p = q
            else:
                p = q + (held if rest and s == 1 else []) + p
                p.sort(key=lambda z: z[1] if z[0] == 'w' else 2 * z[1] - 0.5)
        plan[s] = p
    L = 'lst' in X
    PFD = 4
    for s in range(18):
        if L and s in (7, 8): a.stamp(2 + 3 * (s - 7))
        a.wait_vm_tag(('w', s + 1))
        a.wait_vm_tag(('x', (s + 1) // 2))
        a.waitcnt(lg=0)
        if L and s in (7, 8): a.stamp(3 + 3 * (s - 7))
        a('s_barrier')
        if L and s in (7, 8): a.stamp(4 + 3 * (s - 7))
        for p in plan[s]:
            if p[0] == 'x': xhalf(p[1], p[2])
            else: wchunk(p[1])
        if s + 6 < 18 and (s + 6) % 2 == 1:
            gate_write((s + 6) // 2)
        if s % 2 == 0: pfx(s // 2 + PFD); pfw(s // 2 + PFD)
    a('s_barrier')
    a('s_branch K2_ENTRY')

    a.restore(st_entry)
    a.label('K1_HELPER')
    a.waitcnt(lg=0)
    a('s_mov_b32 s20, s82'); a('s_mov_b32 s21, s83'); a('s_mov_b32 s22, 256'); a('s_mov_b32 s23, 0x00020000')
    a('s_cmp_lg_u32 s36, 8'); a('s_cbranch_scc1 K1_HT0')
    a('s_memrealtime s[78:79]'); a.waitcnt(lg=0)
    a('s_or_b32 s79, s79, 0x80000000')
    a('v_mov_b32 v4, s78'); a('v_mov_b32 v5, s79'); a('v_mov_b32 v6, 0'); a('v_mov_b32 v7, 0'); a('v_mov_b32 v8, 0')
    a('s_mov_b64 exec, 1')
    a('buffer_atomic_cmpswap_x2 v[4:7], v8, s[20:23], 0 offen sc0', tag='untracked')
    a('s_mov_b64 exec, -1')
    a.label('K1_HT0')
    a(f'v_mov_b32 v9, {TOK_L}')
    a('s_barrier')
    if 'nocode' not in X:
        a.raw('  s_getpc_b64 s[60:61]')
        a.label('K1_PC')
        a('s_lshl_b32 s58, s38, 2'); a('s_and_b32 s59, s36, 3'); a('s_add_u32 s58, s58, s59'); a('s_lshl_b32 s58, s58, 10')
        a.raw('  s_cmp_ge_u32 s58, K2_TEXT_END - K1_PC - 1024')
        a('s_cbranch_scc1 K1_NOCP')
        a('v_lshlrev_b32 v10, 4, v2'); a('v_add_u32 v10, s58, v10'); a('v_mov_b32 v11, s61')
        a('v_add_co_u32 v10, vcc, s60, v10'); a('v_addc_co_u32 v11, vcc, 0, v11, vcc')
        a('global_load_dwordx4 v[16:19], v[10:11], off', tag='pf')
        a.label('K1_NOCP')
    for b in range(10):
        a('s_barrier')
    a.waitcnt(vm=0)
    a('s_cmp_lg_u32 s36, 8'); a('s_cbranch_scc1 K1_HT1')
    a('v_readfirstlane_b32 s76, v4'); a('v_readfirstlane_b32 s77, v5')
    a('s_cmp_eq_u64 s[76:77], 0'); a('s_cselect_b64 s[78:79], s[78:79], s[76:77]')
    a('v_mov_b32 v4, s78'); a('v_mov_b32 v5, s79')
    a('ds_write_b64 v9, v[4:5]')
    a.waitcnt(lg=0)
    a.label('K1_HT1')
    a('s_barrier')
    a('ds_read_b64 v[4:5], v9')
    a('v_readfirstlane_b32 s78, v4'); a('v_readfirstlane_b32 s79, v5')
    a('s_barrier')
    wo_gather(a, 0); wo_gather(a, 1)
    for b in range(4):
        a('s_barrier')
    wo_store(a, 0); wo_store(a, 1)
    for b in range(2):
        a('s_barrier')
    a('s_lshl_b32 s58, s39, 4'); a('s_add_u32 s58, s58, s40'); a('s_lshl_b32 s58, s58, 7'); a(f's_add_u32 s58, s58, {WS_FL1}')
    a('v_mov_b32 v6, 0'); a('v_mov_b32 v7, 1'); a('v_mov_b32 v8, 8')
    a.waitcnt(vm=0)
    a('s_barrier')
    a('s_cmp_lg_u32 s36, 8'); a('s_cbranch_scc1 K2_ENTRY')
    if 'wb' in X:
        a.raw('  buffer_wbl2 sc1'); a.raw('  s_waitcnt vmcnt(0)')
    a('s_mov_b64 exec, 1')
    a('buffer_store_dwordx2 v[4:5], v6, s[24:27], s58 offen sc1')
    a('buffer_atomic_add v7, v8, s[20:23], 0 offen')
    a('s_mov_b64 exec, -1')
    a('s_branch K2_ENTRY')

    a.restore(st_entry)
    a.label('K1_COMPUTE')
    a('s_setprio 3')
    a('s_cmp_eq_u32 s42, 5')
    a('s_cselect_b32 s45, 2, 0')
    a('s_cselect_b32 s46, 0, 4')
    a('s_add_u32 s47, s45, 3')
    a('s_add_u32 s48, s45, 1')
    a('s_cmp_eq_u32 s44, 0')
    a('s_cselect_b32 s47, s45, s47')
    a('s_cselect_b32 s48, s48, s46')
    a('s_cselect_b32 s49, s45, s46')
    a('s_cselect_b32 s50, 4, 2')
    a('s_mul_i32 s51, s42, 6')
    a('s_mul_i32 s52, s41, 3')
    a('s_add_u32 s53, s51, s47')
    a('s_add_u32 s54, s51, s48')
    a('s_add_u32 s55, s51, s49')
    a('s_lshr_b32 s56, s53, 4')
    a('s_add_u32 s56, s56, s52')
    a('s_lshr_b32 s57, s54, 4')
    a('s_add_u32 s57, s57, s52')
    a('s_and_b32 s53, s53, 15')
    a('s_and_b32 s54, s54, 15')
    a('s_and_b32 s55, s55, 15')
    a('v_lshrrev_b32 v25, 5, v2')
    a('v_mul_u32_u24 v24, 7200, v25')
    a('v_bfe_u32 v25, v2, 4, 1')
    a('v_mul_u32_u24 v25, 3616, v25')
    a('v_add_u32 v24, v24, v25')
    a('v_bfe_u32 v25, v2, 2, 2')
    a('v_mul_u32_u24 v25, 448, v25')
    a('v_add_u32 v24, v24, v25')
    a('v_and_b32 v25, 3, v2')
    a('v_lshl_add_u32 v26, v25, 3, v24')
    a('s_mul_i32 s58, s47, 72')
    a('v_add_u32 v3, s58, v26')
    a('s_mul_i32 s58, s48, 72')
    a('v_add_u32 v5, s58, v26')
    a('v_add_u32 v27, s49, v25')
    a('v_mul_u32_u24 v27, 72, v27')
    a('v_add_u32 v27, 32, v27')
    a('v_lshlrev_b32 v28, 3, v25')
    a('v_add_u32 v28, 416, v28')
    a('v_cmp_gt_u32 vcc, s50, v25')
    a('v_cndmask_b32 v27, v28, v27, vcc')
    a('v_add_u32 v4, v24, v27')
    a('v_and_b32 v25, 15, v2')
    a('v_lshrrev_b32 v26, 2, v25')
    a('v_and_b32 v27, 3, v25')
    a('v_lshl_add_u32 v29, v26, 3, v27')
    a('s_lshl_b32 s58, s43, 6')
    a('v_add_u32 v28, s58, v29')
    a('v_lshlrev_b32 v28, 7, v28')
    a('v_and_b32 v27, 2, v27')
    a('v_lshlrev_b32 v27, 1, v27')
    a('v_and_b32 v26, 2, v26')
    a('v_or_b32 v26, v26, v27')
    a('v_lshrrev_b32 v30, 4, v2')
    a('v_xor_b32 v27, v30, v26')
    a('v_lshl_add_u32 v9, v27, 4, v28')
    a(f'v_add_u32 v9, {XBASE}, v9')
    a('v_xor_b32 v10, 64, v9')
    a('v_mov_b32 v11, v9')
    a('s_mov_b32 s79, 0')
    for r in (3, 4, 5):
        a(f'v_add_u32 v{r+3}, {3*SLOT}, v{r}')
    a('s_lshr_b32 s58, 0x18, s56'); a('s_and_b32 s66, s58, 1')
    a('s_lshr_b32 s58, 0x18, s57'); a('s_and_b32 s67, s58, 1')
    a(f's_mul_i32 s68, s66, {EPS_BITS}')
    a(f's_mul_i32 s69, s67, {EPS_BITS}')
    for tile in range(7):
        for r in range(16):
            a(f'v_mov_b32 v{ACC + tile*16 + r}, s{68 if tile < 2 else 69}')
    a('s_lshr_b32 s58, 0x34, s56'); a('s_and_b32 s70, s58, 1')
    a('s_lshr_b32 s58, 0x34, s57'); a('s_and_b32 s71, s58, 1')
    a('s_lshl_b32 s58, s70, 1'); a('s_or_b32 s72, s58, s71')
    a.waitcnt(lg=0)
    a('s_mov_b32 s24, s12'); a('s_mov_b32 s25, s13'); a(f's_mov_b32 s26, {WS_END}'); a('s_mov_b32 s27, 0x00020000')
    a('s_lshl_b32 s77, s39, 7'); a('s_lshl_b32 s58, s43, 6'); a('s_add_u32 s77, s77, s58')
    a('s_mov_b32 s73, 3')
    if 'nob' in X:
        a('s_cmp_eq_u32 s41, 1'); a('s_cselect_b32 s26, 0, s26')
    a('s_cmp_eq_u32 s72, 1'); a('s_cbranch_scc1 K1_TN')
    a('s_cmp_eq_u32 s72, 2'); a('s_cbranch_scc1 K1_NT')
    a('s_cmp_eq_u32 s72, 3'); a('s_cbranch_scc1 K1_NN')
    state = a.snapshot()

    def tile_addr(tile, slot):
        base = {0: 3, 1: 3, 2: 4}.get(tile, 5)
        imm = {0: 0, 1: 40, 2: 0, 3: 0, 4: 40, 5: 72, 6: 112}[tile]
        if slot >= 3:
            base += 3
            slot -= 3
        return base, imm + slot * SLOT

    for (name, Na, Nb) in (('TT', 0, 0), ('TN', 0, 1), ('NT', 1, 0), ('NN', 1, 1)):
        a.restore(state)
        a.label(f'K1_{name}')
        epi_setup(a, name, Na, Nb)

        def wread(idx):
            s, t = (idx // 7) % NS, idx % 7
            b, imm = tile_addr(t, s)
            d = WF + (idx % NWF) * 4
            a(f'ds_read_b64_tr_b16 {vr(d, 2)}, v{b} offset:{imm}')
            a(f'ds_read_b64_tr_b16 {vr(d + 2, 2)}, v{b} offset:{imm + 1792}')

        def xread(s, rt):
            d = XF + (s % 2) * 16 + rt * 4
            off = (rt // 2) * 4096 + (rt % 2) * 512
            a(f'ds_read_b128 {vr(d)}, v{9 if s % 2 == 0 else 10} offset:{off}')

        a('s_barrier')
        a.stamp(2)

        def body():
            for s in range(NS):
                for t in range(7):
                    idx = s * 7 + t
                    wf = WF + (idx % NWF) * 4
                    N = Na if t < 2 else Nb
                    for rt in range(4):
                        xf = XF + (s % 2) * 16 + rt * 4
                        d = acc(rt, t)
                        if N:
                            a(f'v_mfma_f32_16x16x32_bf16 {vr(d)}, {vr(xf)}, {vr(wf)}, {vr(d)}')
                        else:
                            a(f'v_mfma_f32_16x16x32_bf16 {vr(d)}, {vr(wf)}, {vr(xf)}, {vr(d)}')
                        if t == 5:
                            xread(s + 1, rt)
                        if rt == 1 and t == 6 and s % 2 == 0:
                            a(f's_add_u32 s79, s79, {XSLOT}'); a(f's_and_b32 s79, s79, {NX * XSLOT - 1}')
                            a('v_add_u32 v9, s79, v11'); a('v_xor_b32 v10, 64, v9')
                    if t == 4:
                        a.waitcnt(lg=0)
                        a('s_barrier')
                    wread(idx + NWF)

        def tail():
            a('s_sub_u32 s73, s73, 1'); a('s_cmp_lg_u32 s73, 0'); a(f's_cbranch_scc1 K1_{name}_LOOP')
        wread(0)
        for rt in range(4):
            xread(0, rt)
        wread(1); wread(2)
        n0 = len(a.lines); st = a.snapshot(); body(); tail(); back = a.snapshot(); del a.lines[n0:]; a.restore(st)
        a.waitcnt(lg=len(back[5]))
        a.loop(f'K1_{name}_LOOP', body, tail)
        a.stamp(3)
        epi_lanes(a, name, Na, Nb)
        epilogue(a, name, Na, Nb, X)
        a('s_branch K1_FIN')
    a.label('K1_FIN')
    a.reset_state()
    a('s_setprio 0')
    a.waitcnt(vm=0)
    a('s_barrier')
    a.stamp(4)


def wo_gather(a, r):
    V = 64 + 16 * r
    sf = 70 + r
    a('s_lshl_b32 s53, s2, 2'); a('s_and_b32 s58, s36, 3'); a('s_add_u32 s53, s53, s58')
    if r: a('s_add_u32 s53, s53, 1024')
    a(f's_mul_hi_u32 s54, s53, {-(-(1 << 32) // 36)}')
    a('s_mul_i32 s55, s54, 36'); a('s_sub_u32 s55, s53, s55')
    a('s_cmp_ge_u32 s55, 18')
    a('s_cselect_b32 s28, s32, s14'); a('s_cselect_b32 s29, s33, s15')
    a('s_cselect_b32 s56, 18, 0'); a('s_sub_u32 s55, s55, s56')
    a(f's_mov_b32 s30, {576*1152}'); a('s_mov_b32 s31, 0x00020000')
    a('s_mul_i32 s56, s55, 36')
    a('s_mul_i32 s57, s55, 288'); a(f's_sub_u32 s57, s57, {288*16-16}')
    a('s_cmp_ge_u32 s55, 16')
    a('s_cselect_b32 s56, s57, s56')
    a('s_cselect_b32 s57, 144, 20')
    a('s_cselect_b32 s58, 72, 8')
    a('s_cselect_b32 s59, 36, 4')
    a('s_mul_i32 s59, s59, 1152')
    a('v_lshrrev_b32 v13, 5, v2')
    a('v_mul_lo_u32 v13, v13, s57')
    a('v_bfe_u32 v14, v2, 4, 1')
    a('v_mul_lo_u32 v14, v14, s58')
    a('v_add3_u32 v13, v13, v14, s56')
    a('v_mul_u32_u24 v13, 1152, v13')
    a('v_and_b32 v14, 15, v2')
    a('v_lshl_add_u32 v13, v14, 1, v13')
    a('s_lshl_b32 s56, s54, 5')
    a('s_cmp_lt_u32 s53, 1296')
    a('s_cselect_b32 s56, s56, 0x7FF00000')
    a('v_add_u32 v13, s56, v13')
    a(f's_lshl_b32 s{sf}, s53, 10'); a(f's_add_u32 s{sf}, s{sf}, {WS_WOT}')
    a('s_cmp_lt_u32 s53, 1296')
    a(f's_cselect_b32 s{sf}, s{sf}, 0x7FF00000')
    for j in range(8):
        so = '0' if j < 4 else 's59'
        a(f'buffer_load_ushort v{V+j}, v13, s[28:31], {so} offen offset:{(j % 4) * 1152}')


def wo_store(a, r):
    V = 64 + 16 * r
    if r == 0:
        a('s_mov_b32 s24, s12'); a('s_mov_b32 s25, s13'); a(f's_mov_b32 s26, {WS_END}'); a('s_mov_b32 s27, 0x00020000')
        a('v_lshlrev_b32 v15, 4, v2')
    for j in range(4):
        a(f'v_lshl_or_b32 v{V+8+j}, v{V+1+2*j}, 16, v{V+2*j}')
    a(f'buffer_store_dwordx4 v[{V+8}:{V+11}], v15, s[24:27], s{70+r} offen sc1')


def epi_setup(a, name, Na, Nb):
    def dest_scalars(stype, shp, N, sd, tail):
        if N:
            a(f's_sub_u32 s58, s{stype}, 3'); a(f's_cmp_eq_u32 s{stype}, 2'); a('s_cselect_b32 s58, 0, s58')
            a(f's_mul_i32 s58, s58, {NIMG * 32}')
            a(f's_mul_i32 s59, s{shp}, {NIMG * 2}')
            a(f's_add_u32 s{sd}, s58, s59'); a(f's_add_u32 s{sd}, s{sd}, {WS_VA}')
        else:
            a(f's_cmp_eq_u32 s{stype}, 3'); a(f's_cselect_b32 s58, 2, s{stype}')
            if tail:
                a('s_lshl_b32 s58, s58, 18'); a(f's_lshl_b32 s59, s{shp}, 14')
                a(f's_add_u32 s{sd}, s58, s59'); a(f's_add_u32 s{sd}, s{sd}, {WS_QAT}')
            else:
                a('s_lshl_b32 s58, s58, 21'); a(f's_lshl_b32 s59, s{shp}, 17')
                a(f's_add_u32 s{sd}, s58, s59')
                assert WS_QAM == 0
    dest_scalars(56, 53, Na, 80, False)
    dest_scalars(57, 54, Nb, 81, False)
    dest_scalars(57, 55, Nb, 82, True)
    for st, sd in ((56, 30), (57, 14)):
        a(f's_cmp_eq_u32 s{st}, 0'); a(f's_cselect_b32 s{sd}, {QSCALE_BITS}, 1.0'); a(f's_mov_b32 s{sd+1}, s{sd}')
    a(f's_mov_b32 s74, {LOG2E_BITS}'); a(f's_mov_b32 s75, {LOG2E_BITS}'); a(f's_mov_b32 s76, {EPS_BITS}')


def epi_lanes(a, name, Na, Nb):
    a.waitcnt(lg=0)
    a('v_and_b32 v19, 15, v2'); a('v_lshrrev_b32 v20, 2, v19'); a('v_and_b32 v19, 3, v19'); a('v_lshl_add_u32 v12, v20, 3, v19')
    a('v_lshrrev_b32 v13, 4, v2')
    a(f'v_mov_b32 v22, {NEG_EPS_LOG2E_BITS}'); a(f'v_mov_b32 v23, {NEG_EPS_LOG2E_BITS}')
    if (not Na) or (not Nb):
        a('v_and_b32 v19, 1, v13'); a('v_lshl_add_u32 v19, v19, 2, v12'); a('v_lshlrev_b32 v19, 4, v19')
        a('v_lshrrev_b32 v20, 1, v13'); a('v_lshl_add_u32 v14, v20, 9, v19')
        a('s_lshl_b32 s58, s77, 5'); a('v_add_u32 v14, s58, v14')
    if not Nb:
        a('v_add_u32 v19, s77, v12'); a('v_lshlrev_b32 v19, 3, v19'); a('v_lshl_add_u32 v15, v13, 14, v19')
        a('v_mov_b32 v20, 0x7FF00000'); a('v_cmp_gt_u32 vcc, s50, v13'); a('v_cndmask_b32 v15, v20, v15, vcc')
    if Na or Nb:
        a('s_lshr_b32 s58, s77, 3'); a('v_add_u32 v19, s58, v13'); a('v_mul_u32_u24 v19, 18, v19')
        a('v_and_b32 v20, 15, v2'); a('v_add_u32 v16, v19, v20'); a('v_lshlrev_b32 v16, 4, v16')
    if Nb:
        a('v_and_b32 v21, 1, v20'); a('v_add3_u32 v21, v19, v21, 16'); a('v_lshlrev_b32 v21, 4, v21')
        a('v_lshrrev_b32 v1, 1, v20'); a(f's_mov_b32 s58, {NIMG}'); a('v_mul_lo_u32 v1, v1, s58'); a('v_add_u32 v17, v21, v1')
        a('v_mov_b32 v21, 0x7FF00000'); a('v_lshrrev_b32 v1, 2, v20'); a('v_cmp_gt_u32 vcc, s50, v1')
        a('v_cndmask_b32 v17, v21, v17, vcc')
    if name == 'TT':
        a('v_add_u32 v19, s77, v12'); a('v_lshlrev_b32 v19, 2, v19')
        a('v_mov_b32 v20, 0x7FF00000'); a('v_cmp_eq_u32 vcc, 2, v13'); a('v_cndmask_b32 v18, v20, v19, vcc')
        a('s_lshl_b32 s58, s40, 1'); a('s_or_b32 s58, s58, s44')
        a('s_cmp_eq_u32 s58, 1'); a(f's_cselect_b32 s83, {WS_G}, 0x7FF00000' if False else f's_mov_b32 s83, {WS_G}')
        a('s_cselect_b32 s83, s83, 0x7FF00000')


def epilogue(a, name, Na, Nb, X=()):
    ST = '' if 'wb' in X else ' sc1'
    cnt = [0]

    def store_tile(tile):
        N = Na if tile < 2 else Nb
        sd = 80 if tile < 2 else (82 if tile == 2 else 81)
        hl = {0: 0, 1: 1, 2: 0, 3: 0, 4: 1, 5: 2, 6: 3}[tile]
        for G in range(2):
            X, Y = acc(2 * G, tile), acc(2 * G + 1, tile)
            t = 40 + (cnt[0] % 4) * 4
            cnt[0] += 1
            a(f'v_cvt_pk_bf16_f32 v{t}, v{X}, v{X+1}'); a(f'v_cvt_pk_bf16_f32 v{t+1}, v{X+2}, v{X+3}')
            a(f'v_cvt_pk_bf16_f32 v{t+2}, v{Y}, v{Y+1}'); a(f'v_cvt_pk_bf16_f32 v{t+3}, v{Y+2}, v{Y+3}')
            if N:
                voff = 17 if tile == 2 else 16
                a(f's_add_u32 s58, s{sd}, {hl * NIMG + G * 4 * 288}')
                a(f'buffer_store_dwordx4 {vr(t)}, v{voff}, s[24:27], s58 offen{ST}')
            elif tile == 2:
                a(f'buffer_store_dwordx2 {vr(t, 2)}, v15, s[24:27], s{sd} offen offset:{G * 256}{ST}')
                a(f'buffer_store_dwordx2 {vr(t + 2, 2)}, v15, s[24:27], s{sd} offen offset:{G * 256 + 32}{ST}')
            else:
                a(f's_add_u32 s58, s{sd}, {hl * 65536 + G * 1024}')
                a(f'v_permlane16_swap_b32 v{t}, v{t+2}')
                a(f'v_permlane16_swap_b32 v{t+1}, v{t+3}')
                a(f'buffer_store_dwordx4 {vr(t)}, v14, s[24:27], s58 offen{ST}')

    if name == 'TT':
        for rt in range(4):
            a(f'v_mul_f32 v{3+rt}, 0xBFB8AA3B, v{acc(rt, 2)}')
        for rt in range(4):
            a(f'v_exp_f32 v{3+rt}, v{3+rt}')
        for rt in range(4):
            a(f'v_add_f32 v{3+rt}, 1.0, v{3+rt}')
        for rt in range(4):
            a(f'v_rcp_f32 v{3+rt}, v{3+rt}')
        for rt in range(4):
            a(f'buffer_store_dword v{3+rt}, v18, s[24:27], s83 offen offset:{(rt // 2) * 128 + (rt % 2) * 16} sc1')
    for seg, tiles, sphi, ssc in (('a', (0, 1), 66, 30), ('b', (2, 3, 4, 5, 6), 67, 14)):
        N = Na if seg == 'a' else Nb
        lab = f'K1_{name}_{seg}'
        a(f's_cmp_eq_u32 s{sphi}, 0')
        a(f's_cbranch_scc1 {lab}_nophi')
        st = a.snapshot()
        c0 = cnt[0]
        for tile in tiles:
            T = 24
            rr = [ACC + tile * 16 + r for r in range(16)]
            for k in range(0, 16, 2):
                a(f'v_pk_fma_f32 v[{T+k}:{T+k+1}], v[{rr[k]}:{rr[k]+1}], s[74:75], v[22:23]')
            for k in range(16):
                a(f'v_exp_f32_e64 v{T+k}, v{T+k} clamp')
                a(f'v_max_f32 v{rr[k]}, s76, v{rr[k]}')
            for k in range(0, 16, 2):
                a(f'v_pk_add_f32 v[{rr[k]}:{rr[k]+1}], v[{rr[k]}:{rr[k]+1}], v[{T+k}:{T+k+1}]')
            store_tile(tile)
        a(f's_branch {lab}_done')
        st1 = a.snapshot()
        a.restore(st)
        cnt[0] = c0
        a.label(f'{lab}_nophi')
        for tile in tiles:
            if not N:
                for k in range(0, 16, 2):
                    r = ACC + tile * 16 + k
                    a(f'v_pk_mul_f32 v[{r}:{r+1}], v[{r}:{r+1}], s[{ssc}:{ssc+1}]')
            store_tile(tile)
        a.label(f'{lab}_done')
        a.nop(2)
```

```python
from asmlib import Asm
from layout import *

KM_L = 0
KT_L = 65536
V_L = 73728
KVP_L = V_L + NIMG
FLAG_L = KVP_L + 4 * 1520
LDS2 = FLAG_L + 64
XB = KVP_L - 8 * 3072
VROW = 288
BLOCK = 768

SA, SB = 32, 64
O0, O1 = 96, 112
KM = 128
VF = 136
KT = 152
QM = (154, 160)
QT = (158, 164)
IDX = 166
G = 167
NV2 = 168
P3_OG = (32, 80)
P3_XW = (56, 104)


def vr(b, n=4):
    return f'v[{b}:{b+n-1}]'


def gen(a, X=()):
    prof = a.prof
    a.label('K2_ENTRY')
    a.reset_state()
    a.nop(2)
    a('s_load_dwordx2 s[6:7], s[0:1], 72')
    a('s_load_dwordx2 s[4:5], s[0:1], 56')
    a('v_and_b32 v2, 63, v0')
    if 'qx' not in X:
        a('s_and_b32 s37, s2, 7'); a('s_lshl_b32 s37, s37, 2'); a('s_lshr_b32 s38, s2, 3'); a('s_and_b32 s39, s38, 3')
        a('s_add_u32 s37, s37, s39'); a('s_lshr_b32 s38, s38, 2')
    else:
        a('s_lshr_b32 s37, s2, 3')
        a('s_and_b32 s38, s2, 7')
    a('v_lshlrev_b32 v3, 4, v2')
    a('v_and_b32 v8, 31, v2')
    a('v_lshrrev_b32 v9, 5, v2')
    a('s_lshl_b32 s41, s37, 16')
    a('s_lshr_b32 s44, s37, 1'); a('s_lshl_b32 s44, s44, 14')
    a('s_and_b32 s45, s37, 1'); a('s_lshl_b32 s45, s45, 2'); a('s_add_u32 s44, s44, s45')
    a(f's_mul_i32 s48, s37, {NIMG}')
    a('s_and_b32 s39, s36, 3')
    a('s_lshl_b32 s42, s38, 3'); a('s_lshl_b32 s43, s39, 1'); a('s_add_u32 s42, s42, s43')
    a('s_lshl_b32 s43, s42, 10'); a('s_add_u32 s43, s43, s41')
    a('s_lshl_b32 s45, s42, 8'); a('s_add_u32 s45, s45, s44')
    a('v_lshlrev_b32 v10, 3, v8')
    a('v_min_u32 v14, 17, v8')
    a('v_mul_u32_u24 v16, 18, v9')
    a('v_add_u32 v17, v14, v16'); a('v_lshlrev_b32 v17, 4, v17')
    a('s_mov_b32 s34, 0x3FFFF'); a('s_mov_b32 s35, 0x3FFFF')
    a('s_cmp_ge_u32 s36, 8')
    a('s_cbranch_scc1 K2_HELPER')
    st_entry = a.snapshot()

    def srd():
        a.waitcnt(lg=0)
        if 'wsend' in X: a('s_add_u32 s6, s6, 0xE000000'); a('s_addc_u32 s7, s7, 0')
        a('s_mov_b32 s16, s6'); a('s_mov_b32 s17, s7'); a(f's_mov_b32 s18, {WS_END}'); a('s_mov_b32 s19, 0x00020000')

    def og_addr(tile_sgpr):
        a('v_lshrrev_b32 v20, 4, v8'); a('v_mul_u32_u24 v20, 36864, v20')
        a('v_and_b32 v21, 15, v8'); a('v_lshl_add_u32 v22, v21, 4, v20')
        a('v_lshl_add_u32 v21, v9, 8, v22')
        a(f's_mul_i32 s61, s{tile_sgpr}, 73728'); a(f's_add_u32 s61, s61, {WS_OG}')
        a('s_lshr_b32 s62, s37, 1'); a('s_lshl_b32 s62, s62, 10')
        a('s_and_b32 s63, s37, 1'); a('s_lshl_b32 s63, s63, 9'); a('s_add_u32 s62, s62, s63')
        a('s_add_u32 s62, s62, s61')
        a('s_lshr_b32 s64, s37, 4'); a('s_lshl_b32 s64, s64, 10')
        a('s_bfe_u32 s65, s37, 0x20002'); a('s_lshl_b32 s65, s65, 8'); a('s_add_u32 s64, s64, s65')
        a('s_and_b32 s65, s37, 3'); a('s_lshl_b32 s65, s65, 2'); a('s_add_u32 s64, s64, s65')
        a('s_add_u32 s64, s64, s61'); a('s_add_u32 s64, s64, 16384')

    def og_store(src, sc, T, smain, stail):
        for r in range(10):
            a(f'v_mul_f32 v{src+r}, v{src+r}, v{sc}')
        for k in range(4):
            a(f'v_cvt_pk_bf16_f32 v{T+k}, v{src+2*k}, v{src+2*k+1}')
        a(f'v_cvt_pk_bf16_f32 v{src+8}, v{src+8}, v{src+9}')
        a(f'v_permlane32_swap_b32 v{T}, v{T+2}')
        a(f'v_permlane32_swap_b32 v{T+1}, v{T+3}')
        a(f'buffer_store_dwordx4 {vr(T)}, v21, s[16:19], s{smain} offen' + (' sc1'))
        a('s_mov_b32 exec_hi, 0')
        a(f'buffer_store_dword v{src+8}, v22, s[16:19], s{stail} offen' + (' sc1'))
        a('s_mov_b32 exec_hi, -1')

    OGF, XW0 = P3_OG[0], P3_XW[0]

    def frag_src(f):
        half, r = divmod(f, 72); nt, k = divmod(r, 18)
        return (nt * 36 + (18 if half == 0 else 0) + k) * 1024

    def p3_setup():
        a('s_lshr_b32 s66, s36, 2'); a('s_mul_i32 s66, s66, 6144')
        a('s_and_b32 s52, s37, 7')
        a('s_lshr_b32 s53, s37, 3')
        a('s_mul_i32 s67, s52, 147456'); a(f's_add_u32 s67, s67, {WS_WOT}')
        a('s_and_b32 s54, s52, 3'); a('s_add_u32 s54, s54, 32')
        a('s_mul_i32 s68, s54, 36864'); a('s_add_u32 s68, s68, s66'); a(f's_add_u32 s68, s68, {WS_WOT}')
        a('s_lshl_b32 s71, s54, 5'); a('s_lshl_b32 s72, s52, 7')
        a('s_lshr_b32 s55, s39, 1'); a('s_lshr_b32 s56, s52, 2')
        a('s_cmp_eq_u32 s55, s56'); a('s_cselect_b32 s68, s68, 0x7FF00000'); a('s_cselect_b32 s71, s71, 0x7FF00000')
        a('s_lshl_b32 s70, s38, 2'); a('s_add_u32 s70, s70, s53')
        a('s_lshl_b32 s73, s70, 2'); a('s_add_u32 s73, s73, s39')
        a('s_mul_i32 s69, s73, 36864'); a('s_add_u32 s69, s69, s66'); a(f's_add_u32 s69, s69, {WS_OG}')
        a('s_lshl_b32 s74, s70, 12'); a(f's_add_u32 s74, s74, {WS_FLG + 2048 * 128}')
        a('s_lshl_b32 s70, s70, 13'); a(f's_add_u32 s70, s70, {WS_FLG}')

    def six(dst, sbase, add, fl, tag=None):
        a(f's_add_u32 s56, s{sbase}, {add}'); a(f's_add_u32 s57, s{sbase}, {add + 4096}')
        for k in range(6):
            a(f'buffer_load_dwordx4 {vr(dst + 4 * k)}, v3, s[16:19], s{56 if k < 4 else 57} offen offset:{(k % 4) * 1024}{fl}', tag=tag)

    a('s_lshr_b32 s40, s36, 2')
    a(f's_add_u32 s51, s45, {WS_QAT}')
    srd()
    a('s_add_u32 s46, s42, s40')
    a('s_lshl_b32 s75, s46, 7'); a(f's_add_u32 s75, s75, {WS_G}')
    a('v_lshlrev_b32 v4, 2, v2'); a(f'v_add_u32 v4, {KT_L}, v4')
    a(f'v_add_u32 v5, {V_L}, v17')
    a('s_lshl_b32 s52, s40, 15'); a('v_add_u32 v11, s52, v3')
    a('s_lshl_b32 s52, s40, 12'); a('v_add_u32 v12, s52, v4')
    a(f's_mul_i32 s52, s40, {128 * VROW}'); a('v_add_u32 v13, s52, v5')
    a(f'v_mov_b32 v{IDX}, 0xDDDD')
    a(f'v_mov_b32 v{KT+1}, 0x3F80')
    a(f'v_mov_b32 v{QT[0]+1}, 0'); a(f'v_mov_b32 v{QT[1]+1}, 0')
    a('v_mov_b32 v15, 0'); a('v_mov_b32 v14, 0x3F803F80')
    a('v_cmp_eq_u32 vcc, 18, v8'); a('v_cndmask_b32 v15, v15, v14, vcc')
    a('v_cmp_eq_u32 vcc, 28, v8'); a('v_cndmask_b32 v15, v15, v14, vcc')
    for r in range(16):
        a(f'v_mov_b32 v{VF+r}, v15')
    for r in range(32):
        a(f'v_mov_b32 v{O0+r}, 0')
    og_addr(46)
    p3_setup()
    a('s_mov_b32 s47, 0')
    a(f'v_mov_b32 v24, {FLAG_L}')

    def rd_kt(u): a(f'ds_read_b32 v{KT}, v12 offset:{u * 256}')
    def rd_km(u, i): a(f'ds_read_b128 {vr(KM + 4 * i)}, v11 offset:{(2 * u + i) * 1024}')

    def rd_v(u, i):
        a('s_mov_b64 exec, s[34:35]')
        a(f'ds_read_b128 {vr(VF + 4 * i)}, v13 offset:{(8 * u + 2 * i) * VROW}')
        a('s_mov_b64 exec, -1')

    def qk2b(S, t): a(f'v_mfma_f32_32x32x4_2b_bf16 {vr(S, 32)}, {vr(KT, 2)}, {vr(QT[t], 2)}, 0')
    def qk(S, i, t): a(f'v_mfma_f32_32x32x16_bf16 {vr(S + 16 * i, 16)}, {vr(KM + 4 * i)}, {vr(QM[t])}, {vr(S + 16 * i, 16)}')
    def pv(S, i, O): a(f'v_smfmac_f32_32x32x32_bf16 {vr(O, 16)}, {vr(VF + 4 * i)}, {vr(S + 8 * i, 8)}, v{IDX}')

    def rowmax(S, n, dst, tmp):
        a(f'v_max3_f32 v{dst}, v{S}, v{S+1}, v{S+2}')
        a(f'v_max3_f32 v{tmp}, v{S+3}, v{S+4}, v{S+5}')
        for k in range(6, n - 2, 4):
            a(f'v_max3_f32 v{dst}, v{S+k}, v{S+k+1}, v{dst}')
            a(f'v_max3_f32 v{tmp}, v{S+k+2}, v{S+k+3}, v{tmp}')
        a(f'v_max3_f32 v{dst}, v{S+n-2}, v{S+n-1}, v{dst}')
        a(f'v_max_f32 v{dst}, v{dst}, v{tmp}')
        a(f'v_mov_b32 v{tmp}, v{dst}')
        a(f'v_permlane32_swap_b32 v{dst}, v{tmp}')
        a(f'v_max_f32 v{dst}, v{dst}, v{tmp}')

    a('s_barrier')
    a.stamp(5)
    for t in range(2):
        a(f'buffer_load_dwordx4 {vr(QM[t])}, v3, s[16:19], s43 offen offset:{t * 1024}')
        a(f'buffer_load_dword v{QT[t]}, v10, s[16:19], s51 offen offset:{t * 256}')
    a.waitcnt(vm=0)
    a('s_barrier')
    a.stamp(6)
    a(f'ds_read_b32 v{KT}, v4'); a(f'ds_read_b128 {vr(KM)}, v3')
    for i in range(4):
        rd_v(0, i)
    qk2b(SA, 0); qk2b(SB, 1); qk(SA, 0, 0); qk(SB, 0, 1)
    rd_kt(0); rd_km(0, 0); rd_km(0, 1)
    for t, S in ((0, SA), (1, SB)):
        rowmax(S, 16, 18, 19)
        a('v_xor_b32 v18, 0x80000000, v18')
        a(f'v_lshrrev_b32 v{QT[t]+1}, 16, v18')
        if t == 0:
            qk2b(SA, 0)
    qk(SA, 0, 0); qk(SA, 1, 0)
    for r in range(24, 32):
        a(f'v_mov_b32 v{SB+r}, 0')
    a.waitcnt(lg=0)

    def phase(u, t):
        Sc, Sn = (SA, SB) if t == 0 else (SB, SA)
        Oc, Op = (O0, O1) if t == 0 else (O1, O0)
        e = [0]

        def ex(n):
            for r in range(e[0], e[0] + n):
                a(f'v_exp_f32 v{Sc+r}, v{Sc+r}')
            e[0] += n
        if 'pr2' in X:
            if t == 0: a(f's_setprio {3 - u % 4}')
        elif 'noprio' not in X: a(f's_setprio {3 - (2 * u + t) % 4}')
        ex(2)
        pv(Sn, 3, Op)
        if t == 0: rd_v(u, 3)
        ex(4)
        qk2b(Sn, 1 - t)
        if t == 0: rd_kt(u + 1)
        ex(8)
        pv(Sc, 0, Oc)
        if t == 1: rd_v(u + 1, 0)
        ex(4)
        qk(Sn, 0, 1 - t)
        if t == 0: rd_km(u + 1, 0)
        ex(4)
        pv(Sc, 1, Oc)
        if t == 1: rd_v(u + 1, 1)
        ex(4)
        qk(Sn, 1, 1 - t)
        if t == 0: rd_km(u + 1, 1)
        ex(4)
        pv(Sc, 2, Oc)
        if t == 1: rd_v(u + 1, 2)
        ex(2)

    UN = 4 if 'un4' in X else 2

    def body():
        for u in range(UN):
            if u == UN - 2:
                if UN == 2:
                    a('s_bitcmp1_b32 0xA, s47'); a('s_cbranch_scc0 K2_NOB1')
                else:
                    a('s_cmp_lt_u32 s47, 2'); a('s_cbranch_scc0 K2_NOB1')
                a('s_barrier')
                a.label('K2_NOB1')
            phase(u, 0); phase(u, 1)

    def tail():
        a(f'v_add_u32 v11, {UN * 2048}, v11'); a(f'v_add_u32 v12, {UN * 256}, v12'); a(f'v_add_u32 v13, {UN * 8 * VROW}, v13')
        a('s_add_u32 s47, s47, 1'); a(f's_cmp_lg_u32 s47, {16 // UN}'); a('s_cbranch_scc1 K2_LOOP')
    n0 = len(a.lines); st = a.snapshot(); body(); tail(); back = a.snapshot(); del a.lines[n0:]; a.restore(st)
    a.lg = [set(x) for x in back[5]]
    a.raw('.p2align 6')
    a.loop('K2_LOOP', body, tail)
    a.stamp(7)
    a('s_setprio 3')
    pv(SB, 3, O1)
    a('v_lshlrev_b32 v12, 2, v8')
    a(f'buffer_load_dword v{G}, v12, s[16:19], s75 offen')

    a('v_cmp_eq_u32 vcc, 0, v9')
    a(f'v_cndmask_b32 v{O0+10}, v{O0+12}, v{O0+10}, vcc')
    a(f'v_cndmask_b32 v{O1+10}, v{O1+12}, v{O1+10}, vcc')
    a(f'v_max_f32 v19, v{O0+10}, v{O1+10}')
    a(f'v_fmac_f32 v19, 0, v{O0+10}'); a(f'v_fmac_f32 v19, 0, v{O1+10}')
    for r in range(10):
        a(f'v_fmac_f32 v19, 0, v{O0+r}'); a(f'v_fmac_f32 v19, 0, v{O1+r}')
    a('v_mov_b32 v20, 0x5F000000')
    a('v_cmp_nlt_f32 vcc, v19, v20')
    a('s_cmp_eq_u64 vcc, 0')
    a('s_cbranch_scc1 K2_OK')
    a('v_mov_b32 v19, 1')
    a('ds_write_b32 v24, v19')
    a.label('K2_OK')
    a.waitcnt(lg=0)
    a('s_barrier')
    if 'tl' in X: a.stamp(2)
    a('ds_read_b32 v19, v24')
    a('s_mul_i32 s52, s36, 3072'); a(f's_add_u32 s52, s52, {XB}')
    a('s_xor_b32 s53, s36, 4'); a('s_mul_i32 s53, s53, 3072'); a(f's_add_u32 s53, s53, {XB}')
    a('v_add_u32 v25, s52, v3'); a('v_add_u32 v26, s53, v3')
    a('v_readfirstlane_b32 s52, v19')
    a('s_cmp_lg_u32 s52, 0')
    a('s_cbranch_scc1 K2_SLOW')
    a('s_cmp_eq_u32 s40, 0')
    a('s_cbranch_scc1 K2_X0')
    for r in range(11):
        a(f'v_swap_b32 v{O0+r}, v{O1+r}')
    a.label('K2_X0')
    a.nop(1)
    for k in range(3):
        a(f'ds_write_b128 v25, {vr(O1 + 4 * k)} offset:{k * 1024}')
    a.waitcnt(lg=0)
    a('s_barrier')
    for k in (2, 0, 1):
        a(f'ds_read_b128 {vr(O1 + 4 * k)}, v26 offset:{k * 1024}')
    for r in (10, 8, 0, 2, 4, 6):
        a(f'v_pk_add_f32 v[{O0+r}:{O0+r+1}], v[{O0+r}:{O0+r+1}], v[{O1+r}:{O1+r+1}]')
    a.label('K2_EPI')
    a.nop(2)
    a(f'v_rcp_f32 v18, v{O0+10}')
    a(f'v_mul_f32 v18, v18, v{G}')
    og_store(O0, 18, 28, 62, 64)
    if 'tl' in X: a.stamp(3)
    a('s_setprio 0')
    six(OGF, 69, 18432, '')
    a('s_xor_b32 s45, s36, 4'); a('s_mul_i32 s45, s45, 3072')
    base = frag_src(120)
    assert all(frag_src(120 + i) == base + i * 1024 for i in range(6)) and all(frag_src(126 + i) == frag_src(126) + i * 1024 for i in range(18))
    a(f's_add_u32 s52, s45, {base}'); a(f's_add_u32 s55, s45, {frag_src(126) - 6 * 1024}')
    a('s_cmp_ge_u32 s45, 6144'); a('s_cselect_b32 s52, s55, s52'); a('s_add_u32 s52, s52, s67')
    a(f's_add_u32 m0, s45, {XB}')
    a('s_cmp_ge_u32 s68, 0x7FF00000'); a('s_cbranch_scc1 K2_NOXB')
    six(XW0, 68, 18432, '')
    a.label('K2_NOXB')
    a('s_barrier')
    if 'tl' in X: a.stamp(4)
    for i in range(3):
        a(f'buffer_load_dwordx4 v3, s[16:19], s52 offen offset:{i * 1024} lds')
    st_p3c = a.snapshot()
    a('s_branch K2_P3')

    a.label('K2_SLOW')
    a.fence()
    a('s_cmp_eq_u32 s40, 0')
    a('s_cbranch_scc1 K2_S0')
    for r in range(5):
        a(f'v_mov_b32 v{QM[0]+r}, v{QM[1]+r}')
    a.label('K2_S0')
    a(f'v_mov_b32 v{QT[0]+1}, 0')
    a('v_mov_b32 v20, 0xFF800000')
    for r in range(16):
        a(f'v_mov_b32 v{O0+r}, 0')
    a('v_mov_b32 v11, v3'); a('v_mov_b32 v12, v4'); a('v_mov_b32 v13, v5')
    a('s_mov_b32 s47, 32')
    a.label('K2_SLOW_LOOP')
    a.fence()
    rd_kt(0); rd_km(0, 0); rd_km(0, 1)
    for i in range(4):
        rd_v(0, i)
    qk2b(SA, 0); qk(SA, 0, 0); qk(SA, 1, 0)
    rowmax(SA, 32, 18, 19)
    a('v_max_f32 v18, v18, v20')
    a('v_sub_f32 v19, v20, v18'); a('v_exp_f32 v19, v19')
    a('v_mov_b32 v20, v18')
    for r in range(32):
        a(f'v_sub_f32 v{SA+r}, v{SA+r}, v18')
    for r in range(32):
        a(f'v_exp_f32 v{SA+r}, v{SA+r}')
    for r in range(16):
        a(f'v_mul_f32 v{O0+r}, v{O0+r}, v19')
    for i in range(4):
        pv(SA, i, O0)
    a('v_add_u32 v11, 2048, v11'); a('v_add_u32 v12, 256, v12'); a(f'v_add_u32 v13, {8 * VROW}, v13')
    a('s_sub_u32 s47, s47, 1'); a('s_cmp_lg_u32 s47, 0'); a('s_cbranch_scc1 K2_SLOW_LOOP')
    a.fence()
    a('v_cmp_eq_u32 vcc, 0, v9')
    a(f'v_cndmask_b32 v{O0+10}, v{O0+12}, v{O0+10}, vcc')
    a.hazard_fence()
    a('s_barrier')
    a('s_branch K2_EPI')

    a.restore(st_entry)
    a.label('K2_HELPER')
    a('s_setprio 3')
    KVB, KVA = 32, 64
    QB = 96
    GB = 108
    a('v_lshlrev_b32 v7, 3, v2')
    a('s_lshl_b32 s40, s39, 10')
    a('s_add_u32 s46, s41, s40'); a(f's_add_u32 s46, s46, {WS_KAM}')
    a('s_lshl_b32 s47, s39, 9'); a('s_add_u32 s47, s47, s44'); a(f's_add_u32 s47, s47, {WS_KAT}')
    a('s_add_u32 s49, s48, s40'); a(f's_add_u32 s49, s49, {WS_VA}')
    a('s_lshl_b32 s50, s39, 8')
    srd()
    a('s_lshr_b32 s52, s37, 1')
    for i, add in enumerate((16, 32, 0)):
        a(f's_add_u32 s53, s52, {add}'); a('s_mul_i32 s53, s53, 43'); a(f's_lshr_b32 s{54+i}, s53, 8')
    a('v_and_b32 v25, 15, v2'); a('v_lshlrev_b32 v25, 4, v25')
    a('v_mov_b32 v26, s54'); a('v_mov_b32 v27, s55'); a('v_cmp_le_u32 vcc, 16, v2'); a('v_cndmask_b32 v26, v26, v27, vcc')
    a('v_add_u32 v25, v25, v26')
    a('v_and_b32 v26, 1, v2'); a('s_lshl_b32 s53, s38, 1'); a('v_add_u32 v26, s53, v26'); a('v_lshlrev_b32 v26, 4, v26')
    a('s_add_u32 s57, s56, 8'); a('s_add_u32 s58, s54, 8'); a('s_add_u32 s59, s55, 8')
    a('v_mov_b32 v27, s56')
    for lane, sg in ((34, 57), (36, 58), (38, 59)):
        a(f'v_mov_b32 v28, s{sg}'); a(f'v_cmp_le_u32 vcc, {lane}, v2'); a('v_cndmask_b32 v27, v27, v28, vcc')
    a('v_mov_b32 v28, 0'); a('v_cmp_le_u32 vcc, 40, v2'); a('v_cndmask_b32 v27, v27, v28, vcc')
    a('v_add_u32 v26, v26, v27')
    a('v_cmp_le_u32 vcc, 32, v2'); a('v_cndmask_b32 v25, v25, v26, vcc')
    a('v_lshlrev_b32 v6, 7, v25')
    a(f's_mov_b32 s75, {WS_FL1}')

    def poll(name, voff, soff, mask=None, sleep=4):
        if mask:
            a(f's_and_b32 s76, s80, {mask[0]}'); a(f's_and_b32 s77, s81, {mask[1]}')
            a('s_cmp_eq_u64 s[76:77], 0'); a(f's_cbranch_scc1 {name}_OK')
        a('s_mov_b32 s60, 0')
        a.label(name)
        a(f'buffer_load_dwordx2 v[26:27], v{voff}, s[16:19], s{soff} offen sc1')
        a.waitcnt(vm=0)
        a('v_cmp_ne_u64 vcc, s[78:79], v[26:27]')
        if mask:
            a('s_mov_b64 s[80:81], vcc'); a(f's_and_b32 vcc_lo, vcc_lo, {mask[0]}'); a(f's_and_b32 vcc_hi, vcc_hi, {mask[1]}')
        a('s_cmp_eq_u64 vcc, 0'); a(f's_cbranch_scc1 {name}_OK')
        a(f's_sleep {sleep}')
        a('s_add_u32 s60, s60, 1'); a('s_cmp_lt_u32 s60, 0x40000'); a(f's_cbranch_scc1 {name}')
        a.label(f'{name}_OK')
    a('s_mov_b64 s[80:81], -1')
    a('s_cmp_lg_u32 s39, 0'); a('s_cbranch_scc1 K2_PF1_OK')
    poll('K2_PF1', 6, 75, (0x03030303, 3), 2)
    a('s_barrier')
    if 'hs' in X: a.stamp(2)

    def dma(kind, n, tag):
        if kind == 'KM':
            a(f's_add_u32 m0, s40, {KM_L + n * 4096}'); a(f's_add_u32 s52, s46, {n * 4096}')
            a('buffer_load_dwordx4 v3, s[16:19], s52 offen lds', tag=tag)
        elif kind == 'V':
            a(f's_add_u32 m0, s40, {V_L + n * 4096}'); a(f's_add_u32 s52, s49, {n * 4096}')
            a('buffer_load_dwordx4 v3, s[16:19], s52 offen lds', tag=tag)
        else:
            a(f's_add_u32 m0, s50, {KT_L + n * 1024}'); a(f's_add_u32 s52, s47, {n * 2048}')
            a('buffer_load_dword v7, s[16:19], s52 offen lds', tag=tag)
    for hb in range(2):
        dma('KM', 8 * hb, 'b0'); dma('KT', 4 * hb, 'b0'); dma('V', 9 * hb, 'b0')
    for hb in range(2):
        dma('KM', 8 * hb + 1, 'b0'); dma('V', 9 * hb + 1, 'b0')
    a('v_mov_b32 v15, 0'); a(f'v_mov_b32 v24, {FLAG_L}'); a('ds_write_b32 v24, v15')
    a('v_mov_b32 v14, 0x3F803F80')
    a('v_cmp_eq_u32 vcc, 18, v8'); a('v_cndmask_b32 v13, v15, v14, vcc')
    for st in range(4):
        for r in range(4):
            a(f'v_mov_b32 v{KVB+8*st+r}, 0')
            a(f'v_mov_b32 v{KVB+8*st+4+r}, v13')
    for r in range(16):
        a(f'v_mov_b32 v{KVA+r}, 0')
    a.wait_vm_tag('b0')
    a.waitcnt(lg=0)
    a('s_barrier')
    a(f's_mul_i32 s61, s42, {4 * VROW}'); a('s_add_u32 s61, s61, s48')
    a(f's_add_u32 s62, s61, {WS_KB}'); a(f's_add_u32 s63, s61, {WS_VB}')
    order = []
    for n in range(2, 9):
        for hb in range(2):
            if n < 8: order.append(('KM', 8 * hb + n))
            order.append(('V', 9 * hb + n))
            if n in (2, 4, 6): order.append(('KT', 4 * hb + n // 2))
    first = [x for x in order if {'KM': x[1] % 8 < 4, 'V': x[1] % 9 < 4, 'KT': x[1] % 4 < 2}[x[0]]]
    rest = [x for x in order if x not in first]
    poll('K2_PF2', 6, 75, (0x0F0F0F0F, -1))
    for (k, n) in first:
        dma(k, n, 'b1')
    a('s_mov_b64 exec, s[34:35]')
    for st in range(4):
        a(f'buffer_load_dwordx4 {vr(KVB + 8 * st)}, v17, s[16:19], s62 offen offset:{st * 2 * VROW}')
        a(f'buffer_load_dwordx4 {vr(KVB + 8 * st + 4)}, v17, s[16:19], s63 offen offset:{st * 2 * VROW}')
    a('s_mov_b64 exec, -1')
    st_pf3 = a.snapshot()
    poll('K2_PF3', 6, 75, (-1, -1))
    a.restore(st_pf3)
    for (k, n) in rest[:6]:
        dma(k, n, 'b2')
    for st in range(4):
        a(f'v_mfma_f32_32x32x16_bf16 {vr(KVA, 16)}, {vr(KVB + 8 * st)}, {vr(KVB + 8 * st + 4)}, {vr(KVA, 16)}')
    a('v_mul_u32_u24 v18, 80, v8'); a('v_lshl_add_u32 v18, v9, 4, v18')
    a('s_mul_i32 s61, s39, 1520'); a(f's_add_u32 s61, s61, {KVP_L}'); a('v_add_u32 v18, s61, v18')
    a('s_mov_b32 exec_lo, 0x7FFFF'); a('s_mov_b32 exec_hi, 0x7FFFF')
    a(f'ds_write_b128 v18, {vr(KVA)}')
    a(f'ds_write_b128 v18, {vr(KVA + 4)} offset:32')
    a('s_mov_b32 exec_hi, 0')
    a(f'ds_write_b64 v18, {vr(KVA + 8, 2)} offset:64')
    a('s_mov_b64 exec, -1')
    a.wait_vm_tag('b1')
    a.waitcnt(lg=0)
    a('s_barrier')
    a('s_mul_i32 s57, s37, 12288'); a(f's_add_u32 s57, s57, {WS_KVS}')
    a('s_cmp_lg_u32 s39, 0')
    a('s_cbranch_scc1 K2_HPUB')
    st_skip = a.snapshot()
    a('v_min_u32 v19, 30, v2'); a('v_lshlrev_b32 v19, 4, v19'); a('v_add_u32 v19, 1024, v19')
    a(f'v_add_u32 v18, {KVP_L}, v3'); a(f'v_add_u32 v20, {KVP_L}, v19')
    for k in range(4):
        a(f'ds_read_b128 {vr(KVB + 8 * k)}, v18 offset:{k * 1520}')
        a(f'ds_read_b128 {vr(KVB + 8 * k + 4)}, v20 offset:{k * 1520}')
    for k in range(1, 4):
        for r in range(0, 8, 2):
            a(f'v_pk_add_f32 v[{KVB+r}:{KVB+r+1}], v[{KVB+r}:{KVB+r+1}], v[{KVB+8*k+r}:{KVB+8*k+r+1}]')
    a('s_mul_i32 s58, s38, 1536'); a('s_add_u32 s58, s58, s57')
    a(f'buffer_store_dwordx4 {vr(KVB)}, v3, s[16:19], s58 offen sc1')
    a(f'buffer_store_dwordx4 {vr(KVB + 4)}, v19, s[16:19], s58 offen sc1')
    a.waitcnt(vm=0)
    a('v_mov_b32 v18, s78'); a('v_mov_b32 v19, s79'); a('v_mov_b32 v20, 1520')
    a('s_mov_b64 exec, 1')
    a('buffer_store_dwordx2 v[18:19], v20, s[16:19], s58 offen sc1')
    a('s_mov_b64 exec, -1')
    a.restore(st_skip)
    a.label('K2_HPUB')
    a.nop(2)
    for (k, n) in rest[6:]:
        dma(k, n, 'b2')
    og_addr(42)
    for r in range(4):
        a(f'v_mov_b32 v{28+r}, -1')
    for t in range(2):
        a(f's_add_u32 s52, s62, {t * 73728}'); a(f's_add_u32 s53, s64, {t * 73728}')
        a('buffer_store_dwordx4 v[28:31], v21, s[16:19], s52 offen sc1')
        a('s_mov_b32 exec_hi, 0')
        a('buffer_store_dword v28, v22, s[16:19], s53 offen sc1')
        a('s_mov_b32 exec_hi, -1')
    a('v_mov_b32 v11, 0x7FF00000'); a('v_cmp_eq_u32 vcc, 0, v9'); a('v_cndmask_b32 v11, v11, v10, vcc')
    a('v_lshlrev_b32 v12, 2, v8')
    a(f's_add_u32 s51, s43, {WS_QBM}'); a(f's_add_u32 s52, s45, {WS_QBT}')
    a('s_lshl_b32 s53, s42, 7'); a(f's_add_u32 s53, s53, {WS_G}')
    for t in range(2):
        a(f'buffer_load_dwordx4 {vr(QB + 6 * t)}, v3, s[16:19], s51 offen offset:{t * 1024}')
        a(f'buffer_load_dword v{QB + 6 * t + 4}, v11, s[16:19], s52 offen offset:{t * 256}')
        a(f'v_mov_b32 v{QB + 6 * t + 5}, 0')
        a(f'buffer_load_dword v{GB + t}, v12, s[16:19], s53 offen offset:{t * 128}')
    a('v_min_u32 v18, 18, v8'); a('v_mul_u32_u24 v19, 80, v18'); a('v_lshl_add_u32 v18, v9, 5, v19')
    a('v_and_b32 v25, 7, v2'); a('v_mul_u32_u24 v25, 1536, v25'); a('v_add_u32 v25, 1520, v25')
    a.waitcnt(vm=0)
    a('s_barrier')
    if 'hs' in X: a.stamp(3)
    poll('K2_POLL', 25, 57)
    if 'hs' in X: a.stamp(4)
    TS = [32, 40, 48, 56, 64, 72, 80, 88]
    a('v_min_u32 v20, 30, v2'); a('v_lshlrev_b32 v20, 4, v20'); a('v_add_u32 v20, 1024, v20')
    for q in range(8):
        d = TS[q]
        if q % 2 == 0: a(f's_add_u32 s58, s57, {q * 1536}')
        o = (q % 2) * 1536
        a(f'buffer_load_dwordx4 {vr(d)}, v3, s[16:19], s58 offen offset:{o}')
        a(f'buffer_load_dwordx4 {vr(d + 4)}, v20, s[16:19], s58 offen offset:{o}')
    a('s_mul_i32 s58, s39, 1520'); a(f's_add_u32 s58, s58, {KVP_L}')
    a('v_add_u32 v25, s58, v3'); a('v_add_u32 v20, s58, v20'); a('v_add_u32 v18, s58, v18'); a('v_add_u32 v19, s58, v19')
    for q in range(1, 8):
        for r in range(0, 8, 2):
            a(f'v_pk_add_f32 v[{32+r}:{33+r}], v[{32+r}:{33+r}], v[{TS[q]+r}:{TS[q]+r+1}]')
    a('ds_write_b128 v25, v[32:35]'); a('ds_write_b128 v20, v[36:39]')
    a.waitcnt(lg=0)
    a('ds_read_b128 v[32:35], v18'); a('ds_read_b128 v[36:39], v18 offset:16'); a('ds_read_b64 v[40:41], v19 offset:64')
    for k in range(5):
        a(f'v_cvt_pk_bf16_f32 v{44+k}, v{32+2*k}, v{33+2*k}')
    a('v_mov_b32 v49, 0')
    for t in range(2):
        D = 64 + 16 * t
        a(f'v_mfma_f32_32x32x16_bf16 {vr(D, 16)}, v[44:47], {vr(QB + 6 * t)}, 0')
        a(f'v_mfma_f32_32x32x8bf16_1k {vr(D, 16)}, v[48:49], {vr(QB + 6 * t + 4, 2)}, {vr(D, 16)}')
    a('s_add_u32 s62, s62, 18432'); a('s_add_u32 s64, s64, 18432')
    for t in range(2):
        D = 64 + 16 * t
        a('v_cmp_eq_u32 vcc, 0, v9')
        a(f'v_cndmask_b32 v19, v{D+12}, v{D+10}, vcc')
        a(f'v_add_f32 v19, {EPS_BITS}, v19')
        a('v_rcp_f32 v19, v19')
        a(f'v_sub_f32 v20, 1.0, v{GB+t}')
        a('v_mul_f32 v19, v19, v20')
        og_store(D, 19, 28 + 0 * t, 62, 64)
        if t == 0:
            a('s_add_u32 s62, s62, 73728'); a('s_add_u32 s64, s64, 73728')
    a('s_lshl_b32 s59, s38, 2'); a('s_add_u32 s59, s59, s39'); a('s_lshl_b32 s59, s59, 12'); a(f's_add_u32 s59, s59, {WS_FLG + 2048 * 128}')
    a('v_mov_b32 v4, s78'); a('v_mov_b32 v5, s79'); a('v_mov_b32 v6, s37'); a('v_lshlrev_b32 v6, 7, v6')
    a.waitcnt(vm=0)
    a('s_mov_b64 exec, 1')
    a('buffer_store_dwordx2 v[4:5], v6, s[16:19], s59 offen sc1')
    a('s_mov_b64 exec, -1')
    if 'hs' in X: a.stamp(5)
    if True:
        a('s_mov_b32 s20, s82'); a('s_mov_b32 s21, s83'); a('s_mov_b32 s22, 256'); a('s_mov_b32 s23, 0x00020000')
        a('v_mov_b32 v25, 8'); a('s_mov_b32 s60, 0')
        a.label('K2_PW')
        a('buffer_load_dword v26, v25, s[20:23], 0 offen sc1')
        a.waitcnt(vm=0)
        a('v_readfirstlane_b32 s58, v26')
        a('s_cmp_ge_u32 s58, 256'); a('s_cbranch_scc1 K2_PW_OK')
        a('s_sleep 8')
        a('s_add_u32 s60, s60, 1'); a('s_cmp_lt_u32 s60, 0x40000'); a('s_cbranch_scc1 K2_PW')
        a.label('K2_PW_OK')
    p3_setup()
    six(XW0, 68, 18432, '')
    STG = (80, 104, 128)
    a('s_mul_i32 s45, s39, 36864'); a('s_add_u32 s45, s45, s67')
    for i in range(3):
        six(STG[i], 45, 18432 + i * 6144, '')
    def a_src(j):
        srcs = [frag_src(72 + 12 * l + j) for l in range(4)]
        a('s_cmp_eq_u32 s39, 1'); a(f's_mov_b32 s52, {srcs[0]}'); a(f's_cselect_b32 s52, {srcs[1]}, s52')
        a('s_cmp_eq_u32 s39, 2'); a(f's_cselect_b32 s52, {srcs[2]}, s52')
        a('s_cmp_eq_u32 s39, 3'); a(f's_cselect_b32 s52, {srcs[3]}, s52'); a('s_add_u32 s52, s52, s67')
    STA = [152, 156, 160, 164, 8, 12, 16, 20, 24]
    for j in range(4):
        a_src(j)
        a(f'buffer_load_dwordx4 {vr(STA[j])}, v3, s[16:19], s52 offen')
    if True:
        a('s_lshr_b32 s53, s2, 3'); a('s_lshl_b32 s53, s53, 2'); a('s_add_u32 s53, s53, s39')
        a('s_mul_i32 s53, s53, 11264'); a(f's_add_u32 s53, s53, {WS_WOT}')
        for k in range(11):
            if k % 4 == 0 and k: a('s_add_u32 s53, s53, 4096')
            a(f'buffer_load_dwordx4 v[4:7], v3, s[16:19], s53 offen offset:{(k % 4) * 1024}', tag='untracked')
    a('v_lshlrev_b32 v30, 7, v8')
    poll('K2_PB', 30, 74)
    if 'hs' in X: a.stamp(6)
    six(OGF, 69, 18432, '')
    for k in range(12):
        if k % 4 == 0: a(f's_add_u32 s56, s69, {18432 - 12288 + k * 1024}')
        a(f'buffer_load_dwordx4 v[4:7], v3, s[16:19], s56 offen offset:{(k % 4) * 1024}', tag='untracked')
    for j in range(4, 9):
        a_src(j)
        a(f'buffer_load_dwordx4 {vr(STA[j])}, v3, s[16:19], s52 offen')
    a('s_mul_i32 s45, s39, 18432'); a('v_add_u32 v29, s45, v3')
    a('s_mul_i32 s45, s39, 12288'); a('s_add_u32 s45, s45, 73728'); a('v_add_u32 v28, s45, v3')
    a.waitcnt(vm=0)
    if 'hs' in X: a.stamp(7)
    a('s_setprio 0')
    a('s_barrier')
    a('s_barrier')
    for i in range(18):
        a(f'ds_write_b128 v29, {vr(STG[i // 6] + 4 * (i % 6))} offset:{i * 1024}')
    a.waitcnt(lg=0)
    a('s_barrier')
    if 'hp2' in X: a('s_setprio 2')
    for j in range(9):
        a(f'ds_write_b128 v28, {vr(STA[j])} offset:{j * 1024}')
    for j in range(9, 12):
        a(f's_add_u32 m0, s45, {j * 1024}')
        a_src(j)
        a('buffer_load_dwordx4 v3, s[16:19], s52 offen lds')
    a.waitcnt(lg=0)
    a.restore(st_p3c)
    phase3(a, X, six)
    a.label('K2_END')
    a('s_endpgm')
    a.label('K2_TEXT_END')


def phase3(a, X, six):
    a.label('K2_P3')
    a.nop(2)
    a('s_cmp_ge_u32 s68, 0x7FF00000'); a('s_cbranch_scc1 K2_P3_4')
    st = a.snapshot()
    phase3v(a, X, six, 5)
    a('s_branch K2_FIN')
    a.restore(st)
    a.vm = [e for e in a.vm if not (e['d'] & {('v', r) for r in range(P3_XW[0], P3_XW[0] + 24)})]
    a.label('K2_P3_4')
    phase3v(a, X, six, 4)
    a.label('K2_FIN')
    if a.prof:
        if 'hs' in X:
            a('s_cmp_lt_u32 s36, 8'); a('s_cbranch_scc1 K2_END'); a('s_sub_u32 s36, s36, 8')
        else:
            a('s_cmp_ge_u32 s36, 8'); a('s_cbranch_scc1 K2_END')
        a.reset_state()
        a.stamp_flush(6, 0, 3, 36, 2, WS_PROF)
        if 'dbgout' in X:
            a('s_load_dwordx2 s[76:77], s[0:1], 64'); a.waitcnt(lg=0)
            a('s_mov_b32 s78, 56'); a('s_mov_b32 s79, 0x00020000')
            a('s_lshl_b32 s74, s2, 4'); a('s_or_b32 s74, s74, s36')
            a(f's_cmp_eq_u32 s74, {[int(x[2:]) for x in X if x.startswith("wg")][0] * 16}'); a('s_cselect_b32 s74, 16, 0x7FF00000')
            a('buffer_store_dword v1, v0, s[76:79], s74 offen')


def phase3v(a, X, six, NT):
    WR, ACC = 128, 8
    OGF, XW = 32, 80
    a('v_add_u32 v6, s66, v3')
    a('v_add_u32 v7, 73728, v6')

    def wrd(hf, k):
        for nt in range(4):
            a(f'ds_read_b128 {vr(WR + (k % 2) * 16 + 4 * nt)}, v{6 + hf} offset:{nt * 18432 + k * 1024}')

    def half(hf, extra=None):
        for k in range(6):
            for nt in range(NT):
                d = ACC + 4 * nt
                A = P3_XW[hf] + 4 * k if nt == 4 else WR + (k % 2) * 16 + 4 * nt
                a(f'v_mfma_f32_16x16x32_bf16 {vr(d)}, {vr(A)}, {vr(P3_OG[hf] + 4 * k)}, {"0" if k == 0 and hf == 0 else vr(d)}')
            if k + 2 < 6:
                wrd(hf, k + 2)
            if extra: extra(k)
    wrd(0, 0); wrd(0, 1)
    a('s_add_u32 s56, s68, 4096'); a('s_add_u32 s57, s69, 4096')

    def a_loads(k):
        for j in (((0, 1, 2), (3, 4, 5), (6, 7, 8), (9, 10, 11), (), ()) if 'ea' in X else ((0, 1, 2), (3, 4, 5), (), (6, 7), (8, 9), (10, 11)))[k]:
            i = j % 6
            if j < 6 and NT == 4:
                continue
            if j < 6:
                a(f'buffer_load_dwordx4 {vr(P3_XW[1] + 4 * i)}, v3, s[16:19], s{68 if i < 4 else 56} offen offset:{(i % 4) * 1024}')
            else:
                a(f'buffer_load_dwordx4 {vr(P3_OG[1] + 4 * i)}, v3, s[16:19], s{69 if i < 4 else 57} offen offset:{(i % 4) * 1024}')
    half(0, a_loads)
    if 'tl' in X: a.stamp(5)
    a('s_mov_b32 s20, s4'); a('s_mov_b32 s21, s5'); a(f's_mov_b32 s22, {2048*1152}'); a('s_mov_b32 s23, 0x00020000')
    a('v_and_b32 v5, 15, v2'); a('v_lshrrev_b32 v31, 4, v2')
    a('s_lshl_b32 s58, s73, 4'); a('v_add_u32 v5, s58, v5'); a('v_mul_u32_u24 v5, 1152, v5')
    a('v_lshl_add_u32 v28, v31, 3, v5')
    a('v_and_b32 v29, 1, v31'); a('v_lshl_add_u32 v5, v29, 5, v5')
    a('v_lshrrev_b32 v29, 1, v31'); a('v_lshl_add_u32 v29, v29, 4, v5')
    a('s_mov_b32 s60, 0')
    a.waitcnt(vm=0)
    a('s_barrier')
    wrd(1, 0); wrd(1, 1)
    a(f's_branch K2_P3CHK{NT}')
    a.label(f'K2_P3RETRY{NT}')
    six(P3_OG[1], 69, 0, ' sc1')
    a.waitcnt(vm=0)
    a.label(f'K2_P3CHK{NT}')
    R = P3_OG[1]
    a(f'v_max3_u32 v31, v{R}, v{R+1}, v{R+2}'); a(f'v_max3_u32 v5, v{R+3}, v{R+4}, v{R+5}')
    for k in range(6, 22, 4):
        a(f'v_max3_u32 v31, v{R+k}, v{R+k+1}, v31'); a(f'v_max3_u32 v5, v{R+k+2}, v{R+k+3}, v5')
    a(f'v_max3_u32 v31, v{R+22}, v{R+23}, v31'); a('v_max_u32 v31, v31, v5')
    a('v_cmp_eq_u32 vcc, -1, v31')
    a('s_add_u32 s60, s60, 1'); a('s_cmp_lt_u32 s60, 0x2000'); a('s_cselect_b64 s[76:77], -1, 0')
    a('s_and_b64 vcc, vcc, s[76:77]')
    a(f's_cbranch_scc1 K2_P3RETRY{NT}')
    if 'tl' in X: a.stamp(6)
    a('s_mul_i32 s58, s36, 5120'); a('v_add_u32 v6, s58, v3')
    half(1)
    a('s_cmp_eq_u32 s66, 0'); a(f's_cbranch_scc1 K2_P3R{NT}')
    st = a.snapshot()
    for nt in range(NT):
        a(f'ds_write_b128 v6, {vr(ACC + 4 * nt)} offset:{nt * 1024}')
    a.waitcnt(lg=0)
    a('s_barrier')
    a('s_branch K2_FIN')
    a.restore(st)
    a.label(f'K2_P3R{NT}')
    a('s_barrier')
    for j in range(2):
        for nt in range(NT):
            a(f'ds_read_b128 {vr(OGF + (j * 5 + nt) * 4)}, v6 offset:{(j + 1) * 20480 + nt * 1024}')
    for nt in range(NT):
        d = ACC + 4 * nt
        for j in range(2):
            s_ = OGF + (j * 5 + nt) * 4
            a(f'v_pk_add_f32 v[{d}:{d+1}], v[{d}:{d+1}], v[{s_}:{s_+1}]')
            a(f'v_pk_add_f32 v[{d+2}:{d+3}], v[{d+2}:{d+3}], v[{s_+2}:{s_+3}]')
        t = XW + nt * 2
        a(f'v_cvt_pk_bf16_f32 v{t}, v{d}, v{d+1}'); a(f'v_cvt_pk_bf16_f32 v{t+1}, v{d+2}, v{d+3}')
        if nt % 2 == 1:
            t0 = t - 2
            a(f'v_permlane16_swap_b32 v{t0}, v{t0+2}'); a(f'v_permlane16_swap_b32 v{t0+1}, v{t0+3}')
            a(f'buffer_store_dwordx4 {vr(t0)}, v29, s[20:23], s72 offen offset:{(nt - 1) * 32}' + (' sc1' if 'osc1' in X else ''))
        elif nt == 4:
            a(f'buffer_store_dwordx2 {vr(t, 2)}, v28, s[20:23], s71 offen' + (' sc1' if 'osc1' in X else ''))


DESC = f"""
.amdhsa_kernel gated_mix__mha_block__linear_attn_block__prompt_kernel
  .amdhsa_next_free_vgpr {NV2}
  .amdhsa_next_free_sgpr 102
  .amdhsa_accum_offset {NV2}
  .amdhsa_group_segment_fixed_size 0
  .amdhsa_kernarg_size 80
  .amdhsa_user_sgpr_count 2
  .amdhsa_user_sgpr_kernarg_segment_ptr 1
  .amdhsa_system_sgpr_workgroup_id_x 1
.end_amdhsa_kernel
"""
```

```python
from asmlib import Asm
from layout import *

WPART = 14400
SLOT = WPART
NS = 6
XBASE = NS * SLOT
XSLOT = 16384
NX = 4
LDS1 = XBASE + NX * XSLOT
assert XBASE % 128 == 0

ACC = 56
WF = 12
NWF = 3
XF = 24
TOK_L = 153600 - 32


PFS = [(2, 0), (0, 4), (6, 0), (0, 8)]
PF = {'pf1': ([(2, 2)], [(4, 6), (8, 8)]), 'pf2': ([(2, 4)], [(6, 8)]), 'pf3': ([(0, 2)], [(4, 6), (8, 8)]), 'pf4': ([(2, 4)], [])}


def acc(rt, tile):
    return ACC + (tile * 4 + rt) * 4


def vr(b, n=4):
    return f'v[{b}:{b+n-1}]'


def gen(a, X=()):
    prof = a.prof
    a.raw('.p2align 8')
    a.raw('.globl gated_mix__mha_block__linear_attn_block__prompt_kernel')
    a.raw('.type gated_mix__mha_block__linear_attn_block__prompt_kernel,@function')
    a.label('gated_mix__mha_block__linear_attn_block__prompt_kernel')
    a('s_cmp_ge_u32 s2, 256')
    a('s_cbranch_scc1 K2_END')
    a.stamp(0, real=True); a.stamp(1)
    a('s_load_dwordx4 s[4:7], s[0:1], 0')
    a('s_load_dwordx2 s[8:9], s[0:1], 32')
    a('s_load_dwordx2 s[10:11], s[0:1], 48')
    a('s_load_dwordx2 s[12:13], s[0:1], 72')
    a('s_load_dwordx2 s[14:15], s[0:1], 16')
    a('s_load_dwordx2 s[32:33], s[0:1], 40')
    a('s_load_dwordx2 s[82:83], s[0:1], 64')
    a('v_lshrrev_b32 v1, 6, v0')
    a('v_and_b32 v2, 63, v0')
    a('v_readfirstlane_b32 s36, v1')
    a('s_and_b32 s37, s2, 7')
    a('s_lshr_b32 s38, s2, 3')
    a('s_and_b32 s39, s37, 1')
    a('s_lshl_b32 s39, s39, 3')
    a('s_and_b32 s40, s38, 7')
    a('s_add_u32 s39, s39, s40')
    if 'newmap' not in X:
        a('s_lshr_b32 s40, s37, 1'); a('s_lshl_b32 s40, s40, 2'); a('s_lshr_b32 s41, s38, 3'); a('s_add_u32 s40, s40, s41')
    else:
        a('s_and_b32 s40, s37, 6'); a('s_bfe_u32 s41, s38, 0x10003'); a('s_add_u32 s40, s40, s41')
        a('s_lshr_b32 s41, s38, 4'); a('s_lshl_b32 s41, s41, 3'); a('s_add_u32 s40, s40, s41')
    a('s_lshr_b32 s41, s40, 3')
    a('s_and_b32 s42, s40, 7')
    a('s_and_b32 s43, s36, 1')
    a('s_bfe_u32 s44, s36, 0x10001')
    if 'wsend' in X:
        a.waitcnt(lg=0); a('s_add_u32 s12, s12, 0xE000000'); a('s_addc_u32 s13, s13, 0')
    a('s_cmp_ge_u32 s36, 8')
    a('s_cbranch_scc1 K1_HELPER')
    a('s_cmp_lt_u32 s36, 4')
    a('s_cbranch_scc1 K1_COMPUTE')
    st_entry = a.snapshot()
    FILL = [('x', 1), ('w', 2), ('w', 3), ('x', 2), ('w', 4), ('w', 5), ('x', 3)]
    NC = [int(x[1:]) for x in X if x[0] == 'c' and x[1:].isdigit()]
    NC = NC[0] if NC else 0
    a('s_mov_b32 s34, 0xF7FFFFFF')
    a('s_mov_b32 s35, 0x007FFFFF')
    a('v_cmp_le_u32 vcc, 28, v2')
    a('v_mov_b32 v4, 0')
    a('v_mov_b32 v5, 3008')
    a('v_cndmask_b32 v4, v4, v5, vcc')
    a('v_lshl_add_u32 v3, v2, 4, v4')
    a('s_mul_i32 s58, s42, 432')
    a('v_add_u32 v3, s58, v3')
    a('v_lshrrev_b32 v5, 3, v2')
    a('v_and_b32 v6, 7, v2')
    a('v_and_b32 v7, 2, v5')
    a('v_lshlrev_b32 v7, 1, v7')
    a('s_lshl_b32 s58, s43, 1')
    a('v_or_b32 v7, s58, v7')
    a('v_xor_b32 v6, v6, v7')
    a('v_mul_u32_u24 v5, 1152, v5')
    a('v_lshl_add_u32 v4, v6, 4, v5')
    a('s_mul_i32 s60, s44, 7200')
    a('s_mul_i32 s58, s43, 3616')
    a('s_add_u32 s60, s60, s58')
    a('s_and_b32 s58, s36, 3')
    a('s_mul_i32 s61, s58, 27648')
    a('s_lshl_b32 s58, s43, 1'); a('s_lshl_b32 s59, s44, 3'); a('s_add_u32 s58, s58, s59')
    a('s_lshl_b32 s62, s58, 10'); a(f's_add_u32 s62, s62, {XBASE}')
    a('s_lshl_b32 s59, s39, 4'); a('s_add_u32 s58, s58, s59')
    a('s_mul_i32 s63, s58, 9216')
    a('s_and_b32 s58, s38, 7'); a('s_lshr_b32 s59, s38, 3'); a('s_lshl_b32 s59, s59, 1'); a('s_add_u32 s58, s58, s59')
    a('s_sub_u32 s59, s58, 9'); a('s_cmp_ge_u32 s58, 9'); a('s_cselect_b32 s66, s59, s58')
    if 'norot' in X: a('s_mov_b32 s66, 0')
    if 'h1' in X or 'h2' in X: a('s_min_u32 s66, s66, 7' if 'h1' in X else 's_min_u32 s66, s66, 6')
    if 'rot3' in X:
        a('s_mul_i32 s58, s66, 43'); a('s_lshr_b32 s58, s58, 7'); a('s_mul_i32 s66, s58, 3')
    if 'rot2' in X:
        a('s_and_b32 s66, s66, 1'); a('s_lshl_b32 s66, s66, 2')
    a.waitcnt(lg=0)
    a('s_mov_b32 s16, s4'); a('s_mov_b32 s17, s5'); a(f's_mov_b32 s18, {2048*1152}'); a('s_mov_b32 s19, 0x00020000')
    a('s_cmp_eq_u32 s41, 0')
    a('s_cselect_b32 s20, s6, s8'); a('s_cselect_b32 s21, s7, s9')
    a(f's_mov_b32 s22, {576*3456}'); a('s_mov_b32 s23, 0x00020000')
    a('s_mov_b32 s28, s10'); a('s_mov_b32 s29, s11'); a('s_mov_b32 s30, 1152'); a('s_mov_b32 s31, 0x00020000')

    def kblock(A):
        H = [int(x[1:]) for x in X if x[0] == 'h' and x[1:].isdigit()]
        if H:
            h = H[0]
            if A < h:
                a(f's_mov_b32 s67, {A}')
            else:
                n = 9 - h
                a(f's_add_u32 s67, s66, {A - h}')
                for _ in range(2 if n < 8 else 1):
                    a(f's_sub_u32 s58, s67, {n}'); a(f's_cmp_ge_u32 s67, {n}'); a('s_cselect_b32 s67, s58, s67')
                a(f's_add_u32 s67, s67, {h}')
            return
        a(f's_add_u32 s67, s66, {A}'); a('s_sub_u32 s58, s67, 9'); a('s_cmp_ge_u32 s67, 9'); a('s_cselect_b32 s67, s58, s67')

    def xhalf(A, h):
        if h == 0:
            kblock(A)
            a('s_lshl_b32 s69, s67, 7'); a('s_add_u32 s69, s69, s63')
        for n in (2 * h, 2 * h + 1):
            rg = (n & 1) + 4 * (n >> 1)
            a(f's_add_u32 m0, s62, {(A % NX) * XSLOT + rg * 1024}')
            a(f's_add_u32 s65, s69, {rg * 9216}')
            if 'noload' not in X and 'nox' not in X: a('buffer_load_dwordx4 v4, s[16:19], s65 offen lds', tag=('x', A))

    def xchunk(A):
        xhalf(A, 0); xhalf(A, 1)

    def wchunk(c):
        if c % 2 == 0:
            kblock(c // 2)
            a(f's_mul_i32 s68, s67, {64 * 3456}'); a('s_add_u32 s68, s68, s61')
        a('s_mov_b64 exec, s[34:35]')
        for n in range(4):
            a(f's_add_u32 m0, s60, {(c % NS) * SLOT + n * 896}')
            a(f's_add_u32 s64, s68, {((c % 2) * 32 + 2 * n) * 3456}')
            if 'noload' not in X and 'now' not in X: a('buffer_load_dwordx4 v3, s[20:23], s64 offen lds', tag=('w', c))
        a('s_mov_b64 exec, -1')

    PF2 = 'pf2' in X
    if PF2:
        a('v_lshrrev_b32 v20, 3, v2'); a('s_and_b32 s58, s37, 1'); a('s_lshl_b32 s58, s58, 5'); a('s_add_u32 s58, s58, s38')
        a('s_lshl_b32 s58, s58, 2'); a('s_and_b32 s59, s36, 3'); a('s_add_u32 s58, s58, s59'); a('s_lshl_b32 s58, s58, 3')
        a('v_add_u32 v20, s58, v20'); a('v_mul_u32_u24 v20, 1152, v20'); a('v_and_b32 v21, 7, v2'); a('v_lshl_add_u32 v20, v21, 4, v20')
        a('s_lshl_b32 s59, s59, 10'); a('v_lshlrev_b32 v21, 4, v2'); a('v_add_u32 v21, s59, v21')
        a('v_mov_b32 v22, 0'); a('v_mov_b32 v23, 1664'); a('v_cmp_le_u32 vcc, 0x700, v21'); a('v_cndmask_b32 v22, v22, v23, vcc')
        a('v_min_u32 v21, 3568, v21'); a('v_add_u32 v21, v21, v22')
        a('s_bfe_u32 s58, s37, 0x10001'); a('s_mul_i32 s58, s58, 1664'); a('s_mul_i32 s59, s38, 6912'); a('s_add_u32 s58, s58, s59')
        a('v_add_u32 v21, s58, v21')

    def pfx(b):
        if PF2 and b < 9:
            a(f's_mov_b32 s58, {b * 128}'); a('buffer_load_dwordx4 v[24:27], v20, s[16:19], s58 offen', tag='pf')

    def pfw(b):
        if PF2 and b < 9:
            a(f's_mov_b32 s58, {b * 64 * 3456}'); a('buffer_load_dwordx4 v[28:31], v21, s[20:23], s58 offen', tag='pf')
    xchunk(0); wchunk(0)
    a('s_lshl_b32 s72, s40, 3'); a('s_or_b32 s72, s72, s36')
    a('s_cmp_lg_u32 s72, 4'); a('s_cbranch_scc1 K1_NGL')
    a('v_lshlrev_b32 v19, 1, v2')
    for g in range(9):
        kblock(g); a('s_lshl_b32 s58, s67, 7')
        a(f'buffer_load_ushort v{41+g}, v19, s[28:31], s58 offen', tag=('w', 0))
    a.label('K1_NGL')
    wchunk(1)
    for b in (1, 2, 3):
        pfx(b); pfw(b)
    a('v_bfe_u32 v6, v2, 4, 1')
    a('v_mul_u32_u24 v18, 7200, v6')
    a('v_and_b32 v6, 15, v2')
    a('v_mul_u32_u24 v6, 448, v6')
    a('v_add_u32 v18, v18, v6')
    a('v_bfe_u32 v6, v2, 3, 1')
    a('v_lshl_add_u32 v18, v6, 5, v18')
    a('v_lshrrev_b32 v6, 5, v2')
    a(f'v_mul_u32_u24 v6, {SLOT}, v6')
    a('v_add_u32 v18, v18, v6')
    a('v_add_u32 v18, 432, v18')
    a(f'v_add_u32 v17, {4*SLOT}, v18')


    def gate_write(g):
        sl = (2 * g) % NS
        a('s_cmp_lg_u32 s72, 4'); a(f's_cbranch_scc1 K1_NG{g}')
        if sl == 4:
            a(f'ds_write_b16 v17, v{41+g}')
        else:
            a(f'ds_write_b16 v18, v{41+g} offset:{sl * SLOT}')
        a.label(f'K1_NG{g}')
    if 'free' in X:
        win = [int(x[1:]) for x in X if x[0] == 'n' and x[1:].isdigit()][0]
        a.stamp(2)
        for s in range(4, 18):
            if s % 2 == 0:
                xchunk(s // 2)
            wchunk(s)
            a.waitcnt(vm=min(win, 63))
            if s in (8, 12): a.stamp({8: 3, 12: 4}[s])
        a.stamp(5); a.stamp(6); a.stamp(7)
        a('s_sub_u32 s36, s36, 4')
        a('s_branch K1_FIN')
    a.wait_vm_tag(('w', 0))
    for g in range(3):
        gate_write(g)
    a.waitcnt(lg=0)
    a('s_barrier')
    rest = FILL[NC:]
    pre_n = max(0, 3 - NC)
    for k, i in rest[:pre_n]:
        xchunk(i) if k == 'x' else wchunk(i)
    rest = rest[pre_n:]
    plan = {}
    for s in range(0, 18):
        p = []
        A, h = ((s + 7) // 2, 0) if s % 2 else ((s + 6) // 2, 1)
        if 4 <= A < 9: p.append(('x', A, h))
        if s + 6 < 18: p.append(('w', s + 6))
        if s < 2:
            q = []
            for k, i in (rest[:3] if s == 0 else rest[3:]):
                q += [('x', i, 0), ('x', i, 1)] if k == 'x' else [('w', i)]
            if s == 0 and rest:
                held = p; p = q
            else:
                p = q + (held if rest and s == 1 else []) + p
                p.sort(key=lambda z: z[1] if z[0] == 'w' else 2 * z[1] - 0.5)
        plan[s] = p
    L = 'lst' in X
    PFD = 4
    for s in range(18):
        if L and s in (7, 8): a.stamp(2 + 3 * (s - 7))
        a.wait_vm_tag(('w', s + 1))
        a.wait_vm_tag(('x', (s + 1) // 2))
        a.waitcnt(lg=0)
        if L and s in (7, 8): a.stamp(3 + 3 * (s - 7))
        a('s_barrier')
        if L and s in (7, 8): a.stamp(4 + 3 * (s - 7))
        for p in plan[s]:
            if p[0] == 'x': xhalf(p[1], p[2])
            else: wchunk(p[1])
        if s + 6 < 18 and (s + 6) % 2 == 1:
            gate_write((s + 6) // 2)
        if s % 2 == 0: pfx(s // 2 + PFD); pfw(s // 2 + PFD)
    a('s_barrier')
    a('s_branch K2_ENTRY')

    a.restore(st_entry)
    a.label('K1_HELPER')
    a.waitcnt(lg=0)
    a('s_mov_b32 s20, s82'); a('s_mov_b32 s21, s83'); a('s_mov_b32 s22, 256'); a('s_mov_b32 s23, 0x00020000')
    a('s_cmp_lg_u32 s36, 8'); a('s_cbranch_scc1 K1_HT0')
    a('s_memrealtime s[78:79]'); a.waitcnt(lg=0)
    a('s_or_b32 s79, s79, 0x80000000')
    a('v_mov_b32 v4, s78'); a('v_mov_b32 v5, s79'); a('v_mov_b32 v6, 0'); a('v_mov_b32 v7, 0'); a('v_mov_b32 v8, 0')
    a('s_mov_b64 exec, 1')
    a('buffer_atomic_cmpswap_x2 v[4:7], v8, s[20:23], 0 offen sc0', tag='untracked')
    a('s_mov_b64 exec, -1')
    a.label('K1_HT0')
    a(f'v_mov_b32 v9, {TOK_L}')
    a('s_barrier')
    if 'nocode' not in X:
        a.raw('  s_getpc_b64 s[60:61]')
        a.label('K1_PC')
        a('s_lshl_b32 s58, s38, 2'); a('s_and_b32 s59, s36, 3'); a('s_add_u32 s58, s58, s59'); a('s_lshl_b32 s58, s58, 10')
        a.raw('  s_cmp_ge_u32 s58, K2_TEXT_END - K1_PC - 1024')
        a('s_cbranch_scc1 K1_NOCP')
        a('v_lshlrev_b32 v10, 4, v2'); a('v_add_u32 v10, s58, v10'); a('v_mov_b32 v11, s61')
        a('v_add_co_u32 v10, vcc, s60, v10'); a('v_addc_co_u32 v11, vcc, 0, v11, vcc')
        a('global_load_dwordx4 v[16:19], v[10:11], off', tag='pf')
        a.label('K1_NOCP')
    if 'tlb' in X:
        a('s_mov_b32 s24, s12'); a('s_mov_b32 s25, s13'); a(f's_mov_b32 s26, {WS_END}'); a('s_mov_b32 s27, 0x00020000')
        a('v_lshlrev_b32 v10, 21, v2'); a('s_mov_b64 exec, 0x7FF')
        a('buffer_load_dword v20, v10, s[24:27], 0 offen', tag='pf')
        a('s_mov_b64 exec, -1')
    for b in range(10):
        a('s_barrier')
    a.waitcnt(vm=0)
    a('s_cmp_lg_u32 s36, 8'); a('s_cbranch_scc1 K1_HT1')
    a('v_readfirstlane_b32 s76, v4'); a('v_readfirstlane_b32 s77, v5')
    a('s_cmp_eq_u64 s[76:77], 0'); a('s_cselect_b64 s[78:79], s[78:79], s[76:77]')
    a('v_mov_b32 v4, s78'); a('v_mov_b32 v5, s79')
    a('ds_write_b64 v9, v[4:5]')
    a.waitcnt(lg=0)
    a.label('K1_HT1')
    a('s_barrier')
    a('ds_read_b64 v[4:5], v9')
    a('v_readfirstlane_b32 s78, v4'); a('v_readfirstlane_b32 s79, v5')
    a('s_barrier')
    wo_gather(a, 0); wo_gather(a, 1)
    for b in range(4):
        a('s_barrier')
    wo_store(a, 0); wo_store(a, 1)
    for b in range(2):
        a('s_barrier')
    a('s_lshl_b32 s58, s39, 4'); a('s_add_u32 s58, s58, s40'); a('s_lshl_b32 s58, s58, 7'); a(f's_add_u32 s58, s58, {WS_FL1}')
    a('v_mov_b32 v6, 0'); a('v_mov_b32 v7, 1'); a('v_mov_b32 v8, 8')
    a.waitcnt(vm=0)
    a('s_barrier')
    a('s_cmp_lg_u32 s36, 8'); a('s_cbranch_scc1 K2_ENTRY')
    if 'wb' in X:
        a.raw('  buffer_wbl2 sc1'); a.raw('  s_waitcnt vmcnt(0)')
    a('s_mov_b64 exec, 1')
    a('buffer_store_dwordx2 v[4:5], v6, s[24:27], s58 offen sc1')
    a('buffer_atomic_add v7, v8, s[20:23], 0 offen')
    a('s_mov_b64 exec, -1')
    a('s_branch K2_ENTRY')

    a.restore(st_entry)
    a.label('K1_COMPUTE')
    a('s_setprio 3')
    a('s_cmp_eq_u32 s42, 5')
    a('s_cselect_b32 s45, 2, 0')
    a('s_cselect_b32 s46, 0, 4')
    a('s_add_u32 s47, s45, 3')
    a('s_add_u32 s48, s45, 1')
    a('s_cmp_eq_u32 s44, 0')
    a('s_cselect_b32 s47, s45, s47')
    a('s_cselect_b32 s48, s48, s46')
    a('s_cselect_b32 s49, s45, s46')
    a('s_cselect_b32 s50, 4, 2')
    a('s_mul_i32 s51, s42, 6')
    a('s_mul_i32 s52, s41, 3')
    a('s_add_u32 s53, s51, s47')
    a('s_add_u32 s54, s51, s48')
    a('s_add_u32 s55, s51, s49')
    a('s_lshr_b32 s56, s53, 4')
    a('s_add_u32 s56, s56, s52')
    a('s_lshr_b32 s57, s54, 4')
    a('s_add_u32 s57, s57, s52')
    a('s_and_b32 s53, s53, 15')
    a('s_and_b32 s54, s54, 15')
    a('s_and_b32 s55, s55, 15')
    a('v_lshrrev_b32 v25, 5, v2')
    a('v_mul_u32_u24 v24, 7200, v25')
    a('v_bfe_u32 v25, v2, 4, 1')
    a('v_mul_u32_u24 v25, 3616, v25')
    a('v_add_u32 v24, v24, v25')
    a('v_bfe_u32 v25, v2, 2, 2')
    a('v_mul_u32_u24 v25, 448, v25')
    a('v_add_u32 v24, v24, v25')
    a('v_and_b32 v25, 3, v2')
    a('v_lshl_add_u32 v26, v25, 3, v24')
    a('s_mul_i32 s58, s47, 72')
    a('v_add_u32 v3, s58, v26')
    a('s_mul_i32 s58, s48, 72')
    a('v_add_u32 v5, s58, v26')
    a('v_add_u32 v27, s49, v25')
    a('v_mul_u32_u24 v27, 72, v27')
    a('v_add_u32 v27, 32, v27')
    a('v_lshlrev_b32 v28, 3, v25')
    a('v_add_u32 v28, 416, v28')
    a('v_cmp_gt_u32 vcc, s50, v25')
    a('v_cndmask_b32 v27, v28, v27, vcc')
    a('v_add_u32 v4, v24, v27')
    a('v_and_b32 v25, 15, v2')
    a('v_lshrrev_b32 v26, 2, v25')
    a('v_and_b32 v27, 3, v25')
    a('v_lshl_add_u32 v29, v26, 3, v27')
    a('s_lshl_b32 s58, s43, 6')
    a('v_add_u32 v28, s58, v29')
    a('v_lshlrev_b32 v28, 7, v28')
    a('v_and_b32 v27, 2, v27')
    a('v_lshlrev_b32 v27, 1, v27')
    a('v_and_b32 v26, 2, v26')
    a('v_or_b32 v26, v26, v27')
    a('v_lshrrev_b32 v30, 4, v2')
    a('v_xor_b32 v27, v30, v26')
    a('v_lshl_add_u32 v9, v27, 4, v28')
    a(f'v_add_u32 v9, {XBASE}, v9')
    a('v_xor_b32 v10, 64, v9')
    a('v_mov_b32 v11, v9')
    a('s_mov_b32 s79, 0')
    for r in (3, 4, 5):
        a(f'v_add_u32 v{r+3}, {3*SLOT}, v{r}')
    a('s_lshr_b32 s58, 0x18, s56'); a('s_and_b32 s66, s58, 1')
    a('s_lshr_b32 s58, 0x18, s57'); a('s_and_b32 s67, s58, 1')
    a(f's_mul_i32 s68, s66, {EPS_BITS}')
    a(f's_mul_i32 s69, s67, {EPS_BITS}')
    for tile in range(7):
        for r in range(16):
            a(f'v_mov_b32 v{ACC + tile*16 + r}, s{68 if tile < 2 else 69}')
    a('s_lshr_b32 s58, 0x34, s56'); a('s_and_b32 s70, s58, 1')
    a('s_lshr_b32 s58, 0x34, s57'); a('s_and_b32 s71, s58, 1')
    a('s_lshl_b32 s58, s70, 1'); a('s_or_b32 s72, s58, s71')
    a.waitcnt(lg=0)
    a('s_mov_b32 s24, s12'); a('s_mov_b32 s25, s13'); a(f's_mov_b32 s26, {WS_END}'); a('s_mov_b32 s27, 0x00020000')
    a('s_lshl_b32 s77, s39, 7'); a('s_lshl_b32 s58, s43, 6'); a('s_add_u32 s77, s77, s58')
    a('s_mov_b32 s73, 3')
    if 'nob' in X:
        a('s_cmp_eq_u32 s41, 1'); a('s_cselect_b32 s26, 0, s26')
    a('s_cmp_eq_u32 s72, 1'); a('s_cbranch_scc1 K1_TN')
    a('s_cmp_eq_u32 s72, 2'); a('s_cbranch_scc1 K1_NT')
    a('s_cmp_eq_u32 s72, 3'); a('s_cbranch_scc1 K1_NN')
    state = a.snapshot()

    def tile_addr(tile, slot):
        base = {0: 3, 1: 3, 2: 4}.get(tile, 5)
        imm = {0: 0, 1: 40, 2: 0, 3: 0, 4: 40, 5: 72, 6: 112}[tile]
        if slot >= 3:
            base += 3
            slot -= 3
        return base, imm + slot * SLOT

    for (name, Na, Nb) in (('TT', 0, 0), ('TN', 0, 1), ('NT', 1, 0), ('NN', 1, 1)):
        a.restore(state)
        a.label(f'K1_{name}')
        epi_setup(a, name, Na, Nb)

        def wread(idx):
            s, t = (idx // 7) % NS, idx % 7
            b, imm = tile_addr(t, s)
            d = WF + (idx % NWF) * 4
            a(f'ds_read_b64_tr_b16 {vr(d, 2)}, v{b} offset:{imm}')
            a(f'ds_read_b64_tr_b16 {vr(d + 2, 2)}, v{b} offset:{imm + 1792}')

        def xread(s, rt):
            d = XF + (s % 2) * 16 + rt * 4
            off = (rt // 2) * 4096 + (rt % 2) * 512
            a(f'ds_read_b128 {vr(d)}, v{9 if s % 2 == 0 else 10} offset:{off}')

        a('s_barrier')
        a.stamp(2)

        def body():
            for s in range(NS):
                for t in range(7):
                    idx = s * 7 + t
                    wf = WF + (idx % NWF) * 4
                    N = Na if t < 2 else Nb
                    for rt in range(4):
                        xf = XF + (s % 2) * 16 + rt * 4
                        d = acc(rt, t)
                        if N:
                            a(f'v_mfma_f32_16x16x32_bf16 {vr(d)}, {vr(xf)}, {vr(wf)}, {vr(d)}')
                        else:
                            a(f'v_mfma_f32_16x16x32_bf16 {vr(d)}, {vr(wf)}, {vr(xf)}, {vr(d)}')
                        if t == 5:
                            xread(s + 1, rt)
                        if rt == 1 and t == 6 and s % 2 == 0:
                            a(f's_add_u32 s79, s79, {XSLOT}'); a(f's_and_b32 s79, s79, {NX * XSLOT - 1}')
                            a('v_add_u32 v9, s79, v11'); a('v_xor_b32 v10, 64, v9')
                    if t == 4:
                        a.waitcnt(lg=0)
                        a('s_barrier')
                    wread(idx + NWF)

        def tail():
            a('s_sub_u32 s73, s73, 1'); a('s_cmp_lg_u32 s73, 0'); a(f's_cbranch_scc1 K1_{name}_LOOP')
        wread(0)
        for rt in range(4):
            xread(0, rt)
        wread(1); wread(2)
        n0 = len(a.lines); st = a.snapshot(); body(); tail(); back = a.snapshot(); del a.lines[n0:]; a.restore(st)
        a.waitcnt(lg=len(back[5]))
        a.loop(f'K1_{name}_LOOP', body, tail)
        a.stamp(3)
        epi_lanes(a, name, Na, Nb)
        epilogue(a, name, Na, Nb, X)
        a('s_branch K1_FIN')
    a.label('K1_FIN')
    a.reset_state()
    a('s_setprio 0')
    a.waitcnt(vm=0)
    a('s_barrier')
    a.stamp(4)


def wo_gather(a, r):
    V = 64 + 16 * r
    sf = 70 + r
    a('s_lshl_b32 s53, s2, 2'); a('s_and_b32 s58, s36, 3'); a('s_add_u32 s53, s53, s58')
    if r: a('s_add_u32 s53, s53, 1024')
    a(f's_mul_hi_u32 s54, s53, {-(-(1 << 32) // 36)}')
    a('s_mul_i32 s55, s54, 36'); a('s_sub_u32 s55, s53, s55')
    a('s_cmp_ge_u32 s55, 18')
    a('s_cselect_b32 s28, s32, s14'); a('s_cselect_b32 s29, s33, s15')
    a('s_cselect_b32 s56, 18, 0'); a('s_sub_u32 s55, s55, s56')
    a(f's_mov_b32 s30, {576*1152}'); a('s_mov_b32 s31, 0x00020000')
    a('s_mul_i32 s56, s55, 36')
    a('s_mul_i32 s57, s55, 288'); a(f's_sub_u32 s57, s57, {288*16-16}')
    a('s_cmp_ge_u32 s55, 16')
    a('s_cselect_b32 s56, s57, s56')
    a('s_cselect_b32 s57, 144, 20')
    a('s_cselect_b32 s58, 72, 8')
    a('s_cselect_b32 s59, 36, 4')
    a('s_mul_i32 s59, s59, 1152')
    a('v_lshrrev_b32 v13, 5, v2')
    a('v_mul_lo_u32 v13, v13, s57')
    a('v_bfe_u32 v14, v2, 4, 1')
    a('v_mul_lo_u32 v14, v14, s58')
    a('v_add3_u32 v13, v13, v14, s56')
    a('v_mul_u32_u24 v13, 1152, v13')
    a('v_and_b32 v14, 15, v2')
    a('v_lshl_add_u32 v13, v14, 1, v13')
    a('s_lshl_b32 s56, s54, 5')
    a('s_cmp_lt_u32 s53, 1296')
    a('s_cselect_b32 s56, s56, 0x7FF00000')
    a('v_add_u32 v13, s56, v13')
    a(f's_lshl_b32 s{sf}, s53, 10'); a(f's_add_u32 s{sf}, s{sf}, {WS_WOT}')
    a('s_cmp_lt_u32 s53, 1296')
    a(f's_cselect_b32 s{sf}, s{sf}, 0x7FF00000')
    for j in range(8):
        so = '0' if j < 4 else 's59'
        a(f'buffer_load_ushort v{V+j}, v13, s[28:31], {so} offen offset:{(j % 4) * 1152}')


def wo_store(a, r):
    V = 64 + 16 * r
    if r == 0:
        a('s_mov_b32 s24, s12'); a('s_mov_b32 s25, s13'); a(f's_mov_b32 s26, {WS_END}'); a('s_mov_b32 s27, 0x00020000')
        a('v_lshlrev_b32 v15, 4, v2')
    for j in range(4):
        a(f'v_lshl_or_b32 v{V+8+j}, v{V+1+2*j}, 16, v{V+2*j}')
    a(f'buffer_store_dwordx4 v[{V+8}:{V+11}], v15, s[24:27], s{70+r} offen sc1')


def epi_setup(a, name, Na, Nb):
    def dest_scalars(stype, shp, N, sd, tail):
        if N:
            a(f's_sub_u32 s58, s{stype}, 3'); a(f's_cmp_eq_u32 s{stype}, 2'); a('s_cselect_b32 s58, 0, s58')
            a(f's_mul_i32 s58, s58, {NIMG * 32}')
            a(f's_mul_i32 s59, s{shp}, {NIMG * 2}')
            a(f's_add_u32 s{sd}, s58, s59'); a(f's_add_u32 s{sd}, s{sd}, {WS_VA}')
        else:
            a(f's_cmp_eq_u32 s{stype}, 3'); a(f's_cselect_b32 s58, 2, s{stype}')
            if tail:
                a('s_lshl_b32 s58, s58, 18'); a(f's_lshl_b32 s59, s{shp}, 14')
                a(f's_add_u32 s{sd}, s58, s59'); a(f's_add_u32 s{sd}, s{sd}, {WS_QAT}')
            else:
                a('s_lshl_b32 s58, s58, 21'); a(f's_lshl_b32 s59, s{shp}, 17')
                a(f's_add_u32 s{sd}, s58, s59')
                assert WS_QAM == 0
    dest_scalars(56, 53, Na, 80, False)
    dest_scalars(57, 54, Nb, 81, False)
    dest_scalars(57, 55, Nb, 82, True)
    for st, sd in ((56, 30), (57, 14)):
        a(f's_cmp_eq_u32 s{st}, 0'); a(f's_cselect_b32 s{sd}, {QSCALE_BITS}, 1.0'); a(f's_mov_b32 s{sd+1}, s{sd}')
    a(f's_mov_b32 s74, {LOG2E_BITS}'); a(f's_mov_b32 s75, {LOG2E_BITS}'); a(f's_mov_b32 s76, {EPS_BITS}')


def epi_lanes(a, name, Na, Nb):
    a.waitcnt(lg=0)
    a('v_and_b32 v19, 15, v2'); a('v_lshrrev_b32 v20, 2, v19'); a('v_and_b32 v19, 3, v19'); a('v_lshl_add_u32 v12, v20, 3, v19')
    a('v_lshrrev_b32 v13, 4, v2')
    a(f'v_mov_b32 v22, {NEG_EPS_LOG2E_BITS}'); a(f'v_mov_b32 v23, {NEG_EPS_LOG2E_BITS}')
    if (not Na) or (not Nb):
        a('v_and_b32 v19, 1, v13'); a('v_lshl_add_u32 v19, v19, 2, v12'); a('v_lshlrev_b32 v19, 4, v19')
        a('v_lshrrev_b32 v20, 1, v13'); a('v_lshl_add_u32 v14, v20, 9, v19')
        a('s_lshl_b32 s58, s77, 5'); a('v_add_u32 v14, s58, v14')
    if not Nb:
        a('v_add_u32 v19, s77, v12'); a('v_lshlrev_b32 v19, 3, v19'); a('v_lshl_add_u32 v15, v13, 14, v19')
        a('v_mov_b32 v20, 0x7FF00000'); a('v_cmp_gt_u32 vcc, s50, v13'); a('v_cndmask_b32 v15, v20, v15, vcc')
    if Na or Nb:
        a('s_lshr_b32 s58, s77, 3'); a('v_add_u32 v19, s58, v13'); a('v_mul_u32_u24 v19, 18, v19')
        a('v_and_b32 v20, 15, v2'); a('v_add_u32 v16, v19, v20'); a('v_lshlrev_b32 v16, 4, v16')
    if Nb:
        a('v_and_b32 v21, 1, v20'); a('v_add3_u32 v21, v19, v21, 16'); a('v_lshlrev_b32 v21, 4, v21')
        a('v_lshrrev_b32 v1, 1, v20'); a(f's_mov_b32 s58, {NIMG}'); a('v_mul_lo_u32 v1, v1, s58'); a('v_add_u32 v17, v21, v1')
        a('v_mov_b32 v21, 0x7FF00000'); a('v_lshrrev_b32 v1, 2, v20'); a('v_cmp_gt_u32 vcc, s50, v1')
        a('v_cndmask_b32 v17, v21, v17, vcc')
    if name == 'TT':
        a('v_add_u32 v19, s77, v12'); a('v_lshlrev_b32 v19, 2, v19')
        a('v_mov_b32 v20, 0x7FF00000'); a('v_cmp_eq_u32 vcc, 2, v13'); a('v_cndmask_b32 v18, v20, v19, vcc')
        a('s_lshl_b32 s58, s40, 1'); a('s_or_b32 s58, s58, s44')
        a('s_cmp_eq_u32 s58, 1'); a(f's_cselect_b32 s83, {WS_G}, 0x7FF00000' if False else f's_mov_b32 s83, {WS_G}')
        a('s_cselect_b32 s83, s83, 0x7FF00000')


def epilogue(a, name, Na, Nb, X=()):
    ST = '' if 'wb' in X else ' sc1'
    cnt = [0]

    def store_tile(tile):
        N = Na if tile < 2 else Nb
        sd = 80 if tile < 2 else (82 if tile == 2 else 81)
        hl = {0: 0, 1: 1, 2: 0, 3: 0, 4: 1, 5: 2, 6: 3}[tile]
        for G in range(2):
            X, Y = acc(2 * G, tile), acc(2 * G + 1, tile)
            t = 40 + (cnt[0] % 4) * 4
            cnt[0] += 1
            a(f'v_cvt_pk_bf16_f32 v{t}, v{X}, v{X+1}'); a(f'v_cvt_pk_bf16_f32 v{t+1}, v{X+2}, v{X+3}')
            a(f'v_cvt_pk_bf16_f32 v{t+2}, v{Y}, v{Y+1}'); a(f'v_cvt_pk_bf16_f32 v{t+3}, v{Y+2}, v{Y+3}')
            if N:
                voff = 17 if tile == 2 else 16
                a(f's_add_u32 s58, s{sd}, {hl * NIMG + G * 4 * 288}')
                a(f'buffer_store_dwordx4 {vr(t)}, v{voff}, s[24:27], s58 offen{ST}')
            elif tile == 2:
                a(f'buffer_store_dwordx2 {vr(t, 2)}, v15, s[24:27], s{sd} offen offset:{G * 256}{ST}')
                a(f'buffer_store_dwordx2 {vr(t + 2, 2)}, v15, s[24:27], s{sd} offen offset:{G * 256 + 32}{ST}')
            else:
                a(f's_add_u32 s58, s{sd}, {hl * 65536 + G * 1024}')
                a(f'v_permlane16_swap_b32 v{t}, v{t+2}')
                a(f'v_permlane16_swap_b32 v{t+1}, v{t+3}')
                a(f'buffer_store_dwordx4 {vr(t)}, v14, s[24:27], s58 offen{ST}')

    if name == 'TT':
        for rt in range(4):
            a(f'v_mul_f32 v{3+rt}, 0xBFB8AA3B, v{acc(rt, 2)}')
        for rt in range(4):
            a(f'v_exp_f32 v{3+rt}, v{3+rt}')
        for rt in range(4):
            a(f'v_add_f32 v{3+rt}, 1.0, v{3+rt}')
        for rt in range(4):
            a(f'v_rcp_f32 v{3+rt}, v{3+rt}')
        for rt in range(4):
            a(f'buffer_store_dword v{3+rt}, v18, s[24:27], s83 offen offset:{(rt // 2) * 128 + (rt % 2) * 16} sc1')
    for seg, tiles, sphi, ssc in (('a', (0, 1), 66, 30), ('b', (2, 3, 4, 5, 6), 67, 14)):
        N = Na if seg == 'a' else Nb
        lab = f'K1_{name}_{seg}'
        a(f's_cmp_eq_u32 s{sphi}, 0')
        a(f's_cbranch_scc1 {lab}_nophi')
        st = a.snapshot()
        c0 = cnt[0]
        for tile in tiles:
            T = 24
            rr = [ACC + tile * 16 + r for r in range(16)]
            for k in range(0, 16, 2):
                a(f'v_pk_fma_f32 v[{T+k}:{T+k+1}], v[{rr[k]}:{rr[k]+1}], s[74:75], v[22:23]')
            for k in range(16):
                a(f'v_exp_f32_e64 v{T+k}, v{T+k} clamp')
                a(f'v_max_f32 v{rr[k]}, s76, v{rr[k]}')
            for k in range(0, 16, 2):
                a(f'v_pk_add_f32 v[{rr[k]}:{rr[k]+1}], v[{rr[k]}:{rr[k]+1}], v[{T+k}:{T+k+1}]')
            store_tile(tile)
        a(f's_branch {lab}_done')
        st1 = a.snapshot()
        a.restore(st)
        cnt[0] = c0
        a.label(f'{lab}_nophi')
        for tile in tiles:
            if not N:
                for k in range(0, 16, 2):
                    r = ACC + tile * 16 + k
                    a(f'v_pk_mul_f32 v[{r}:{r+1}], v[{r}:{r+1}], s[{ssc}:{ssc+1}]')
            store_tile(tile)
        a.label(f'{lab}_done')
        a.nop(2)
```
